```python
import torch

def _softmax(x, axis=-1):
    return torch.softmax(x, dim=axis)
def _gelu(x):
    return torch.nn.functional.gelu(x, approximate="tanh")
def _silu(x):
    return torch.nn.functional.silu(x)
def _sigmoid(x):
    return torch.sigmoid(x)
def _layernorm(x, axis=-1, eps=1e-5):
    m = x.mean(dim=axis, keepdim=True)
    v = x.var(dim=axis, keepdim=True, unbiased=False)
    return (x - m) / torch.sqrt(v + eps)
def _scatter_add(tgt, idx, src, axis=0):
    return tgt.clone().index_add_(axis, idx, src)
def _segment_sum(src, seg, n):
    out = torch.zeros((n,) + src.shape[1:], dtype=src.dtype)
    return out.index_add_(0, seg, src)
def _pad(x, pw):
    flat = tuple(v for pair in reversed(pw) for v in pair)
    return torch.nn.functional.pad(x, flat)

kernel_name = 'gather_scatter__hybrid_graph_tf_graphgps__graph'

def setup_inputs():

    _w = (lambda a: (lambda t: t.to(torch.bfloat16) if t.is_floating_point() else t)(torch.as_tensor(a)))
    N, deg, D = 12500, 32, 128
    E = N * deg
    src = (lambda lo, hi, *s: torch.randint(lo, hi, s))(0, N, E).to(torch.int64)
    dst = (lambda lo, hi, *s: torch.randint(lo, hi, s))(0, N, E).to(torch.int64)
    deg_cnt = torch.bincount(dst, minlength=N).to(float) + 1.0
    sc = 1.0 / float(D) ** 0.5
    return {
        "x": _w((lambda *s: torch.randn(*s, dtype=torch.bfloat16) * 0.05)(N, D)),
        "src": _w(src),
        "dst": _w(dst),
        "deg_inv": _w((1.0 / deg_cnt).to(float)),
        "w_msg": _w((lambda *s: torch.randn(*s, dtype=torch.bfloat16) * 0.4)(D, D) * sc),
        "wq": _w((lambda *s: torch.randn(*s, dtype=torch.bfloat16) * 1.6)(D, D) * sc),
        "wk": _w((lambda *s: torch.randn(*s, dtype=torch.bfloat16) * 1.6)(D, D) * sc),
        "wv": _w((lambda *s: torch.randn(*s, dtype=torch.bfloat16) * 0.2)(D, D) * sc),
        "w_out": _w((lambda *s: torch.randn(*s, dtype=torch.bfloat16) * 0.2)(D, D) * sc),
    }

def reference(x, src, dst, deg_inv, w_msg, wq, wk, wv, w_out):
    N, D = x.shape[0], x.shape[1]
    h = _layernorm(x, axis=-1)
    m_e = torch.einsum('nd,de->ne', h, w_msg)
    h_local = _segment_sum(m_e[src], dst, N) * deg_inv[:, None]
    q = torch.einsum('nd,de->ne', h, wq)
    k = torch.einsum('nd,de->ne', h, wk)
    v = torch.einsum('nd,de->ne', h, wv)
    logits = torch.einsum('id,jd->ij', q, k) / (float(D) ** 0.5)
    attn = _softmax(logits, axis=-1)
    h_global = torch.einsum('ij,jd->id', attn, v)
    y = torch.einsum('nd,de->ne', h_local + h_global, w_out)
    return x + y
```

```python
import re

REG_RE = re.compile(r'\b([vas])(\d+)\b|\b([vas])\[(\d+):(\d+)\]')


def regs_of(tok):
    out = []
    for m in REG_RE.finditer(tok):
        if m.group(1):
            out.append((m.group(1), int(m.group(2))))
        else:
            for i in range(int(m.group(4)), int(m.group(5)) + 1):
                out.append((m.group(3), i))
    t = tok.strip()
    if t in ('vcc', 'vcc_lo', 'vcc_hi'):
        out.append(('x', 'vcc'))
    if t in ('exec', 'exec_lo', 'exec_hi'):
        out.append(('x', 'exec'))
    if t == 'm0':
        out.append(('x', 'm0'))
    return out


TRANS = ('v_exp_f32', 'v_log_f32', 'v_rcp_f32', 'v_rsq_f32', 'v_sqrt_f32', 'v_sin_f32', 'v_cos_f32')


class I:
    __slots__ = ('text', 'op', 'kind', 'rd', 'wr', 'srcc', 'srcab', 'tag', 'passes', 'cnt', 'dpp')

    def __init__(self, text, tag=None):
        self.text = text.strip()
        self.tag = tag
        self.rd = []
        self.wr = []
        self.srcc = []
        self.srcab = []
        self.passes = 0
        self.cnt = None
        self.dpp = False
        t = self.text.split(';')[0].strip()
        if t.endswith(':') or t.startswith('.') or not t:
            self.op = t
            self.kind = 'label' if t.endswith(':') else 'dir'
            return
        parts = t.split(None, 1)
        op = parts[0]
        self.op = op
        rest = parts[1] if len(parts) > 1 else ''
        rest = re.sub(r'\s+(op_sel|op_sel_hi|neg_lo|neg_hi):\[[^\]]*\]', '', rest)
        ops = [o.strip() for o in rest.split(',')] if rest else []
        mods = ''
        if ops:
            sp = ops[-1].split(None, 1)
            if len(sp) > 1 and not ops[-1].startswith('hwreg'):
                ops[-1] = sp[0]
                mods = sp[1]
        R = [regs_of(o) for o in ops]
        if op.startswith('v_mfma'):
            self.kind = 'mfma'
            self.wr = R[0]
            self.srcab = R[1] + R[2]
            self.srcc = R[3]
            self.rd = self.srcab + self.srcc
            self.passes = 4 if '16x16x32' in op else 8
        elif op.startswith('ds_'):
            self.kind = 'ds'
            self.cnt = 'lgkm'
            if op.startswith('ds_read') or 'rtn' in op or 'permute' in op or 'swizzle' in op:
                self.wr = R[0]
                self.rd = sum(R[1:], [])
            else:
                self.rd = sum(R, [])
        elif op.startswith('buffer_') or op.startswith('global_'):
            self.kind = 'vmem'
            self.cnt = 'vm'
            islds = ' lds' in (' ' + mods) or 'load_lds' in op
            if op in ('buffer_wbl2', 'buffer_inv'):
                pass
            elif islds:
                self.rd = sum(R, []) + [('x', 'm0')]
            elif 'load' in op:
                self.wr = R[0]
                self.rd = sum(R[1:], [])
            elif 'atomic' in op and 'sc0' in mods:
                self.wr = R[0]
                self.rd = sum(R, [])
            else:
                self.rd = sum(R, [])
        elif op.startswith('s_load') or op.startswith('s_buffer_load') or op in ('s_memtime', 's_memrealtime'):
            self.kind = 'smem'
            self.cnt = 'smem'
            self.wr = R[0]
            self.rd = sum(R[1:], [])
        elif op.startswith('s_'):
            if op in ('s_waitcnt', 's_nop', 's_barrier', 's_endpgm', 's_setprio', 's_sleep'):
                self.kind = op[2:]
            elif op.startswith('s_cbranch') or op == 's_branch':
                self.kind = 'branch'
            elif op.startswith('s_cmp') or op.startswith('s_bitcmp'):
                self.kind = 'salu'
                self.rd = sum(R, [])
            else:
                self.kind = 'salu'
                self.wr = R[0]
                self.rd = sum(R[1:], [])
                if 'saveexec' in op:
                    self.wr = self.wr + [('x', 'exec')]
                    self.rd = self.rd + [('x', 'exec')]
                if op in ('s_addk_i32', 's_mulk_i32'):
                    self.rd = self.rd + R[0]
        elif op.startswith('v_'):
            self.kind = 'valu'
            self.dpp = '_dpp' in op
            if op.startswith('v_cmpx'):
                self.wr = R[0] + [('x', 'exec')]
                self.rd = sum(R[1:], [])
            elif 'permlane' in op and 'swap' in op:
                self.wr = R[0] + R[1]
                self.rd = R[0] + R[1]
            elif op.startswith('v_add_co') or op.startswith('v_addc_co') or op.startswith('v_sub_co') or op.startswith('v_subb_co') or op.startswith('v_mad_u64'):
                self.wr = R[0] + R[1]
                self.rd = sum(R[2:], [])
            else:
                self.wr = R[0]
                self.rd = sum(R[1:], [])
                if op.startswith('v_fmac') or op.startswith('v_writelane') or self.dpp or 'UNUSED_PRESERVE' in mods:
                    self.rd = self.rd + R[0]
                if op.startswith('v_cndmask') and len(ops) == 3:
                    self.rd = self.rd + [('x', 'vcc')]
        else:
            raise ValueError('unknown instr ' + text)

    def states(self):
        if self.kind in ('label', 'dir'):
            return 0
        if self.kind == 'nop':
            return int(self.text.split()[1], 0) + 1
        return 1

    def __repr__(self):
        return self.text


def need_states(p, c):
    n = 0
    pw = set(p.wr)
    cr = set(c.rd)
    cw = set(c.wr)
    if p.kind == 'mfma':
        ps = p.passes
        big = {4: 8, 8: 12}[ps]
        if c.kind == 'mfma':
            if pw & set(c.srcab):
                n = max(n, big)
            if pw & set(c.srcc):
                if list(p.wr) == list(c.srcc) and p.passes == c.passes:
                    pass
                else:
                    n = max(n, {4: 6, 8: 10}[ps])
            elif pw & cw:
                n = max(n, {4: 6, 8: 10}[ps])
        elif c.kind in ('valu', 'ds', 'vmem'):
            if pw & (cr | cw):
                n = max(n, big)
        if c.kind == 'valu' and set(p.srcc) & cw:
            n = max(n, {4: 3, 8: 7}[ps])
    if p.kind == 'valu':
        vw = {r for r in pw if r[0] in 'va'}
        sw = {r for r in pw if r[0] == 's' or r == ('x', 'vcc')}
        if c.kind == 'mfma' and vw & cr:
            n = max(n, 2)
        if c.kind == 'mfma' and ('x', 'exec') in pw:
            n = max(n, 4)
        if c.kind == 'valu':
            if c.dpp and vw & cr:
                n = max(n, 2)
            if c.dpp and ('x', 'exec') in pw:
                n = max(n, 5)
            if 'permlane' in c.op and vw & cr:
                n = max(n, 2)
            if 'permlane' in c.op and ('x', 'exec') in pw:
                n = max(n, 4)
            if ('readlane' in c.op or 'readfirstlane' in c.op) and vw & cr:
                n = max(n, 1)
            if ('readlane' in c.op or 'readfirstlane' in c.op or 'writelane' in c.op) and ('x', 'exec') in pw:
                n = max(n, 4)
            if sw & cr:
                n = max(n, 4 if ('readlane' in c.op or 'writelane' in c.op) else 2)
            if p.op.replace('_e32', '').replace('_e64', '') in TRANS and vw & cr:
                n = max(n, 1)
            if 'sdwa' in p.op and vw & (cr | cw):
                n = max(n, 1)
        if c.kind == 'vmem' and sw & cr:
            n = max(n, 5)
        if c.kind in ('salu', 'branch') and (sw & cr):
            n = max(n, 1)
    if p.kind == 'salu':
        if ('x', 'm0') in pw and c.kind in ('vmem', 'ds') and ('x', 'm0') in cr:
            n = max(n, 1)
    if p.kind == 'vmem' and 'store' in p.op and ('x4' in p.op or 'x3' in p.op):
        data = set(regs_of(p.text.split(None, 1)[1].split(',')[0])) if p.op.startswith('buffer') else \
            set(regs_of(p.text.split(None, 1)[1].split(',')[1]))
        if data & cw:
            n = max(n, 2 if c.kind == 'valu' else 1)
    return n


MAXLOOK = 24


def pad_hazards(ins, fix=True, pre=None):
    out = list(pre) if pre else []
    npre = len(out)
    problems = []
    for c in ins:
        if c.kind in ('label', 'dir'):
            out.append(c)
            continue
        dist = 0
        short = 0
        k = len(out) - 1
        while k >= 0 and dist < MAXLOOK:
            p = out[k]
            if p.kind not in ('label', 'dir'):
                n = need_states(p, c)
                if n > dist:
                    short = max(short, n - dist)
                    problems.append((p.text, c.text, n, dist))
                dist += p.states()
            k -= 1
        if short and fix:
            while short > 0:
                s = min(short, 16)
                out.append(I(f's_nop {s - 1}'))
                short -= s
        out.append(c)
    return out[npre:], problems


def _parse_wait(i):
    vm = lg = None
    m = re.search(r'vmcnt\((\d+)\)', i.text)
    if m:
        vm = int(m.group(1))
    m = re.search(r'lgkmcnt\((\d+)\)', i.text)
    if m:
        lg = int(m.group(1))
    return vm, lg


class WaitState:
    def __init__(self):
        self.vm = []
        self.lg = []

    def copy(self):
        w = WaitState()
        w.vm = list(self.vm)
        w.lg = list(self.lg)
        return w


def auto_wait(ins, st=None):
    st = st or WaitState()
    out = []
    for c in ins:
        if c.kind in ('label', 'dir'):
            out.append(c)
            continue
        if c.kind == 'waitcnt':
            vm, lg = _parse_wait(c)
            if vm is not None:
                st.vm = st.vm[len(st.vm) - vm:] if vm < len(st.vm) else st.vm
                if vm == 0:
                    st.vm = []
            if lg is not None:
                if lg == 0:
                    st.lg = []
                elif not any(e[1] for e in st.lg):
                    st.lg = st.lg[len(st.lg) - lg:] if lg < len(st.lg) else st.lg
            out.append(c)
            continue
        touch = set(c.rd) | set(c.wr)
        nvm = nlg = None
        for k, regs in enumerate(st.vm):
            if regs & touch:
                nvm = len(st.vm) - 1 - k
        for k, (regs, sm) in enumerate(st.lg):
            if regs & touch:
                nlg = len(st.lg) - 1 - k
        if nlg is not None and any(e[1] for e in st.lg):
            nlg = 0
        if nvm is not None or nlg is not None:
            t = 's_waitcnt'
            if nvm is not None:
                nvm = min(nvm, 63)
                t += f' vmcnt({nvm})'
                st.vm = st.vm[len(st.vm) - nvm:] if nvm else []
            if nlg is not None:
                nlg = min(nlg, 15)
                t += f' lgkmcnt({nlg})'
                st.lg = st.lg[len(st.lg) - nlg:] if nlg else []
            out.append(I(t))
        if c.cnt == 'vm':
            st.vm.append(set(c.wr))
        elif c.cnt == 'lgkm':
            st.lg.append((set(c.wr), False))
        elif c.cnt == 'smem':
            st.lg.append((set(c.wr), True))
        out.append(c)
    return out


class Prog:
    def __init__(self):
        self.ins = []

    def __call__(self, text, tag=None):
        for line in text.strip().split('\n'):
            line = line.strip()
            if not line or line.startswith(';'):
                continue
            self.ins.append(I(line, tag))

    def extend(self, ins):
        self.ins.extend(ins)

    def finish(self):
        a = auto_wait(self.ins)
        b, _ = pad_hazards(a)
        return b


def emit(ins):
    s = ''
    for i in ins:
        if i.kind == 'label' or i.kind == 'dir':
            s += i.text + '\n'
        else:
            s += '  ' + i.text + '\n'
    return s


def vr(b, n=1, k='v'):
    return f'{k}{b}' if n == 1 else f'{k}[{b}:{b + n - 1}]'


def f2u(x):
    import struct
    return struct.unpack('<I', struct.pack('<f', x))[0]


def hexf(x):
    return '0x%08x' % f2u(x)
```

```python
import math
from asmlib import *

N = 12500
D = 128
E = 400000
NT16 = 784
NBIN = 782
G = 64
EPW = E // G
ENT_STRIDE = 7168 * 4
OFFT_STRIDE = 4096

KIMG_OFF = 0x0000000
QIMG_OFF = 0x0400000
HROW_OFF = 0x0800000
ENT_OFF = 0x0C00000
OFFT_OFF = 0x0E00000
PART_OFF = 0x1000000
PART_STRIDE = 0x400000
STAT_OFF = 0x3000000
STAT_STRIDE = 0x20000
AGG_OFF = 0x3400000
WIMG_OFF = 0x3800000
WS_SIZE = 0x4000000

RT128 = math.sqrt(128.0)
CH = 1.0 / (RT128 - 1.0)
QSCALE = math.log2(math.e) / RT128

A_X, A_SRC, A_DST, A_DEG, A_WMSG, A_WQ, A_WK, A_WV, A_WOUT, A_OUT, A_DBG, A_WS = [8 * i for i in range(12)]


def srd(p, d, base, size):
    p(f"""
    s_mov_b32 s{d}, s{base}
    s_and_b32 s{d+1}, s{base+1}, 0xffff
    s_mov_b32 s{d+2}, {size}
    s_mov_b32 s{d+3}, 0x20000
    """)


def allreduce_g(p, v, t, op='v_add_f32'):
    p(f"""
    v_mov_b32 v{t}, v{v}
    v_permlane16_swap_b32 v{v}, v{t}
    {op} v{v}, v{v}, v{t}
    v_mov_b32 v{t}, v{v}
    v_permlane32_swap_b32 v{v}, v{t}
    {op} v{v}, v{v}, v{t}
    """)


def bcast_g3(p, src, dst, t):
    p(f"""
    v_mov_b32 v{t}, v{src}
    v_mov_b32 v{dst}, v{src}
    v_permlane32_swap_b32 v{t}, v{dst}
    v_mov_b32 v{t}, v{dst}
    v_permlane16_swap_b32 v{t}, v{dst}
    """)


def kernel_wrap(name, body, nvgpr, accum, nsgpr=102):
    s = f""".globl {name}
.p2align 8
.type {name},@function
{name}:
"""
    s += body
    return s


def kernel_desc(name, nvgpr, accum, nsgpr=102):
    return f""".p2align 6
.amdhsa_kernel {name}
  .amdhsa_next_free_vgpr {nvgpr}
  .amdhsa_next_free_sgpr {nsgpr}
  .amdhsa_accum_offset {accum}
  .amdhsa_group_segment_fixed_size 0
  .amdhsa_kernarg_size 96
  .amdhsa_user_sgpr_count 2
  .amdhsa_user_sgpr_kernarg_segment_ptr 1
  .amdhsa_system_sgpr_workgroup_id_x 1
.end_amdhsa_kernel
"""
```

```python
from common import *

K1_NWG = G + 196
K1_LDS = 65536


def bf16_round(p, v, t):
    p(f"""
    v_cvt_pk_bf16_f32 v{t}, v{v}, v{v}
    v_lshlrev_b32 v{v}, 16, v{t}
    """)


def k1_ln(p):
    p(f"""
    s_load_dwordx2 s[4:5], s[0:1], {A_X}
    s_load_dwordx4 s[8:11], s[0:1], {A_WQ}
    s_load_dwordx2 s[12:13], s[0:1], {A_WS}
    v_and_b32 v1, 63, v0
    v_lshrrev_b32 v7, 6, v0
    v_lshrrev_b32 v2, 4, v1
    v_and_b32 v3, 15, v1
    v_readfirstlane_b32 s33, v7
    s_sub_u32 s34, s2, {G}
    s_lshl_b32 s34, s34, 2
    s_waitcnt lgkmcnt(0)
    s_add_u32 s34, s34, s33
    s_lshl_b32 s35, s34, 12
    """)
    srd(p, 16, 4, N * 256)
    srd(p, 20, 8, 32768)
    srd(p, 24, 10, 32768)
    srd(p, 28, 12, WS_SIZE)
    p(f"""
    v_lshlrev_b32 v4, 8, v3
    v_lshl_add_u32 v4, v2, 4, v4
    """)
    for ks in range(4):
        p(f"buffer_load_dwordx4 v[{8+4*ks}:{11+4*ks}], v4, s[16:19], s35 offen offset:{64*ks}")
    p(f"""
    v_lshlrev_b32 v5, 2, v2
    v_xor_b32 v5, v5, v3
    v_lshlrev_b32 v5, 4, v5
    v_lshl_add_u32 v5, v2, 8, v5
    s_lshl_b32 s36, s33, 13
    s_mov_b32 m0, s36
    s_add_u32 s37, s36, 4096
    """)
    for j in range(4):
        p(f"buffer_load_dwordx4 v5, s[20:23], s36 offen offset:{1024*j} lds")
    p("s_mov_b32 m0, s37")
    for j in range(4):
        p(f"buffer_load_dwordx4 v5, s[20:23], s37 offen offset:{1024*j} lds")
    p(f"""
    s_lshl_b32 s38, s33, 2
    v_xor_b32 v6, v3, v2
    v_xor_b32 v6, s38, v6
    v_lshlrev_b32 v6, 4, v6
    v_lshl_add_u32 v6, v2, 8, v6
    s_lshl_b32 s38, s33, 11
    """)
    for a in range(4):
        p(f"""
        s_add_u32 s39, s38, {8192*a}
        s_add_u32 s40, s39, 32768
        s_mov_b32 m0, s40
        s_nop 0
        buffer_load_dwordx4 v6, s[24:27], s39 offen lds
        buffer_load_dwordx4 v6, s[24:27], s39 offen offset:1024 lds
        """)
    F = 24
    for k in range(16):
        p(f"v_lshlrev_b32 v{F+2*k}, 16, v{8+k}")
        p(f"v_and_b32 v{F+2*k+1}, 0xffff0000, v{8+k}")
    for c in range(4):
        p(f"v_add_f32 v{200+c}, v{F+c}, v{F+4+c}")
    for k in range(2, 8):
        for c in range(4):
            p(f"v_add_f32 v{200+c}, v{200+c}, v{F+4*k+c}")
    p("""
    v_add_f32 v200, v200, v201
    v_add_f32 v202, v202, v203
    v_add_f32 v200, v200, v202
    """)
    allreduce_g(p, 200, 201)
    p(f"v_mul_f32 v200, {hexf(1.0/128)}, v200")
    for k in range(32):
        p(f"v_sub_f32 v{F+k}, v{F+k}, v200")
    for c in range(4):
        p(f"v_mul_f32 v{200+c}, v{F+c}, v{F+c}")
    for k in range(1, 8):
        for c in range(4):
            p(f"v_fmac_f32 v{200+c}, v{F+4*k+c}, v{F+4*k+c}")
    p("""
    v_add_f32 v200, v200, v201
    v_add_f32 v202, v202, v203
    v_add_f32 v200, v200, v202
    """)
    allreduce_g(p, 200, 201)
    p(f"v_mul_f32 v200, {hexf(1.0/128)}, v200")
    bf16_round(p, 200, 201)
    p(f"v_add_f32 v200, {hexf(1e-5)}, v200")
    bf16_round(p, 200, 201)
    p("v_sqrt_f32 v200, v200")
    bf16_round(p, 200, 201)
    p("v_rcp_f32 v200, v200")
    for k in range(32):
        p(f"v_mul_f32 v{F+k}, v{F+k}, v200")
    HB = 56
    for k in range(16):
        p(f"v_cvt_pk_bf16_f32 v{HB+k}, v{F+2*k}, v{F+2*k+1}")
    bcast_g3(p, F + 31, 202, 201)
    p(f"v_mul_f32 v202, {hexf(CH)}, v202")
    for k in range(32):
        p(f"v_add_f32 v{F+k}, v{F+k}, v202")
    p(f"""
    v_cmp_eq_u32 s[42:43], 3, v2
    v_mov_b32 v203, 1.0
    v_cndmask_b32 v{F+31}, v{F+31}, v203, s[42:43]
    """)
    HT = 72
    for k in range(16):
        p(f"v_cvt_pk_bf16_f32 v{HT+k}, v{F+2*k}, v{F+2*k+1}")
    p(f"""
    v_and_b32 v204, 1, v2
    v_mul_u32_u24 v204, 12, v204
    v_xor_b32 v204, v204, v3
    v_lshlrev_b32 v204, 4, v204
    v_lshl_add_u32 v204, v2, 8, v204
    s_add_u32 s44, s35, {KIMG_OFF}
    s_add_u32 s45, s35, {HROW_OFF}
    s_add_u32 s46, s35, {QIMG_OFF}
    """)
    for ks in range(4):
        p(f"buffer_store_dwordx4 v[{HT+4*ks}:{HT+4*ks+3}], v204, s[28:31], s44 offen offset:{1024*ks}")
    for ks in range(4):
        p(f"buffer_store_dwordx4 v[{HT+4*ks}:{HT+4*ks+3}], v4, s[28:31], s45 offen offset:{64*ks}")
    p(f"""
    v_bfe_u32 v205, v1, 2, 2
    v_and_b32 v206, 3, v1
    v_lshl_add_u32 v207, v2, 3, v205
    v_lshlrev_b32 v207, 8, v207
    v_lshl_add_u32 v207, v206, 4, v207
    v_lshl_add_u32 v208, v205, 6, v207
    v_xor_b32 v209, 64, v208
    v_xor_b32 v210, 128, v208
    v_xor_b32 v211, 192, v208
    """)
    p(f"""
    v_lshrrev_b32 v212, 2, v3
    v_lshlrev_b32 v212, 3, v212
    v_and_b32 v213, 3, v3
    v_add_u32 v212, v212, v213
    v_lshlrev_b32 v212, 8, v212
    v_xor_b32 v213, v2, v3
    v_lshl_add_u32 v212, v213, 4, v212
    v_add_u32 v212, 32768, v212
    v_xor_b32 v213, 64, v212
    v_xor_b32 v214, 128, v212
    v_xor_b32 v215, 192, v212
    """)
    p("""
    s_waitcnt vmcnt(8)
    s_barrier
    """)
    QA = 88
    AF = 168

    def rd1(t):
        b = AF + 16 * (t & 1)
        for ks in range(4):
            for u in range(2):
                p(f"ds_read_b64_tr_b16 v[{b+4*ks+2*u}:{b+4*ks+2*u+1}], v{208+(t>>1)} offset:{8192*ks+1024*u+8*(t&1)}")
    rd1(0)
    for t in range(8):
        if t < 7:
            rd1(t + 1)
        b = AF + 16 * (t & 1)
        for ks in range(4):
            c = '0' if ks == 0 else f'v[{QA+4*t}:{QA+4*t+3}]'
            p(f"v_mfma_f32_16x16x32_bf16 v[{QA+4*t}:{QA+4*t+3}], v[{b+4*ks}:{b+4*ks+3}], v[{HB+4*ks}:{HB+4*ks+3}], {c}")
    UA = 136
    QF = 120

    def rd2(t):
        b = AF + 16 * (t & 1)
        for kk in range(4):
            p(f"ds_read_b128 v[{b+4*kk}:{b+4*kk+3}], v{212+kk} offset:{8192*(t>>1)+1024*(t&1)}")
    rd2(0)
    for k in range(16):
        p(f"v_cvt_pk_bf16_f32 v{QF+k}, v{QA+2*k}, v{QA+2*k+1}")
    for t in range(8):
        if t < 7:
            rd2(t + 1)
        b = AF + 16 * (t & 1)
        for kk in range(4):
            c = '0' if kk == 0 else f'v[{UA+4*t}:{UA+4*t+3}]'
            p(f"v_mfma_f32_16x16x32_bf16 v[{UA+4*t}:{UA+4*t+3}], v[{b+4*kk}:{b+4*kk+3}], v[{QF+4*kk}:{QF+4*kk+3}], {c}")
    for c in range(4):
        p(f"v_add_f32 v{200+c}, v{UA+c}, v{UA+4+c}")
    for k in range(2, 8):
        for c in range(4):
            p(f"v_add_f32 v{200+c}, v{200+c}, v{UA+4*k+c}")
    p("""
    v_add_f32 v200, v200, v201
    v_add_f32 v202, v202, v203
    v_add_f32 v200, v200, v202
    """)
    allreduce_g(p, 200, 201)
    bcast_g3(p, UA + 31, 202, 201)
    k1c = (1.0 + CH) / RT128 * QSCALE
    k2c = -CH / RT128 * QSCALE
    p(f"""
    v_mul_f32 v202, {hexf(k1c)}, v202
    v_mul_f32 v200, {hexf(k2c)}, v200
    v_add_f32 v200, v200, v202
    s_mov_b32 s47, {hexf(QSCALE)}
    """)
    for k in range(32):
        p(f"v_fma_f32 v{UA+k}, v{UA+k}, s47, v200")
    p(f"v_cndmask_b32 v{UA+31}, v{UA+31}, 0, s[42:43]")
    for k in range(16):
        p(f"v_cvt_pk_bf16_f32 v{QF+k}, v{UA+2*k}, v{UA+2*k+1}")
    p("v_lshlrev_b32 v204, 4, v1")
    for ks in range(4):
        p(f"buffer_store_dwordx4 v[{QF+4*ks}:{QF+4*ks+3}], v204, s[28:31], s46 offen offset:{1024*ks}")
    p("s_endpgm")


def k1_bin(p):
    NR = 7
    STG = 4096
    TOT = 4096 + 7168 * 4
    p(f"""
    s_load_dwordx4 s[4:7], s[0:1], {A_SRC}
    s_load_dwordx2 s[12:13], s[0:1], {A_WS}
    v_lshlrev_b32 v1, 4, v0
    v_lshrrev_b32 v7, 6, v0
    v_mov_b32 v8, 0
    v_mov_b32 v9, 0
    v_mov_b32 v10, 0
    v_mov_b32 v11, 0
    v_readfirstlane_b32 s33, v7
    ds_write_b128 v1, v[8:11]
    s_mul_i32 s34, s2, {EPW*4}
    s_waitcnt lgkmcnt(0)
    """)
    srd(p, 16, 4, E * 4)
    srd(p, 20, 6, E * 4)
    srd(p, 28, 12, WS_SIZE)
    DS = 16
    SR = 44
    RK = 72
    BA = 100
    for r in range(NR):
        p(f"s_add_u32 s35, s34, {4096*r}")
        p(f"buffer_load_dwordx4 v[{DS+4*r}:{DS+4*r+3}], v1, s[20:23], s35 offen")
    for r in range(NR):
        p(f"s_add_u32 s35, s34, {4096*r}")
        p(f"buffer_load_dwordx4 v[{SR+4*r}:{SR+4*r+3}], v1, s[16:19], s35 offen")
    p("""
    s_barrier
    v_mov_b32 v2, 1
    v_lshlrev_b32 v3, 2, v0
    """)
    for r in range(NR):
        for k in range(4):
            e = 4 * r + k
            p(f"v_lshrrev_b32 v{BA+e}, 4, v{DS+e}")
            p(f"v_lshlrev_b32 v{BA+e}, 2, v{BA+e}")
            if r == NR - 1:
                p(f"""
                v_cmp_gt_u32 vcc, {EPW - 1024*(NR-1) - k}, v3
                v_mov_b32 v4, {783*4}
                v_cndmask_b32 v{BA+e}, v4, v{BA+e}, vcc
                """)
            p(f"v_min_u32 v{BA+e}, {783*4}, v{BA+e}")
            p(f"ds_add_rtn_u32 v{RK+e}, v{BA+e}, v2")
    p("s_mov_b32 s43, 0x10000")
    for e in range(4 * NR):
        p(f"v_and_b32 v{DS+e}, 15, v{DS+e}")
        p(f"v_lshl_or_b32 v{DS+e}, s43, v{DS+e}, v{SR+e}")
    p(f"""
    s_waitcnt lgkmcnt(0)
    s_barrier
    ds_read_b128 v[8:11], v1
    v_add_u32 v13, v8, v9
    v_add_u32 v14, v13, v10
    v_add_u32 v15, v14, v11
    v_mov_b32 v5, v15
    v_add_u32_dpp v5, v5, v5 row_shr:1 row_mask:0xf bank_mask:0xf
    v_add_u32_dpp v5, v5, v5 row_shr:2 row_mask:0xf bank_mask:0xf
    v_add_u32_dpp v5, v5, v5 row_shr:4 row_mask:0xf bank_mask:0xf
    v_add_u32_dpp v5, v5, v5 row_shr:8 row_mask:0xf bank_mask:0xf
    v_add_u32_dpp v5, v5, v5 row_bcast:15 row_mask:0xa bank_mask:0xf
    v_add_u32_dpp v5, v5, v5 row_bcast:31 row_mask:0xc bank_mask:0xf
    v_readlane_b32 s36, v5, 63
    s_lshl_b32 s37, s33, 2
    s_add_u32 s37, s37, {TOT}
    v_mov_b32 v6, s37
    v_mov_b32 v4, s36
    ds_write_b32 v6, v4
    v_mov_b32 v6, {TOT}
    s_waitcnt lgkmcnt(0)
    s_barrier
    ds_read_b128 v[128:131], v6
    s_cmp_gt_u32 s33, 0
    s_cselect_b32 s38, -1, 0
    s_cmp_gt_u32 s33, 1
    s_cselect_b32 s39, -1, 0
    s_cmp_gt_u32 s33, 2
    s_cselect_b32 s40, -1, 0
    v_sub_u32 v5, v5, v15
    v_and_b32 v128, s38, v128
    v_and_b32 v129, s39, v129
    v_and_b32 v130, s40, v130
    v_add3_u32 v5, v5, v128, v129
    v_add_u32 v132, v5, v130
    v_add_u32 v133, v132, v8
    v_add_u32 v134, v132, v13
    v_add_u32 v135, v132, v14
    ds_write_b128 v1, v[132:135]
    s_lshl_b32 s41, s2, 12
    s_add_u32 s41, s41, {OFFT_OFF}
    buffer_store_dwordx4 v[132:135], v1, s[28:31], s41 offen
    s_waitcnt lgkmcnt(0)
    s_barrier
    """)
    for e in range(4 * NR):
        p(f"ds_read_b32 v{BA+e}, v{BA+e}")
    for e in range(4 * NR):
        p(f"v_add_lshl_u32 v{BA+e}, v{BA+e}, v{RK+e}, 2")
        p(f"ds_write_b32 v{BA+e}, v{DS+e} offset:{STG}")
    p(f"""
    s_waitcnt lgkmcnt(0)
    s_barrier
    s_mul_i32 s42, s2, {ENT_STRIDE}
    s_add_u32 s42, s42, {ENT_OFF}
    """)
    for r in range(NR):
        p(f"ds_read_b128 v[{SR+4*r}:{SR+4*r+3}], v1 offset:{STG+4096*r}")
    for r in range(NR):
        p(f"s_add_u32 s35, s42, {4096*r}")
        p(f"buffer_store_dwordx4 v[{SR+4*r}:{SR+4*r+3}], v1, s[28:31], s35 offen")
    p("s_endpgm")


def gen_k1():
    h = Prog()
    h(f"""
    s_cmp_ge_u32 s2, {K1_NWG}
    s_cbranch_scc1 Lk1_exit
    s_cmp_ge_u32 s2, {G}
    s_cbranch_scc1 Lk1_ln
    """)
    a = Prog()
    k1_bin(a)
    b = Prog()
    k1_ln(b)
    body = emit(h.ins) + emit(a.finish()) + "Lk1_ln:\n" + emit(b.finish()) + "Lk1_exit:\n  s_endpgm\n"
    return body
```

```python
from common import *

K2_ATT = 245
K2_NWG = 249
NFULL = 39
LAG = 5
MARGIN = 32.0
RING = 65536
STG_OFF = 65536
LIST_OFF = 131072
LIST_CAP = 992
FLAG_OFF = 131072 + 4 * 4352
K2_LDS = FLAG_OFF + 64
LIST_STRIDE = 4352

V_LANE, V_G, V_I, V_L16 = 1, 2, 3, 4
V_KL, V_VL, V_KA, V_VA = 5, 6, 7, 8
V_T0, V_T1, V_T2, V_T3 = 9, 10, 11, 12
O_B = 16
S_B = 144
P_B = 160
NM_B = 192
NM1_B = 208
NINF_B = 224
G_B = 208
Q_A = 0
K_A = 64
V_A = 128
GA_A = 192
GF_A = 224


def O(j, dt): return O_B + (j * 8 + dt) * 4
def Sr(s): return S_B + 4 * s
def Pr(j, k2): return P_B + j * 8 + k2 * 4
def NM(j): return NM_B + 4 * j
def Qf(j, ks): return Q_A + (j * 4 + ks) * 4
def Kf(s, ks): return K_A + (s * 4 + ks) * 4
def Vf(dt, k2): return V_A + (dt * 2 + k2) * 4


def mf(d, a, b, c):
    return f"v_mfma_f32_16x16x32_bf16 {d}, {a}, {b}, {c}"


def kread(s, ks, areg=V_KA):
    return I(f"ds_read_b128 {vr(Kf(s,ks),4,'a')}, v{areg} offset:{4096*s+1024*ks}", 'kread')


def vread(dt, k2, u):
    return I(f"ds_read_b64_tr_b16 {vr(Vf(dt,k2)+2*u,2,'a')}, v{V_VA} offset:{4096*(2*k2+u)+512*dt}", 'vread')


def build_iter(variant):
    NG = 128
    mf_l = [None] * NG
    fixed = [[] for _ in range(NG)]
    units = [2] * NG
    for p in range(16):
        j, s = divmod(p, 4)
        for ks in range(4):
            if ks == 0:
                c = vr(NM(j), 4)
                if variant == 'tail':
                    c = [vr(NM(j), 4), vr(NM1_B + 4 * j, 4), vr(NINF_B, 4), vr(NINF_B, 4)][s]
            else:
                c = vr(Sr(s), 4)
            mf_l[8 * p + ks] = I(mf(vr(Sr(s), 4), vr(Kf(s, ks), 4, 'a'), vr(Qf(j, ks), 4, 'a'), c), 'qk')
        pp = (p - LAG) % 16
        jp, a = divmod(pp, 4)
        prev = p < LAG
        n = 0
        for dt in (2 * a, 2 * a + 1):
            for k2 in (0, 1):
                mf_l[8 * p + 4 + n] = I(mf(vr(O(jp, dt), 4), vr(Vf(dt, k2), 4, 'a'), vr(Pr(jp, k2), 4), vr(O(jp, dt), 4)),
                                        'pv_prev' if prev else 'pv')
                n += 1
        q = (p - 1) % 16
        jq, sq = divmod(q, 4)
        tg = 'sm_prev' if p == 0 else 'sm'
        for r in range(4):
            fixed[8 * p + 2 * r].append(I(f"v_exp_f32 v{Sr(sq)+r}, v{Sr(sq)+r}", tg))
            units[8 * p + 2 * r] -= 2
        pd = Pr(jq, sq >> 1) + 2 * (sq & 1)
        fixed[8 * p + 3].append(I(f"v_cvt_pk_bf16_f32 v{pd}, v{Sr(sq)}, v{Sr(sq)+1}", tg))
        units[8 * p + 3] -= 1
        fixed[8 * p + 7].append(I(f"v_cvt_pk_bf16_f32 v{pd+1}, v{Sr(sq)+2}, v{Sr(sq)+3}", tg))
        units[8 * p + 7] -= 1
    LATM = 9
    mov = []
    for a in range(4):
        n = 0
        for dt in (2 * a, 2 * a + 1):
            for k2 in (0, 1):
                last = 8 * ((12 + LAG + a) - 16) + 4 + n
                nxt = 8 * (LAG + a) + 4 + n
                for u in range(2):
                    mov.append((last, nxt - LATM, 1, vread(dt, k2, u)))
                n += 1
    BAR = 95
    for s in range(4):
        for ks in range(4):
            mov.append((max(8 * (12 + s) + ks, BAR + 1), 127, 1, kread(s, ks)))
    for i in range(4):
        mov.append((70 + 4 * i, 92, 2, I(f"buffer_load_dwordx4 v{V_L16}, s[28:31], s40 offen offset:{1024*i} lds", 'dma')))
    mov.append((1, 11, 1, I(f"v_add_u32 v{V_VA}, s43, v{V_VL}", 'va')))
    mov.append((66, 94, 1, I(f"v_add_u32 v{V_KA}, s42, v{V_KL}", 'ka')))
    placed = [[] for _ in range(NG)]
    pend = sorted(mov, key=lambda m: (m[1], m[0]))
    for g in range(NG):
        while units[g] > 0:
            cand = [m for m in pend if m[0] <= g and m[2] <= units[g]]
            if not cand:
                break
            m = cand[0]
            assert g <= m[1], ('deadline miss', g, m)
            pend.remove(m)
            placed[g].append(m[3])
            units[g] -= m[2]
    assert not pend, pend
    scal = [[] for _ in range(NG)]
    sops = [
        (56, 59, I("s_add_u32 s42, s42, 16384", 'ka')),
        (60, 64, I("s_and_b32 s42, s42, 0xffff", 'ka')),
        (65, 69, I("s_mov_b32 m0, s41", 'dma')),
        (92, 94, I("s_waitcnt vmcnt(8)", 'bar')),
        (BAR, BAR, I("s_barrier", 'bar')),
        (98, 101, I("s_add_u32 s40, s40, 16384", 'dma')),
        (102, 105, I("s_add_u32 s41, s41, 16384", 'dma')),
        (106, 109, I("s_and_b32 s41, s41, 0xffff", 'dma')),
        (110, 113, I("s_mov_b32 s43, s42", 'va')),
    ]
    if variant == 'mid':
        sops.append((116, 119, I("s_sub_u32 s44, s44, 1", 'loop')))
        sops.append((120, 126, I("s_cmp_lg_u32 s44, 0", 'loop')))
    for lo, hi, ins in sops:
        g = next((g for g in range(lo, hi + 1) if g not in WAITGAPS and not scal[g]), lo)
        scal[g].append(ins)
    gaps = []
    for g in range(NG):
        vec = [x for x in placed[g] if x.kind != 'valu'] + [x for x in placed[g] if x.kind == 'valu'] + fixed[g]
        gaps.append([mf_l[g], scal[g], vec])
    if variant == 'first':
        drop = ('pv_prev', 'sm_prev')
        keep = lambda i: i.tag not in drop
    elif variant == 'drain':
        keep = lambda i: i.tag in ('pv_prev', 'sm_prev')
    else:
        keep = lambda i: True
    out = []
    for m, sc, ve in gaps:
        out.append([m if keep(m) else None, [x for x in sc if keep(x)], [x for x in ve if keep(x)]])
    return out


WAITGAPS = set()


def place_waits(gaps, entry, nextm, AGE=7):
    issued = list(entry)
    done = 0
    flat = []
    n = len(gaps)
    wg = set()

    def need_for(instr):
        q = -1
        t = set(instr.rd) | set(instr.wr)
        for k in range(done, len(issued)):
            if issued[k][0] & t:
                q = k
        return q
    for g in range(n):
        m, sc, ve = gaps[g]
        if m is not None:
            assert need_for(m) < 0, ('late ds', g, m)
            flat.append(m)
        nx = gaps[g + 1][0] if g + 1 < n else nextm
        if nx is not None:
            q = need_for(nx)
            if q >= 0:
                for k in range(q, len(issued)):
                    if issued[k][1] <= g - AGE:
                        q = k
                N = min(15, len(issued) - 1 - q)
                flat.append(I(f"s_waitcnt lgkmcnt({N})", 'w'))
                wg.add(g)
                done = len(issued) - N
        flat.extend(sc)
        for x in ve:
            if x.kind == 'ds':
                issued.append((set(x.wr), g))
            flat.append(x)
    return flat, [(r, g - n) for r, g in issued[done:]], wg


def iter_code(variant, entry, pre):
    gaps = build_iter(variant)
    nextm = None if variant == 'drain' else build_iter('mid')[0][0]
    flat, ex, wg = place_waits(gaps, entry, nextm)
    fixed, problems = pad_hazards(flat, fix=True, pre=pre)
    return fixed, problems, ex, wg


def gen_loop_variants():
    WAITGAPS.clear()
    _, _, ex, _ = iter_code('first', [], [])
    _, _, ex2, wg = iter_code('mid', ex, [])
    assert ex == ex2
    WAITGAPS.update(wg)
    first, _, ex1, _ = iter_code('first', [], [])
    mid0, _, _, _ = iter_code('mid', ex, first[-30:])
    mid, prob, _, _ = iter_code('mid', ex, mid0[-30:])
    assert not prob, prob
    assert [x.text for x in mid0] == [x.text for x in mid]
    tail, _, ex3, _ = iter_code('tail', ex, mid[-30:])
    assert ex3 == ex and ex1 == ex
    drain, _, _, _ = iter_code('drain', ex, mid[-30:])
    return first, mid, tail, drain


def k2_setup(p):
    p(f"""
    s_load_dwordx2 s[12:13], s[0:1], {A_WS}
    s_load_dwordx2 s[14:15], s[0:1], {A_DEG}
    v_and_b32 v{V_LANE}, 63, v0
    v_lshrrev_b32 v{V_T0}, 6, v0
    v_lshrrev_b32 v{V_G}, 4, v{V_LANE}
    v_and_b32 v{V_I}, 15, v{V_LANE}
    v_readfirstlane_b32 s33, v{V_T0}
    v_lshlrev_b32 v{V_L16}, 4, v{V_LANE}
    s_and_b32 s3, s2, 7
    s_lshr_b32 s4, s2, 3
    s_mul_i32 s5, s3, 31
    s_add_u32 s5, s5, s4
    s_max_u32 s3, s3, 5
    s_sub_u32 s3, s3, 5
    s_sub_u32 s5, s5, s3
    s_mul_i32 s34, s5, 1338
    s_lshr_b32 s34, s34, 16
    s_mul_i32 s3, s34, 49
    s_sub_u32 s35, s5, s3
    s_lshl_b32 s36, s5, 2
    s_add_u32 s36, s36, s33
    s_lshl_b32 s37, s35, 4
    s_lshl_b32 s3, s33, 2
    s_add_u32 s37, s37, s3
    s_mov_b32 s45, 0
    s_waitcnt lgkmcnt(0)
    """)
    srd(p, 28, 12, WS_SIZE)
    srd(p, 24, 14, N * 2)
    p(f"""
    v_and_b32 v{V_T0}, 1, v{V_G}
    v_mul_u32_u24 v{V_T0}, 12, v{V_T0}
    v_xor_b32 v{V_T0}, v{V_T0}, v{V_I}
    v_lshlrev_b32 v{V_T0}, 4, v{V_T0}
    v_lshl_add_u32 v{V_KL}, v{V_G}, 8, v{V_T0}
    v_lshrrev_b32 v{V_T0}, 2, v{V_LANE}
    v_bfe_u32 v{V_T1}, v{V_LANE}, 1, 1
    v_mul_u32_u24 v{V_T2}, 12, v{V_T1}
    v_xor_b32 v{V_T0}, v{V_T0}, v{V_T2}
    v_lshlrev_b32 v{V_T0}, 4, v{V_T0}
    v_lshl_add_u32 v{V_T0}, v{V_T1}, 8, v{V_T0}
    v_and_b32 v{V_T1}, 1, v{V_LANE}
    v_lshl_add_u32 v{V_VL}, v{V_T1}, 3, v{V_T0}
    """)
    p(f"""
    s_lshl_b32 s38, s37, 12
    s_add_u32 s38, s38, {QIMG_OFF}
    """)
    for j in range(4):
        for ks in range(4):
            p(f"buffer_load_dwordx4 {vr(Qf(j,ks),4,'a')}, v{V_L16}, s[28:31], s38 offen offset:{1024*ks}")
        if j < 3:
            p("s_add_u32 s38, s38, 4096")


def dma_start(p, ntiles):
    p(f"""
    s_mul_i32 s39, s34, {NFULL*16384}
    s_lshl_b32 s3, s33, 12
    s_add_u32 s39, s39, s3
    s_add_u32 s39, s39, {KIMG_OFF}
    s_mov_b32 s40, s39
    s_mov_b32 s41, s3
    """)
    for t in range(ntiles):
        p("s_mov_b32 m0, s41")
        p("s_nop 0")
        for i in range(4):
            p(f"buffer_load_dwordx4 v{V_L16}, s[28:31], s40 offen offset:{1024*i} lds")
        p("s_add_u32 s40, s40, 16384")
        p("s_add_u32 s41, s41, 16384")


def k2_maxpass(p):
    MX = P_B
    CI = NM1_B
    p(f"""
    s_waitcnt vmcnt(0) lgkmcnt(0)
    s_barrier
    s_mov_b32 s40, s39
    s_lshl_b32 s41, s33, 12
    s_mov_b32 s46, 0
    s_cmp_eq_u32 s34, 4
    s_cselect_b32 s47, {NFULL+1}, {NFULL}
    s_mov_b32 s48, 0xff800000
    v_mov_b32 v{V_KA}, v{V_KL}
    """)
    for j in range(4):
        p(f"v_mov_b32 v{MX+j}, s48")
    for k in range(16):
        p(f"v_mov_b32 v{CI+k}, 0")
    p(f"""
    Lk2_mx_loop:
    s_mov_b32 m0, s41
    s_nop 0
    """)
    for i in range(4):
        p(f"buffer_load_dwordx4 v{V_L16}, s[28:31], s40 offen offset:{1024*i} lds")
    p(f"""
    s_add_u32 s40, s40, 16384
    s_cmp_lg_u32 s46, {NFULL}
    s_cbranch_scc1 Lk2_mx_nomask
    v_cmp_eq_u32 vcc, 0, v{V_G}
    v_mov_b32 v{V_T0}, s48
    s_nop 1
    """)
    for k in range(4):
        p(f"v_cndmask_b32 v{CI+4+k}, v{V_T0}, v{CI+4+k}, vcc")
    for k in range(8, 16):
        p(f"v_mov_b32 v{CI+k}, s48")
    p(f"""
    Lk2_mx_nomask:
    s_waitcnt vmcnt(0)
    s_barrier
    """)
    for s in range(4):
        for ks in range(4):
            p.extend([kread(s, ks)])
    p("s_waitcnt lgkmcnt(0)")
    p("s_barrier")
    for j in range(4):
        for s in range(4):
            d = vr(O_B + (j * 4 + s) * 4, 4)
            for ks in range(4):
                p(mf(d, vr(Kf(s, ks), 4, 'a'), vr(Qf(j, ks), 4, 'a'), vr(CI + 4 * s, 4) if ks == 0 else d))
    for j in range(4):
        for k in range(0, 16, 2):
            b = O_B + j * 16 + k
            p(f"v_max3_f32 v{MX+j}, v{MX+j}, v{b}, v{b+1}")
    p(f"""
    s_add_u32 s46, s46, 1
    s_cmp_lt_u32 s46, s47
    s_nop 7
    s_cbranch_scc1 Lk2_mx_loop
    """)
    for j in range(4):
        allreduce_g(p, MX + j, V_T0, 'v_max_f32')
        for r in range(4):
            p(f"v_sub_f32 v{NM(j)+r}, 0, v{MX+j}")


def k2_prologue(p):
    p("Lk2_run:")
    dma_start(p, 3)
    for r in range(128):
        p(f"v_mov_b32 v{O_B+r}, 0")
    p(f"""
    v_mov_b32 v{V_KA}, v{V_KL}
    s_mov_b32 s42, 0
    s_mov_b32 s43, 0
    s_mov_b32 s44, {NFULL-1}
    s_waitcnt vmcnt(8)
    s_barrier
    """)
    for s in range(4):
        for ks in range(4):
            p.extend([kread(s, ks)])
    p(f"""
    s_cmp_lg_u32 s45, 0
    s_cbranch_scc1 Lk2_have_m
    s_waitcnt lgkmcnt(12)
    """)
    for j in range(4):
        d = vr(P_B + 4 * j, 4)
        for ks in range(4):
            p(mf(d, vr(Kf(0, ks), 4, 'a'), vr(Qf(j, ks), 4, 'a'), '0' if ks == 0 else d))
    for j in range(4):
        b = P_B + 4 * j
        p(f"v_max3_f32 v{b}, v{b}, v{b+1}, v{b+2}")
        p(f"v_max_f32 v{b}, v{b}, v{b+3}")
    for j in range(4):
        allreduce_g(p, P_B + 4 * j, P_B + 4 * j + 1, 'v_max_f32')
    for j in range(4):
        for r in range(4):
            p(f"v_sub_f32 v{NM(j)+r}, {hexf(-MARGIN)}, v{P_B+4*j}")
    p(f"""
    Lk2_have_m:
    s_waitcnt lgkmcnt(0)
    s_nop 1
    """)


def k2_tail_setup(p):
    p(f"""
    s_mov_b32 s48, 0xff800000
    v_cmp_eq_u32 vcc, 0, v{V_G}
    v_mov_b32 v{NINF_B}, s48
    v_mov_b32 v{NINF_B+1}, s48
    v_mov_b32 v{NINF_B+2}, s48
    v_mov_b32 v{NINF_B+3}, s48
    """)
    for k in range(16):
        p(f"v_cndmask_b32 v{NM1_B+k}, v{NINF_B}, v{NM_B+k}, vcc")
    p("s_nop 1")


def k2_epilogue(p):
    p(f"""
    s_mul_i32 s46, s34, {PART_STRIDE}
    s_lshl_b32 s47, s37, 12
    s_add_u32 s46, s46, s47
    s_add_u32 s46, s46, {PART_OFF}
    s_mul_i32 s47, s34, {STAT_STRIDE}
    s_lshl_b32 s48, s37, 7
    s_add_u32 s47, s47, s48
    s_add_u32 s47, s47, {STAT_OFF}
    v_lshlrev_b32 v{V_T0}, 3, v{V_I}
    s_mov_b32 s48, {hexf(2.0**100)}
    v_cmp_eq_u32 s[50:51], 3, v{V_G}
    s_mov_b64 s[52:53], 0
    """)
    for j in range(4):
        b = P_B + 2 * j
        p(f"""
        v_sub_f32 v{b}, 0, v{NM(j)}
        v_mov_b32 v{b+1}, v{O(j,7)+3}
        v_cmp_nlt_f32 vcc, v{O(j,7)+3}, s48
        s_or_b64 s[52:53], s[52:53], vcc
        """)
        for kk in range(4):
            d = S_B + 4 * kk
            for h in range(2):
                o = O(j, 2 * kk + h)
                p(f"v_cvt_pk_bf16_f32 v{d+2*h}, v{o}, v{o+1}")
                p(f"v_cvt_pk_bf16_f32 v{d+2*h+1}, v{o+2}, v{o+3}")
            p(f"buffer_store_dwordx4 {vr(d,4)}, v{V_L16}, s[28:31], s46 offen offset:{1024*kk}")
        if j < 3:
            p("s_add_u32 s46, s46, 4096")
    p("s_mov_b64 exec, s[50:51]")
    for j in range(4):
        b = P_B + 2 * j
        p(f"buffer_store_dwordx2 {vr(b,2)}, v{V_T0}, s[28:31], s47 offen offset:{128*j}")
    p(f"""
    s_mov_b64 exec, -1
    s_and_b64 s[52:53], s[52:53], s[50:51]
    s_cselect_b32 s46, 1, 0
    s_lshl_b32 s47, s33, 2
    s_add_u32 s47, s47, {FLAG_OFF}
    v_mov_b32 v{V_T0}, s47
    v_mov_b32 v{V_T1}, s46
    v_mov_b32 v{V_T2}, {FLAG_OFF}
    ds_write_b32 v{V_T0}, v{V_T1}
    s_waitcnt lgkmcnt(0)
    s_barrier
    ds_read_b128 v[{S_B}:{S_B+3}], v{V_T2}
    v_or_b32 v{S_B}, v{S_B}, v{S_B+1}
    v_or3_b32 v{S_B}, v{S_B}, v{S_B+2}, v{S_B+3}
    v_readfirstlane_b32 s46, v{S_B}
    s_nop 1
    s_andn2_b32 s46, s46, s45
    s_cmp_eq_u32 s46, 0
    s_cbranch_scc1 Lk2_gather
    s_mov_b32 s45, 1
    """)


def k2_gather(p):
    E0 = G_B
    LO = G_B + 8
    TA = G_B + 12
    OH = G_B + 20
    AD = G_B + 28
    ROT = G_B + 30
    LA = G_B + 31
    ST, CN, PS = G_B + 32, G_B + 33, G_B + 34
    t0, t1, t2 = V_T0, V_T1, V_T2
    p(f"""
    Lk2_gather:
    s_waitcnt vmcnt(0) lgkmcnt(0)
    s_cmp_ge_u32 s36, {NBIN}
    s_cbranch_scc1 Lk2_exit
    s_lshl_b32 s46, s36, 2
    s_add_u32 s46, s46, {OFFT_OFF}
    v_lshlrev_b32 v{t0}, 12, v{V_LANE}
    buffer_load_dwordx2 v[{ST}:{ST+1}], v{t0}, s[28:31], s46 offen
    s_lshl_b32 s46, s36, 5
    v_lshlrev_b32 v{t0}, 1, v{V_I}
    buffer_load_ushort v{G_B+35}, v{t0}, s[24:27], s46 offen
    s_mul_i32 s49, s33, {LIST_STRIDE}
    s_add_u32 s49, s49, {LIST_OFF}
    s_lshl_b32 s54, s33, 14
    s_add_u32 s54, s54, {STG_OFF}
    s_mov_b32 s55, 256
    s_mov_b32 s56, {HROW_OFF - 3072}
    s_mov_b32 s57, 0x40004000
    s_mov_b32 s58, 0x07060302
    """)
    p(f"""
    v_and_b32 v{t0}, 1, v{V_G}
    v_lshlrev_b32 v{t0}, 3, v{t0}
    v_xor_b32 v{t1}, v{t0}, v{V_I}
    v_lshlrev_b32 v{t1}, 4, v{t1}
    """)
    for k in range(4):
        p(f"v_xor_b32 v{LO+k}, {32*k}, v{t1}")
        p(f"v_add_u32 v{LO+k}, {3072-1024*k}, v{LO+k}")
    p(f"""
    v_bfe_u32 v{t1}, v{V_LANE}, 2, 2
    v_lshl_add_u32 v{t2}, v{t1}, 2, v{V_G}
    v_lshlrev_b32 v{t2}, 8, v{t2}
    v_lshlrev_b32 v{t1}, 1, v{t1}
    v_xor_b32 v{t0}, v{t0}, v{t1}
    v_bfe_u32 v{t1}, v{V_LANE}, 1, 1
    v_xor_b32 v{t0}, v{t0}, v{t1}
    v_lshl_add_u32 v{t2}, v{t0}, 4, v{t2}
    v_and_b32 v{t1}, 1, v{V_LANE}
    v_lshl_add_u32 v{t2}, v{t1}, 3, v{t2}
    v_add_u32 v{t2}, s54, v{t2}
    """)
    for dt in range(8):
        p(f"v_xor_b32 v{TA+dt}, {32*dt}, v{t2}")
    p(f"""
    v_add_u32 v{ROT}, 18, v{V_I}
    v_lshlrev_b32 v{LA}, 5, v{V_G}
    v_add_u32 v{LA}, s49, v{LA}
    """)
    for r in range(32):
        p(f"v_accvgpr_write_b32 a{GA_A+r}, 0")
    p(f"""
    v_sub_u32 v{CN}, v{ST+1}, v{ST}
    v_min_u32 v{CN}, {EPW}, v{CN}
    v_mov_b32 v{PS}, v{CN}
    v_add_u32_dpp v{PS}, v{PS}, v{PS} row_shr:1 row_mask:0xf bank_mask:0xf
    v_add_u32_dpp v{PS}, v{PS}, v{PS} row_shr:2 row_mask:0xf bank_mask:0xf
    v_add_u32_dpp v{PS}, v{PS}, v{PS} row_shr:4 row_mask:0xf bank_mask:0xf
    v_add_u32_dpp v{PS}, v{PS}, v{PS} row_shr:8 row_mask:0xf bank_mask:0xf
    v_add_u32_dpp v{PS}, v{PS}, v{PS} row_bcast:15 row_mask:0xa bank_mask:0xf
    v_add_u32_dpp v{PS}, v{PS}, v{PS} row_bcast:31 row_mask:0xc bank_mask:0xf
    v_readlane_b32 s59, v{PS}, 63
    v_sub_u32 v{PS}, v{PS}, v{CN}
    v_mul_u32_u24 v{t0}, {ENT_STRIDE}, v{V_LANE}
    v_lshl_add_u32 v{ST}, v{ST}, 2, v{t0}
    s_mov_b32 s60, {ENT_OFF}
    v_cmp_lt_u32 vcc, 32, v{CN}
    s_mov_b32 s61, 0
    s_cmp_gt_u32 s59, {LIST_CAP}
    s_cbranch_scc1 Lk2_g_slow
    s_cbranch_vccnz Lk2_g_slow
    """)
    for q in range(8):
        p(f"buffer_load_dwordx4 v[{O_B+4*q}:{O_B+4*q+3}], v{ST}, s[28:31], s60 offen offset:{16*q}")
    p(f"""
    v_lshlrev_b32 v{PS}, 2, v{PS}
    v_add_u32 v{PS}, s49, v{PS}
    v_cmp_lt_u32 vcc, 0, v{CN}
    s_mov_b64 exec, vcc
    """)
    for k in range(31, -1, -1):
        p(f"ds_write_b32 v{PS}, v{O_B+k} offset:{4*k}")
    p(f"""
    s_mov_b64 exec, -1
    s_lshl_b32 s46, s59, 2
    s_add_u32 s46, s46, s49
    v_lshlrev_b32 v{t0}, 2, v{V_LANE}
    v_add_u32 v{t0}, s46, v{t0}
    v_mov_b32 v{t1}, 0
    ds_write_b32 v{t0}, v{t1}
    s_add_u32 s62, s59, 31
    s_lshr_b32 s62, s62, 5
    s_mov_b32 s61, -1
    s_branch Lk2_g_proc
    """)
    p(f"""
    Lk2_g_slow:
    s_waitcnt vmcnt(0) lgkmcnt(0)
    v_cmp_lt_u32 vcc, s61, v{CN}
    s_cbranch_vccz Lk2_g_done
    v_mov_b32 v{t1}, 0
    s_lshl_b32 s46, s61, 2
    s_add_u32 s46, s46, s60
    s_mov_b64 exec, vcc
    buffer_load_dword v{t1}, v{ST}, s[28:31], s46 offen
    s_mov_b64 exec, -1
    v_lshlrev_b32 v{t0}, 2, v{V_LANE}
    v_add_u32 v{t0}, s49, v{t0}
    ds_write_b32 v{t0}, v{t1}
    s_add_u32 s61, s61, 1
    s_mov_b32 s62, 2
    """)
    def issue(buf):
        p(f"""
        ds_read_b128 v[{E0}:{E0+3}], v{t2}
        ds_read_b128 v[{E0+4}:{E0+7}], v{t2} offset:16
        v_add_u32 v{t2}, 128, v{t2}
        s_add_u32 s46, s54, {8192*buf}
        s_mov_b32 m0, s46
        """)
        for i in range(8):
            if i == 4:
                p(f"s_add_u32 s46, s54, {8192*buf+4096}")
                p("s_mov_b32 m0, s46")
            a = AD + (i & 1)
            p(f"v_mad_u32_u16 v{a}, v{E0+i}, s55, v{LO+(i&3)}")
            p(f"buffer_load_dwordx4 v{a}, s[28:31], s56 offen offset:{1024*(i&3)} lds")
        for k in range(4):
            o = OH + 4 * buf + k
            p(f"v_perm_b32 v{o}, v{E0+2*k+1}, v{E0+2*k}, s58")
            p(f"v_alignbit_b32 v{o}, v{o}, v{o}, v{ROT}")
            p(f"v_and_b32 v{o}, s57, v{o}")

    def consume(buf):
        for dt in range(8):
            for u in range(2):
                p(f"ds_read_b64_tr_b16 {vr(GF_A+4*dt+2*u,2,'a')}, v{TA+dt} offset:{8192*buf+4096*u}")
        for dt in range(8):
            d = vr(GA_A + 4 * dt, 4, 'a')
            p(mf(d, vr(GF_A + 4 * dt, 4, 'a'), vr(OH + 4 * buf, 4), d))
    p(f"""
    Lk2_g_proc:
    s_waitcnt vmcnt(0) lgkmcnt(0)
    v_mov_b32 v{t2}, v{LA}
    s_cmp_eq_u32 s62, 0
    s_cbranch_scc1 Lk2_g_procdone
    """)
    issue(0)
    p(f"""
    Lk2_g_loop:
    s_cmp_le_u32 s62, 1
    s_cbranch_scc1 Lk2_g_last0
    """)
    issue(1)
    p("s_waitcnt vmcnt(8)")
    consume(0)
    p(f"""
    s_cmp_le_u32 s62, 2
    s_cbranch_scc1 Lk2_g_last1
    """)
    issue(0)
    p("s_waitcnt vmcnt(8)")
    consume(1)
    p(f"""
    s_sub_u32 s62, s62, 2
    s_branch Lk2_g_loop
    Lk2_g_last0:
    s_waitcnt vmcnt(0) lgkmcnt(0)
    s_nop 1
    """)
    consume(0)
    p(f"""
    s_branch Lk2_g_procdone
    Lk2_g_last1:
    s_waitcnt vmcnt(0) lgkmcnt(0)
    s_nop 1
    """)
    consume(1)
    p(f"""
    Lk2_g_procdone:
    s_nop 7
    s_cmp_lg_u32 s61, -1
    s_cbranch_scc1 Lk2_g_slow
    Lk2_g_done:
    s_waitcnt vmcnt(0) lgkmcnt(0)
    s_nop 7
    v_lshlrev_b32 v{t0}, 16, v{G_B+35}
    v_mul_f32 v{t0}, 0.5, v{t0}
    s_lshl_b32 s46, s36, 12
    s_add_u32 s46, s46, {AGG_OFF}
    """)
    for r in range(32):
        p(f"v_accvgpr_read_b32 v{O_B+r}, a{GA_A+r}")
    for r in range(32):
        p(f"v_mul_f32 v{O_B+r}, v{O_B+r}, v{t0}")
    for k in range(16):
        p(f"v_cvt_pk_bf16_f32 v{O_B+32+k}, v{O_B+2*k}, v{O_B+2*k+1}")
    for kk in range(4):
        p(f"buffer_store_dwordx4 v[{O_B+32+4*kk}:{O_B+35+4*kk}], v{V_L16}, s[28:31], s46 offen offset:{1024*kk}")
    p("s_endpgm")


def k2_wprep(p):
    p(f"""
    s_load_dwordx2 s[4:5], s[0:1], {A_WMSG}
    s_load_dwordx2 s[6:7], s[0:1], {A_WV}
    s_load_dwordx2 s[8:9], s[0:1], {A_WOUT}
    s_load_dwordx2 s[12:13], s[0:1], {A_WS}
    v_and_b32 v1, 63, v0
    v_lshrrev_b32 v7, 6, v0
    v_lshrrev_b32 v2, 4, v1
    v_and_b32 v3, 15, v1
    v_readfirstlane_b32 s33, v7
    s_sub_u32 s34, s2, {K2_ATT}
    s_lshl_b32 s34, s34, 2
    s_add_u32 s34, s34, s33
    s_and_b32 s35, s34, 7
    s_waitcnt lgkmcnt(0)
    s_cmp_ge_u32 s34, 8
    s_cselect_b32 s4, s6, s4
    s_cselect_b32 s5, s7, s5
    """)
    srd(p, 16, 4, 32768)
    srd(p, 20, 8, 32768)
    srd(p, 28, 12, WS_SIZE)
    AFR = 16
    BFR = 144
    AC = 160
    p(f"""
    v_lshlrev_b32 v4, 8, v3
    v_lshl_add_u32 v4, v2, 4, v4
    s_mov_b32 s36, 0
    """)
    for t in range(8):
        for kk in range(4):
            b = AFR + (t * 4 + kk) * 4
            p(f"buffer_load_dwordx4 v[{b}:{b+3}], v4, s[16:19], s36 offen offset:{64*kk}")
        p("s_add_u32 s36, s36, 4096")
    p(f"""
    v_lshrrev_b32 v5, 2, v3
    v_lshlrev_b32 v5, 3, v5
    v_and_b32 v6, 3, v3
    v_add_u32 v5, v5, v6
    v_lshlrev_b32 v5, 1, v5
    v_lshl_add_u32 v5, v2, 11, v5
    s_lshr_b32 s36, s35, 1
    s_lshl_b32 s36, s36, 6
    s_and_b32 s37, s35, 1
    s_lshl_b32 s37, s37, 3
    s_add_u32 s36, s36, s37
    """)
    for kk in range(4):
        p(f"s_add_u32 s37, s36, {8192*kk}")
        for x in range(8):
            p(f"buffer_load_ushort v{AC+8*kk+x}, v5, s[20:23], s37 offen offset:{256*x}")
    for k in range(16):
        p(f"v_lshl_or_b32 v{BFR+k}, v{AC+2*k+1}, 16, v{AC+2*k}")
    for t in range(8):
        d = vr(AC + 4 * t, 4)
        for kk in range(4):
            b = AFR + (t * 4 + kk) * 4
            p(mf(d, vr(b, 4), vr(BFR + 4 * kk, 4), '0' if kk == 0 else d))
    for c in range(4):
        p(f"v_add_f32 v{200+c}, v{AC+c}, v{AC+4+c}")
    for k in range(2, 8):
        for c in range(4):
            p(f"v_add_f32 v{200+c}, v{200+c}, v{AC+4*k+c}")
    p("""
    v_add_f32 v200, v200, v201
    v_add_f32 v202, v202, v203
    v_add_f32 v200, v200, v202
    """)
    allreduce_g(p, 200, 201)
    bcast_g3(p, AC + 31, 202, 201)
    p(f"""
    v_mul_f32 v202, {hexf((1.0+CH)/RT128)}, v202
    v_mul_f32 v200, {hexf(-CH/RT128)}, v200
    v_add_f32 v200, v200, v202
    v_cmp_eq_u32 s[42:43], 3, v2
    """)
    for k in range(32):
        p(f"v_add_f32 v{AC+k}, v{AC+k}, v200")
    p(f"v_cndmask_b32 v{AC+31}, v{AC+31}, 0, s[42:43]")
    for k in range(16):
        p(f"v_cvt_pk_bf16_f32 v{16+k}, v{AC+2*k}, v{AC+2*k+1}")
    p(f"""
    v_lshlrev_b32 v4, 4, v1
    s_lshl_b32 s36, s34, 12
    s_add_u32 s36, s36, {WIMG_OFF}
    """)
    for kk in range(4):
        p(f"buffer_store_dwordx4 v[{16+4*kk}:{19+4*kk}], v4, s[28:31], s36 offen offset:{1024*kk}")
    p("s_endpgm")


def gen_k2():
    first, mid, tail, drain = gen_loop_variants()
    s = f"""  s_cmp_ge_u32 s2, {K2_NWG}
  s_cbranch_scc1 Lk2_exit
  s_cmp_ge_u32 s2, {K2_ATT}
  s_cbranch_scc1 Lk2_wprep
"""
    a = Prog()
    k2_setup(a)
    k2_prologue(a)
    s += emit(a.finish())
    s += emit(first)
    s += ".p2align 6\nLk2_loop:\n" + emit(mid) + "  s_cbranch_scc1 Lk2_loop\n"
    s += "  s_cmp_lg_u32 s34, 4\n  s_cbranch_scc1 Lk2_drain\n"
    b = Prog()
    k2_tail_setup(b)
    s += emit(b.finish()) + emit(tail)
    s += "Lk2_drain:\n" + emit(drain) + "  s_nop 7\n  s_waitcnt lgkmcnt(0)\n"
    c = Prog()
    k2_epilogue(c)
    k2_maxpass(c)
    c("s_branch Lk2_run")
    s += emit(c.finish())
    d = Prog()
    k2_gather(d)
    s += emit(d.finish())
    e = Prog()
    k2_wprep(e)
    s += "Lk2_wprep:\n" + emit(e.finish())
    s += "Lk2_exit:\n  s_endpgm\n"
    return s


if __name__ == '__main__':
    first, mid, tail, drain = gen_loop_variants()
    print(emit(mid))
```

```python
from common import *

K3_NWG = 196
K3_LDS = 65536


def mf(d, a, b, c):
    return f"v_mfma_f32_16x16x32_bf16 {d}, {a}, {b}, {c}"


def gen_k3():
    p = Prog()
    p(f"""
    s_load_dwordx2 s[4:5], s[0:1], {A_X}
    s_load_dwordx2 s[6:7], s[0:1], {A_OUT}
    s_load_dwordx2 s[12:13], s[0:1], {A_WS}
    v_and_b32 v1, 63, v0
    v_lshrrev_b32 v7, 6, v0
    v_lshrrev_b32 v2, 4, v1
    v_and_b32 v3, 15, v1
    v_readfirstlane_b32 s33, v7
    v_lshlrev_b32 v5, 4, v1
    v_lshlrev_b32 v4, 8, v3
    v_lshl_add_u32 v4, v2, 4, v4
    v_lshlrev_b32 v6, 3, v3
    s_lshl_b32 s34, s2, 2
    s_add_u32 s34, s34, s33
    s_lshl_b32 s35, s34, 12
    s_waitcnt lgkmcnt(0)
    """)
    srd(p, 16, 4, N * 256)
    srd(p, 20, 6, N * 256)
    srd(p, 28, 12, WS_SIZE)
    ST = 8
    PT = 20
    AG = 100
    XR = 116
    OA = 132
    OF = 164
    YA = 180
    WF = 212
    p(f"""
    s_lshl_b32 s36, s34, 7
    s_add_u32 s36, s36, {STAT_OFF}
    """)
    for s in range(5):
        p(f"buffer_load_dwordx2 v[{ST+2*s}:{ST+2*s+1}], v6, s[28:31], s36 offen")
        if s < 4:
            p(f"s_add_u32 s36, s36, {STAT_STRIDE}")
    p(f"s_add_u32 s37, s35, {PART_OFF}")
    for s in range(5):
        for kk in range(4):
            b = PT + 16 * s + 4 * kk
            p(f"buffer_load_dwordx4 v[{b}:{b+3}], v5, s[28:31], s37 offen offset:{1024*kk}")
        if s < 4:
            p(f"s_add_u32 s37, s37, {PART_STRIDE}")
    p(f"""
    s_lshl_b32 s38, s33, 14
    s_add_u32 s39, s38, {WIMG_OFF}
    """)
    for a in range(4):
        p("s_mov_b32 m0, s38")
        p("s_nop 0")
        for i in range(4):
            p(f"buffer_load_dwordx4 v5, s[28:31], s39 offen offset:{1024*i} lds")
        if a < 3:
            p("s_add_u32 s38, s38, 4096")
            p("s_add_u32 s39, s39, 4096")
    p(f"s_add_u32 s40, s35, {AGG_OFF}")
    for kk in range(4):
        p(f"buffer_load_dwordx4 v[{AG+4*kk}:{AG+4*kk+3}], v5, s[28:31], s40 offen offset:{1024*kk}")
    for kk in range(4):
        p(f"buffer_load_dwordx4 v[{XR+4*kk}:{XR+4*kk+3}], v4, s[16:19], s35 offen offset:{64*kk}")
    L = 244
    for s in range(5):
        p(f"v_log_f32 v{L+s}, v{ST+2*s+1}")
    for s in range(5):
        p(f"v_add_f32 v{L+s}, v{L+s}, v{ST+2*s}")
    p(f"""
    v_max3_f32 v249, v{L}, v{L+1}, v{L+2}
    v_max3_f32 v249, v249, v{L+3}, v{L+4}
    """)
    for s in range(5):
        p(f"v_sub_f32 v{L+s}, v{L+s}, v249")
    for s in range(5):
        p(f"v_exp_f32 v{L+s}, v{L+s}")
    for s in range(5):
        p(f"v_rcp_f32 v{ST+2*s}, v{ST+2*s+1}")
    p(f"""
    v_add_f32 v249, v{L}, v{L+1}
    v_add_f32 v250, v{L+2}, v{L+3}
    v_add_f32 v249, v249, v{L+4}
    v_add_f32 v249, v249, v250
    v_rcp_f32 v249, v249
    """)
    for s in range(5):
        p(f"v_mul_f32 v{L+s}, v{L+s}, v249")
    for s in range(5):
        p(f"v_mul_f32 v{L+s}, v{L+s}, v{ST+2*s}")
    for s in range(5):
        for k in range(16):
            r = PT + 16 * s + k
            t = 250 + 2 * (k & 1)
            p(f"v_lshlrev_b32 v{t}, 16, v{r}")
            p(f"v_and_b32 v{t+1}, 0xffff0000, v{r}")
            if s == 0:
                p(f"v_mul_f32 v{OA+2*k}, v{t}, v{L}")
                p(f"v_mul_f32 v{OA+2*k+1}, v{t+1}, v{L}")
            else:
                p(f"v_fmac_f32 v{OA+2*k}, v{t}, v{L+s}")
                p(f"v_fmac_f32 v{OA+2*k+1}, v{t+1}, v{L+s}")
    for k in range(16):
        p(f"v_cvt_pk_bf16_f32 v{OF+k}, v{OA+2*k}, v{OA+2*k+1}")
    p("""
    s_waitcnt vmcnt(8)
    s_barrier
    """)
    steps = [(ft, m) for ft in range(8) for m in range(2)]

    def rd(n):
        ft, m = steps[n]
        b = WF + 16 * (n & 1)
        for kk in range(4):
            p(f"ds_read_b128 v[{b+4*kk}:{b+4*kk+3}], v5 offset:{32768*m+4096*ft+1024*kk}")
    rd(0)
    for n, (ft, m) in enumerate(steps):
        if n + 1 < len(steps):
            rd(n + 1)
        b = WF + 16 * (n & 1)
        d = vr(YA + 4 * ft, 4)
        B = AG if m == 0 else OF
        for kk in range(4):
            p(mf(d, vr(b + 4 * kk, 4), vr(B + 4 * kk, 4), '0' if (m == 0 and kk == 0) else d))
    for k in range(16):
        t = 250 + 2 * (k & 1)
        p(f"v_lshlrev_b32 v{t}, 16, v{XR+k}")
        p(f"v_and_b32 v{t+1}, 0xffff0000, v{XR+k}")
        p(f"v_add_f32 v{t}, v{t}, v{YA+2*k}")
        p(f"v_add_f32 v{t+1}, v{t+1}, v{YA+2*k+1}")
        p(f"v_cvt_pk_bf16_f32 v{PT+k}, v{t}, v{t+1}")
        if k % 4 == 3:
            kk = k // 4
            p(f"buffer_store_dwordx4 v[{PT+4*kk}:{PT+4*kk+3}], v4, s[20:23], s35 offen offset:{64*kk}")
    s = f"  s_cmp_ge_u32 s2, {K3_NWG}\n  s_cbranch_scc1 Lk3_exit\n" + emit(p.finish()) + "Lk3_exit:\n  s_endpgm\n"
    return s
```

```python
import sys
from common import *
import k1, k2, k3

NAME = "gather_scatter__hybrid_graph_tf_graphgps__graph"


def main(out):
    ref = open(f"cdna_kernels/{NAME}.s.ref").read().split('\n')
    head = [l for l in ref if l.startswith(';') and '@launch' not in l and 'Override launch' not in l and 'grid=ceil' not in l]
    s = '\n'.join(head) + '\n'
    s += f"; @launch kernel=gps_prep_kernel grid=({k1.K1_NWG},1,1) block=(256,1,1) lds={k1.K1_LDS}\n"
    s += f"; @launch kernel=gps_attn_kernel grid=({k2.K2_NWG},1,1) block=(256,1,1) lds={k2.K2_LDS}\n"
    s += f"; @launch kernel=gps_out_kernel grid=({k3.K3_NWG},1,1) block=(256,1,1) lds={k3.K3_LDS}\n"
    s += '.amdgcn_target "amdgcn-amd-amdhsa--gfx950"\n.text\n'
    s += kernel_wrap("gps_prep_kernel", k1.gen_k1(), 0, 0)
    s += kernel_wrap("gps_attn_kernel", k2.gen_k2(), 0, 0)
    s += kernel_wrap("gps_out_kernel", k3.gen_k3(), 0, 0)
    s += '.section .rodata,"a"\n'
    s += kernel_desc("gps_prep_kernel", 216, 216)
    s += kernel_desc("gps_attn_kernel", 512, 256)
    s += kernel_desc("gps_out_kernel", 256, 256)
    open(out, 'w').write(s)


if __name__ == '__main__':
    main(sys.argv[1] if len(sys.argv) > 1 else f"cdna_kernels/{NAME}.s")
```

```python
import math
from asmlib import *

N = 12500
D = 128
E = 400000
NT16 = 784
NBIN = 782
G = 64
EPW = E // G
ENT_STRIDE = 7168 * 4
OFFT_STRIDE = 4096

KIMG_OFF = 0x0000000
QIMG_OFF = 0x0400000
HROW_OFF = 0x0800000
ENT_OFF = 0x0C00000
OFFT_OFF = 0x0E00000
PART_OFF = 0x1000000
PART_STRIDE = 0x400000
STAT_OFF = 0x3000000
STAT_STRIDE = 0x20000
AGG_OFF = 0x3400000
WIMG_OFF = 0x3800000
WS_SIZE = 0x4000000

RT128 = math.sqrt(128.0)
CH = 1.0 / (RT128 - 1.0)
QSCALE = math.log2(math.e) / RT128

A_X, A_SRC, A_DST, A_DEG, A_WMSG, A_WQ, A_WK, A_WV, A_WOUT, A_OUT, A_DBG, A_WS = [8 * i for i in range(12)]


def srd(p, d, base, size):
    p(f"""
    s_mov_b32 s{d}, s{base}
    s_and_b32 s{d+1}, s{base+1}, 0xffff
    s_mov_b32 s{d+2}, {size}
    s_mov_b32 s{d+3}, 0x20000
    """)


def allreduce_g(p, v, t, op='v_add_f32'):
    p(f"""
    v_mov_b32 v{t}, v{v}
    v_permlane16_swap_b32 v{v}, v{t}
    {op} v{v}, v{v}, v{t}
    v_mov_b32 v{t}, v{v}
    v_permlane32_swap_b32 v{v}, v{t}
    {op} v{v}, v{v}, v{t}
    """)


def bcast_g3(p, src, dst, t):
    p(f"""
    v_mov_b32 v{t}, v{src}
    v_mov_b32 v{dst}, v{src}
    v_permlane32_swap_b32 v{t}, v{dst}
    v_mov_b32 v{t}, v{dst}
    v_permlane16_swap_b32 v{t}, v{dst}
    """)


def kernel_wrap(name, body, nvgpr, accum, nsgpr=102):
    s = f""".globl {name}
.p2align 8
.type {name},@function
{name}:
"""
    s += body
    return s


def kernel_desc(name, nvgpr, accum, nsgpr=102):
    return f""".p2align 6
.amdhsa_kernel {name}
  .amdhsa_next_free_vgpr {nvgpr}
  .amdhsa_next_free_sgpr {nsgpr}
  .amdhsa_accum_offset {accum}
  .amdhsa_group_segment_fixed_size 0
  .amdhsa_kernarg_size 96
  .amdhsa_user_sgpr_count 2
  .amdhsa_user_sgpr_kernarg_segment_ptr 1
  .amdhsa_system_sgpr_workgroup_id_x 1
.end_amdhsa_kernel
"""


import os
STAMPS = bool(os.environ.get("STAMPS"))
STAMP_OFF = 0x3C00000


def stamp(p, idx):
    if not STAMPS:
        return
    p(f"""
    s_memrealtime s[98:99]
    s_waitcnt lgkmcnt(0)
    s_mov_b32 s{80+idx}, s98
    """)


def stamp_flush(p, kern, n, wave_sgpr=33):
    if not STAMPS:
        return
    p(f"""
    s_lshl_b32 s98, s2, 2
    s_add_u32 s98, s98, s{wave_sgpr}
    s_lshl_b32 s98, s98, 6
    s_add_u32 s98, s98, {STAMP_OFF + kern * 0x20000}
    s_mov_b64 exec, 1
    v_mov_b32 v200, 0
    """)
    for i in range(n):
        p(f"v_mov_b32 v201, s{80+i}")
        p(f"buffer_store_dword v201, v200, s[28:31], s98 offen offset:{4*i}")
```

```python
from common import *

def gen_diag(specs, back):
    p = Prog()
    p(f"""
    s_load_dwordx2 s[12:13], s[0:1], {A_WS}
    s_load_dwordx2 s[14:15], s[0:1], {A_DBG}
    v_lshlrev_b32 v1, 6, v0
    s_waitcnt lgkmcnt(0)
    s_sub_u32 s14, s14, {back}
    s_subb_u32 s15, s15, 0
    """)
    srd(p, 28, 12, WS_SIZE)
    srd(p, 24, 14, 256)
    for n, (kern, idx, first, nrec, ismax) in enumerate(specs):
        op = 'max' if ismax else 'min'
        rounds = (nrec + 63) // 64
        for r in range(rounds):
            base = STAMP_OFF + kern * 0x20000 + (first + 64 * r) * 64 + idx * 4
            if r == rounds - 1 and nrec % 64:
                base -= (64 - nrec % 64) * 64
            p(f"s_mov_b32 s40, {base}")
            p(f"buffer_load_dword v{8+r}, v1, s[28:31], s40 offen")
        for r in range(1, rounds):
            p(f"v_{op}_u32 v8, v8, v{8+r}")
        p("s_nop 1")
        p("v_readlane_b32 s41, v8, 0")
        for l in range(1, 64):
            p(f"v_readlane_b32 s42, v8, {l}")
            p(f"s_{op}_u32 s41, s41, s42")
        if n == 0:
            p("s_mov_b32 s43, s41")
        else:
            p("s_sub_u32 s41, s41, s43")
        p(f"""
        v_mov_b32 v2, s41
        v_mov_b32 v3, {4*n}
        buffer_store_dword v2, v3, s[24:27], 0 offen
        s_waitcnt vmcnt(0)
        """)
    return "  s_cmp_ge_u32 s2, 1\n  s_cbranch_scc1 Ldiag_exit\n" + emit(p.finish()) + "Ldiag_exit:\n  s_endpgm\n"
```

```python
from common import *

K1_NWG = G + 196
K1_LDS = 65536
K1_NREC = K1_NWG * 4


def bf16_round(p, v, t):
    p(f"""
    v_cvt_pk_bf16_f32 v{t}, v{v}, v{v}
    v_lshlrev_b32 v{v}, 16, v{t}
    """)


def k1_ln(p):
    stamp(p, 0)
    p(f"""
    s_load_dwordx2 s[4:5], s[0:1], {A_X}
    s_load_dwordx4 s[8:11], s[0:1], {A_WQ}
    s_load_dwordx2 s[12:13], s[0:1], {A_WS}
    v_and_b32 v1, 63, v0
    v_lshrrev_b32 v7, 6, v0
    v_lshrrev_b32 v2, 4, v1
    v_and_b32 v3, 15, v1
    v_readfirstlane_b32 s33, v7
    s_sub_u32 s34, s2, {G}
    s_lshl_b32 s34, s34, 2
    s_waitcnt lgkmcnt(0)
    s_add_u32 s34, s34, s33
    s_lshl_b32 s35, s34, 12
    """)
    srd(p, 16, 4, N * 256)
    srd(p, 20, 8, 32768)
    srd(p, 24, 10, 32768)
    srd(p, 28, 12, WS_SIZE)
    p(f"""
    v_lshlrev_b32 v4, 8, v3
    v_lshl_add_u32 v4, v2, 4, v4
    """)
    for ks in range(4):
        p(f"buffer_load_dwordx4 v[{8+4*ks}:{11+4*ks}], v4, s[16:19], s35 offen offset:{64*ks}")
    p(f"""
    v_lshlrev_b32 v5, 2, v2
    v_xor_b32 v5, v5, v3
    v_lshlrev_b32 v5, 4, v5
    v_lshl_add_u32 v5, v2, 8, v5
    s_lshl_b32 s36, s33, 13
    s_mov_b32 m0, s36
    s_add_u32 s37, s36, 4096
    """)
    for j in range(4):
        p(f"buffer_load_dwordx4 v5, s[20:23], s36 offen offset:{1024*j} lds")
    p("s_mov_b32 m0, s37")
    for j in range(4):
        p(f"buffer_load_dwordx4 v5, s[20:23], s37 offen offset:{1024*j} lds")
    p(f"""
    s_lshl_b32 s38, s33, 2
    v_xor_b32 v6, v3, v2
    v_xor_b32 v6, s38, v6
    v_lshlrev_b32 v6, 4, v6
    v_lshl_add_u32 v6, v2, 8, v6
    s_lshl_b32 s38, s33, 11
    """)
    for a in range(4):
        p(f"""
        s_add_u32 s39, s38, {8192*a}
        s_add_u32 s40, s39, 32768
        s_mov_b32 m0, s40
        s_nop 0
        buffer_load_dwordx4 v6, s[24:27], s39 offen lds
        buffer_load_dwordx4 v6, s[24:27], s39 offen offset:1024 lds
        """)
    if STAMPS:
        p("s_waitcnt vmcnt(16)")
        stamp(p, 1)
    F = 24
    for k in range(16):
        p(f"v_lshlrev_b32 v{F+2*k}, 16, v{8+k}")
        p(f"v_and_b32 v{F+2*k+1}, 0xffff0000, v{8+k}")
    for c in range(4):
        p(f"v_add_f32 v{200+c}, v{F+c}, v{F+4+c}")
    for k in range(2, 8):
        for c in range(4):
            p(f"v_add_f32 v{200+c}, v{200+c}, v{F+4*k+c}")
    p("""
    v_add_f32 v200, v200, v201
    v_add_f32 v202, v202, v203
    v_add_f32 v200, v200, v202
    """)
    allreduce_g(p, 200, 201)
    p(f"v_mul_f32 v200, {hexf(1.0/128)}, v200")
    for k in range(32):
        p(f"v_sub_f32 v{F+k}, v{F+k}, v200")
    for c in range(4):
        p(f"v_mul_f32 v{200+c}, v{F+c}, v{F+c}")
    for k in range(1, 8):
        for c in range(4):
            p(f"v_fmac_f32 v{200+c}, v{F+4*k+c}, v{F+4*k+c}")
    p("""
    v_add_f32 v200, v200, v201
    v_add_f32 v202, v202, v203
    v_add_f32 v200, v200, v202
    """)
    allreduce_g(p, 200, 201)
    p(f"v_mul_f32 v200, {hexf(1.0/128)}, v200")
    bf16_round(p, 200, 201)
    p(f"v_add_f32 v200, {hexf(1e-5)}, v200")
    bf16_round(p, 200, 201)
    p("v_sqrt_f32 v200, v200")
    bf16_round(p, 200, 201)
    p("v_rcp_f32 v200, v200")
    for k in range(32):
        p(f"v_mul_f32 v{F+k}, v{F+k}, v200")
    HB = 56
    for k in range(16):
        p(f"v_cvt_pk_bf16_f32 v{HB+k}, v{F+2*k}, v{F+2*k+1}")
    bcast_g3(p, F + 31, 202, 201)
    p(f"v_mul_f32 v202, {hexf(CH)}, v202")
    for k in range(32):
        p(f"v_add_f32 v{F+k}, v{F+k}, v202")
    p(f"""
    v_cmp_eq_u32 s[42:43], 3, v2
    v_mov_b32 v203, 1.0
    v_cndmask_b32 v{F+31}, v{F+31}, v203, s[42:43]
    """)
    HT = 72
    for k in range(16):
        p(f"v_cvt_pk_bf16_f32 v{HT+k}, v{F+2*k}, v{F+2*k+1}")
    p(f"""
    v_and_b32 v204, 1, v2
    v_mul_u32_u24 v204, 12, v204
    v_xor_b32 v204, v204, v3
    v_lshlrev_b32 v204, 4, v204
    v_lshl_add_u32 v204, v2, 8, v204
    s_add_u32 s44, s35, {KIMG_OFF}
    s_add_u32 s45, s35, {HROW_OFF}
    s_add_u32 s46, s35, {QIMG_OFF}
    """)
    for ks in range(4):
        p(f"buffer_store_dwordx4 v[{HT+4*ks}:{HT+4*ks+3}], v204, s[28:31], s44 offen offset:{1024*ks}")
    for ks in range(4):
        p(f"buffer_store_dwordx4 v[{HT+4*ks}:{HT+4*ks+3}], v4, s[28:31], s45 offen offset:{64*ks}")
    p(f"""
    v_bfe_u32 v205, v1, 2, 2
    v_and_b32 v206, 3, v1
    v_lshl_add_u32 v207, v2, 3, v205
    v_lshlrev_b32 v207, 8, v207
    v_lshl_add_u32 v207, v206, 4, v207
    v_lshl_add_u32 v208, v205, 6, v207
    v_xor_b32 v209, 64, v208
    v_xor_b32 v210, 128, v208
    v_xor_b32 v211, 192, v208
    """)
    p(f"""
    v_lshrrev_b32 v212, 2, v3
    v_lshlrev_b32 v212, 3, v212
    v_and_b32 v213, 3, v3
    v_add_u32 v212, v212, v213
    v_lshlrev_b32 v212, 8, v212
    v_xor_b32 v213, v2, v3
    v_lshl_add_u32 v212, v213, 4, v212
    v_add_u32 v212, 32768, v212
    v_xor_b32 v213, 64, v212
    v_xor_b32 v214, 128, v212
    v_xor_b32 v215, 192, v212
    """)
    p("""
    s_waitcnt vmcnt(8)
    s_barrier
    """)
    stamp(p, 2)
    QA = 88
    AF = 168

    def rd1(t):
        b = AF + 16 * (t & 1)
        for ks in range(4):
            for u in range(2):
                p(f"ds_read_b64_tr_b16 v[{b+4*ks+2*u}:{b+4*ks+2*u+1}], v{208+(t>>1)} offset:{8192*ks+1024*u+8*(t&1)}")
    rd1(0)
    for t in range(8):
        if t < 7:
            rd1(t + 1)
        b = AF + 16 * (t & 1)
        for ks in range(4):
            c = '0' if ks == 0 else f'v[{QA+4*t}:{QA+4*t+3}]'
            p(f"v_mfma_f32_16x16x32_bf16 v[{QA+4*t}:{QA+4*t+3}], v[{b+4*ks}:{b+4*ks+3}], v[{HB+4*ks}:{HB+4*ks+3}], {c}")
    UA = 136
    QF = 120

    def rd2(t):
        b = AF + 16 * (t & 1)
        for kk in range(4):
            p(f"ds_read_b128 v[{b+4*kk}:{b+4*kk+3}], v{212+kk} offset:{8192*(t>>1)+1024*(t&1)}")
    rd2(0)
    for k in range(16):
        p(f"v_cvt_pk_bf16_f32 v{QF+k}, v{QA+2*k}, v{QA+2*k+1}")
    for t in range(8):
        if t < 7:
            rd2(t + 1)
        b = AF + 16 * (t & 1)
        for kk in range(4):
            c = '0' if kk == 0 else f'v[{UA+4*t}:{UA+4*t+3}]'
            p(f"v_mfma_f32_16x16x32_bf16 v[{UA+4*t}:{UA+4*t+3}], v[{b+4*kk}:{b+4*kk+3}], v[{QF+4*kk}:{QF+4*kk+3}], {c}")
    for c in range(4):
        p(f"v_add_f32 v{200+c}, v{UA+c}, v{UA+4+c}")
    for k in range(2, 8):
        for c in range(4):
            p(f"v_add_f32 v{200+c}, v{200+c}, v{UA+4*k+c}")
    p("""
    v_add_f32 v200, v200, v201
    v_add_f32 v202, v202, v203
    v_add_f32 v200, v200, v202
    """)
    allreduce_g(p, 200, 201)
    bcast_g3(p, UA + 31, 202, 201)
    k1c = (1.0 + CH) / RT128 * QSCALE
    k2c = -CH / RT128 * QSCALE
    p(f"""
    v_mul_f32 v202, {hexf(k1c)}, v202
    v_mul_f32 v200, {hexf(k2c)}, v200
    v_add_f32 v200, v200, v202
    s_mov_b32 s47, {hexf(QSCALE)}
    """)
    for k in range(32):
        p(f"v_fma_f32 v{UA+k}, v{UA+k}, s47, v200")
    p(f"v_cndmask_b32 v{UA+31}, v{UA+31}, 0, s[42:43]")
    for k in range(16):
        p(f"v_cvt_pk_bf16_f32 v{QF+k}, v{UA+2*k}, v{UA+2*k+1}")
    p("v_lshlrev_b32 v204, 4, v1")
    for ks in range(4):
        p(f"buffer_store_dwordx4 v[{QF+4*ks}:{QF+4*ks+3}], v204, s[28:31], s46 offen offset:{1024*ks}")
    stamp(p, 3)
    if STAMPS:
        p("s_waitcnt vmcnt(0)")
    stamp(p, 4)
    stamp_flush(p, 0, 5)
    p("s_endpgm")


def k1_bin(p):
    NR = 7
    stamp(p, 0)
    STG = 4096
    TOT = 4096 + 7168 * 4
    p(f"""
    s_load_dwordx4 s[4:7], s[0:1], {A_SRC}
    s_load_dwordx2 s[12:13], s[0:1], {A_WS}
    v_lshlrev_b32 v1, 4, v0
    v_lshrrev_b32 v7, 6, v0
    v_mov_b32 v8, 0
    v_mov_b32 v9, 0
    v_mov_b32 v10, 0
    v_mov_b32 v11, 0
    v_readfirstlane_b32 s33, v7
    ds_write_b128 v1, v[8:11]
    s_mul_i32 s34, s2, {EPW*4}
    s_waitcnt lgkmcnt(0)
    """)
    srd(p, 16, 4, E * 4)
    srd(p, 20, 6, E * 4)
    srd(p, 28, 12, WS_SIZE)
    DS = 16
    SR = 44
    RK = 72
    BA = 100
    for r in range(NR):
        p(f"s_add_u32 s35, s34, {4096*r}")
        p(f"buffer_load_dwordx4 v[{DS+4*r}:{DS+4*r+3}], v1, s[20:23], s35 offen")
    for r in range(NR):
        p(f"s_add_u32 s35, s34, {4096*r}")
        p(f"buffer_load_dwordx4 v[{SR+4*r}:{SR+4*r+3}], v1, s[16:19], s35 offen")
    p("""
    s_barrier
    v_mov_b32 v2, 1
    v_lshlrev_b32 v3, 2, v0
    """)
    for r in range(NR):
        for k in range(4):
            e = 4 * r + k
            p(f"v_lshrrev_b32 v{BA+e}, 4, v{DS+e}")
            p(f"v_lshlrev_b32 v{BA+e}, 2, v{BA+e}")
            if r == NR - 1:
                p(f"""
                v_cmp_gt_u32 vcc, {EPW - 1024*(NR-1) - k}, v3
                v_mov_b32 v4, {783*4}
                v_cndmask_b32 v{BA+e}, v4, v{BA+e}, vcc
                """)
            p(f"v_min_u32 v{BA+e}, {783*4}, v{BA+e}")
            p(f"ds_add_rtn_u32 v{RK+e}, v{BA+e}, v2")
    stamp(p, 1)
    p("s_mov_b32 s43, 0x10000")
    for e in range(4 * NR):
        p(f"v_and_b32 v{DS+e}, 15, v{DS+e}")
        p(f"v_lshl_or_b32 v{DS+e}, s43, v{DS+e}, v{SR+e}")
    p(f"""
    s_waitcnt lgkmcnt(0)
    s_barrier
    ds_read_b128 v[8:11], v1
    v_add_u32 v13, v8, v9
    v_add_u32 v14, v13, v10
    v_add_u32 v15, v14, v11
    v_mov_b32 v5, v15
    v_add_u32_dpp v5, v5, v5 row_shr:1 row_mask:0xf bank_mask:0xf
    v_add_u32_dpp v5, v5, v5 row_shr:2 row_mask:0xf bank_mask:0xf
    v_add_u32_dpp v5, v5, v5 row_shr:4 row_mask:0xf bank_mask:0xf
    v_add_u32_dpp v5, v5, v5 row_shr:8 row_mask:0xf bank_mask:0xf
    v_add_u32_dpp v5, v5, v5 row_bcast:15 row_mask:0xa bank_mask:0xf
    v_add_u32_dpp v5, v5, v5 row_bcast:31 row_mask:0xc bank_mask:0xf
    v_readlane_b32 s36, v5, 63
    s_lshl_b32 s37, s33, 2
    s_add_u32 s37, s37, {TOT}
    v_mov_b32 v6, s37
    v_mov_b32 v4, s36
    ds_write_b32 v6, v4
    v_mov_b32 v6, {TOT}
    s_waitcnt lgkmcnt(0)
    s_barrier
    ds_read_b128 v[128:131], v6
    s_cmp_gt_u32 s33, 0
    s_cselect_b32 s38, -1, 0
    s_cmp_gt_u32 s33, 1
    s_cselect_b32 s39, -1, 0
    s_cmp_gt_u32 s33, 2
    s_cselect_b32 s40, -1, 0
    v_sub_u32 v5, v5, v15
    v_and_b32 v128, s38, v128
    v_and_b32 v129, s39, v129
    v_and_b32 v130, s40, v130
    v_add3_u32 v5, v5, v128, v129
    v_add_u32 v132, v5, v130
    v_add_u32 v133, v132, v8
    v_add_u32 v134, v132, v13
    v_add_u32 v135, v132, v14
    ds_write_b128 v1, v[132:135]
    s_lshl_b32 s41, s2, 12
    s_add_u32 s41, s41, {OFFT_OFF}
    buffer_store_dwordx4 v[132:135], v1, s[28:31], s41 offen
    s_waitcnt lgkmcnt(0)
    s_barrier
    """)
    stamp(p, 2)
    for e in range(4 * NR):
        p(f"ds_read_b32 v{BA+e}, v{BA+e}")
    for e in range(4 * NR):
        p(f"v_add_lshl_u32 v{BA+e}, v{BA+e}, v{RK+e}, 2")
        p(f"ds_write_b32 v{BA+e}, v{DS+e} offset:{STG}")
    p(f"""
    s_waitcnt lgkmcnt(0)
    s_barrier
    s_mul_i32 s42, s2, {ENT_STRIDE}
    s_add_u32 s42, s42, {ENT_OFF}
    """)
    for r in range(NR):
        p(f"ds_read_b128 v[{SR+4*r}:{SR+4*r+3}], v1 offset:{STG+4096*r}")
    for r in range(NR):
        p(f"s_add_u32 s35, s42, {4096*r}")
        p(f"buffer_store_dwordx4 v[{SR+4*r}:{SR+4*r+3}], v1, s[28:31], s35 offen")
    stamp(p, 3)
    if STAMPS:
        p("s_waitcnt vmcnt(0)")
    stamp(p, 4)
    stamp_flush(p, 0, 5)
    p("s_endpgm")


def gen_k1():
    h = Prog()
    h(f"""
    s_cmp_ge_u32 s2, {K1_NWG}
    s_cbranch_scc1 Lk1_exit
    s_cmp_ge_u32 s2, {G}
    s_cbranch_scc1 Lk1_ln
    """)
    a = Prog()
    k1_bin(a)
    b = Prog()
    k1_ln(b)
    body = emit(h.ins) + emit(a.finish()) + "Lk1_ln:\n" + emit(b.finish()) + "Lk1_exit:\n  s_endpgm\n"
    return body
```

```python
from common import *

K2_ATT = 245
K2_NWG = 249
NFULL = 39
LAG = 5
MARGIN = 32.0
RING = 65536
STG_OFF = 65536
LIST_OFF = 131072
LIST_CAP = 992
FLAG_OFF = 131072 + 4 * 4352
K2_LDS = FLAG_OFF + 64
LIST_STRIDE = 4352

V_LANE, V_G, V_I, V_L16 = 1, 2, 3, 4
V_KL, V_VL, V_KA, V_VA = 5, 6, 7, 8
V_T0, V_T1, V_T2, V_T3 = 9, 10, 11, 12
O_B = 16
S_B = 144
P_B = 160
NM_B = 192
NM1_B = 208
NINF_B = 224
G_B = 208
Q_A = 0
K_A = 64
V_A = 128
GA_A = 192
GF_A = 224


def O(j, dt): return O_B + (j * 8 + dt) * 4
def Sr(s): return S_B + 4 * s
def Pr(j, k2): return P_B + j * 8 + k2 * 4
def NM(j): return NM_B + 4 * j
def Qf(j, ks): return Q_A + (j * 4 + ks) * 4
def Kf(s, ks): return K_A + (s * 4 + ks) * 4
def Vf(dt, k2): return V_A + (dt * 2 + k2) * 4


def mf(d, a, b, c):
    return f"v_mfma_f32_16x16x32_bf16 {d}, {a}, {b}, {c}"


def kread(s, ks, areg=V_KA):
    return I(f"ds_read_b128 {vr(Kf(s,ks),4,'a')}, v{areg} offset:{4096*s+1024*ks}", 'kread')


def vread(dt, k2, u):
    return I(f"ds_read_b64_tr_b16 {vr(Vf(dt,k2)+2*u,2,'a')}, v{V_VA} offset:{4096*(2*k2+u)+512*dt}", 'vread')


def build_iter(variant):
    NG = 128
    mf_l = [None] * NG
    fixed = [[] for _ in range(NG)]
    units = [2] * NG
    for p in range(16):
        j, s = divmod(p, 4)
        for ks in range(4):
            if ks == 0:
                c = vr(NM(j), 4)
                if variant == 'tail':
                    c = [vr(NM(j), 4), vr(NM1_B + 4 * j, 4), vr(NINF_B, 4), vr(NINF_B, 4)][s]
            else:
                c = vr(Sr(s), 4)
            mf_l[8 * p + ks] = I(mf(vr(Sr(s), 4), vr(Kf(s, ks), 4, 'a'), vr(Qf(j, ks), 4, 'a'), c), 'qk')
        pp = (p - LAG) % 16
        jp, a = divmod(pp, 4)
        prev = p < LAG
        n = 0
        for dt in (2 * a, 2 * a + 1):
            for k2 in (0, 1):
                mf_l[8 * p + 4 + n] = I(mf(vr(O(jp, dt), 4), vr(Vf(dt, k2), 4, 'a'), vr(Pr(jp, k2), 4), vr(O(jp, dt), 4)),
                                        'pv_prev' if prev else 'pv')
                n += 1
        q = (p - 1) % 16
        jq, sq = divmod(q, 4)
        tg = 'sm_prev' if p == 0 else 'sm'
        for r in range(4):
            fixed[8 * p + 2 * r].append(I(f"v_exp_f32 v{Sr(sq)+r}, v{Sr(sq)+r}", tg))
            units[8 * p + 2 * r] -= 2
        pd = Pr(jq, sq >> 1) + 2 * (sq & 1)
        fixed[8 * p + 3].append(I(f"v_cvt_pk_bf16_f32 v{pd}, v{Sr(sq)}, v{Sr(sq)+1}", tg))
        units[8 * p + 3] -= 1
        fixed[8 * p + 7].append(I(f"v_cvt_pk_bf16_f32 v{pd+1}, v{Sr(sq)+2}, v{Sr(sq)+3}", tg))
        units[8 * p + 7] -= 1
    LATM = 9
    mov = []
    for a in range(4):
        n = 0
        for dt in (2 * a, 2 * a + 1):
            for k2 in (0, 1):
                last = 8 * ((12 + LAG + a) - 16) + 4 + n
                nxt = 8 * (LAG + a) + 4 + n
                for u in range(2):
                    mov.append((last, nxt - LATM, 1, vread(dt, k2, u)))
                n += 1
    BAR = 95
    for s in range(4):
        for ks in range(4):
            mov.append((max(8 * (12 + s) + ks, BAR + 1), 127, 1, kread(s, ks)))
    for i in range(4):
        mov.append((70 + 4 * i, 92, 2, I(f"buffer_load_dwordx4 v{V_L16}, s[28:31], s40 offen offset:{1024*i} lds", 'dma')))
    mov.append((1, 11, 1, I(f"v_add_u32 v{V_VA}, s43, v{V_VL}", 'va')))
    mov.append((66, 94, 1, I(f"v_add_u32 v{V_KA}, s42, v{V_KL}", 'ka')))
    placed = [[] for _ in range(NG)]
    pend = sorted(mov, key=lambda m: (m[1], m[0]))
    for g in range(NG):
        while units[g] > 0:
            cand = [m for m in pend if m[0] <= g and m[2] <= units[g]]
            if not cand:
                break
            m = cand[0]
            assert g <= m[1], ('deadline miss', g, m)
            pend.remove(m)
            placed[g].append(m[3])
            units[g] -= m[2]
    assert not pend, pend
    scal = [[] for _ in range(NG)]
    sops = [
        (56, 59, I("s_add_u32 s42, s42, 16384", 'ka')),
        (60, 64, I("s_and_b32 s42, s42, 0xffff", 'ka')),
        (65, 69, I("s_mov_b32 m0, s41", 'dma')),
        (92, 94, I("s_waitcnt vmcnt(8)", 'bar')),
        (BAR, BAR, I("s_barrier", 'bar')),
        (98, 101, I("s_add_u32 s40, s40, 16384", 'dma')),
        (102, 105, I("s_add_u32 s41, s41, 16384", 'dma')),
        (106, 109, I("s_and_b32 s41, s41, 0xffff", 'dma')),
        (110, 113, I("s_mov_b32 s43, s42", 'va')),
    ]
    if variant == 'mid':
        sops.append((116, 119, I("s_sub_u32 s44, s44, 1", 'loop')))
        sops.append((120, 126, I("s_cmp_lg_u32 s44, 0", 'loop')))
    for lo, hi, ins in sops:
        g = next((g for g in range(lo, hi + 1) if g not in WAITGAPS and not scal[g]), lo)
        scal[g].append(ins)
    gaps = []
    for g in range(NG):
        vec = [x for x in placed[g] if x.kind != 'valu'] + [x for x in placed[g] if x.kind == 'valu'] + fixed[g]
        gaps.append([mf_l[g], scal[g], vec])
    if variant == 'first':
        drop = ('pv_prev', 'sm_prev')
        keep = lambda i: i.tag not in drop
    elif variant == 'drain':
        keep = lambda i: i.tag in ('pv_prev', 'sm_prev')
    else:
        keep = lambda i: True
    out = []
    for m, sc, ve in gaps:
        out.append([m if keep(m) else None, [x for x in sc if keep(x)], [x for x in ve if keep(x)]])
    return out


WAITGAPS = set()


def place_waits(gaps, entry, nextm, AGE=7):
    issued = list(entry)
    done = 0
    flat = []
    n = len(gaps)
    wg = set()

    def need_for(instr):
        q = -1
        t = set(instr.rd) | set(instr.wr)
        for k in range(done, len(issued)):
            if issued[k][0] & t:
                q = k
        return q
    for g in range(n):
        m, sc, ve = gaps[g]
        if m is not None:
            assert need_for(m) < 0, ('late ds', g, m)
            flat.append(m)
        nx = gaps[g + 1][0] if g + 1 < n else nextm
        if nx is not None:
            q = need_for(nx)
            if q >= 0:
                for k in range(q, len(issued)):
                    if issued[k][1] <= g - AGE:
                        q = k
                N = min(15, len(issued) - 1 - q)
                flat.append(I(f"s_waitcnt lgkmcnt({N})", 'w'))
                wg.add(g)
                done = len(issued) - N
        flat.extend(sc)
        for x in ve:
            if x.kind == 'ds':
                issued.append((set(x.wr), g))
            flat.append(x)
    return flat, [(r, g - n) for r, g in issued[done:]], wg


def iter_code(variant, entry, pre):
    gaps = build_iter(variant)
    nextm = None if variant == 'drain' else build_iter('mid')[0][0]
    flat, ex, wg = place_waits(gaps, entry, nextm)
    fixed, problems = pad_hazards(flat, fix=True, pre=pre)
    return fixed, problems, ex, wg


def gen_loop_variants():
    WAITGAPS.clear()
    _, _, ex, _ = iter_code('first', [], [])
    _, _, ex2, wg = iter_code('mid', ex, [])
    assert ex == ex2
    WAITGAPS.update(wg)
    first, _, ex1, _ = iter_code('first', [], [])
    mid0, _, _, _ = iter_code('mid', ex, first[-30:])
    mid, prob, _, _ = iter_code('mid', ex, mid0[-30:])
    assert not prob, prob
    assert [x.text for x in mid0] == [x.text for x in mid]
    tail, _, ex3, _ = iter_code('tail', ex, mid[-30:])
    assert ex3 == ex and ex1 == ex
    drain, _, _, _ = iter_code('drain', ex, mid[-30:])
    return first, mid, tail, drain


def k2_setup(p):
    stamp(p, 0)
    p(f"""
    s_load_dwordx2 s[12:13], s[0:1], {A_WS}
    s_load_dwordx2 s[14:15], s[0:1], {A_DEG}
    v_and_b32 v{V_LANE}, 63, v0
    v_lshrrev_b32 v{V_T0}, 6, v0
    v_lshrrev_b32 v{V_G}, 4, v{V_LANE}
    v_and_b32 v{V_I}, 15, v{V_LANE}
    v_readfirstlane_b32 s33, v{V_T0}
    v_lshlrev_b32 v{V_L16}, 4, v{V_LANE}
    s_and_b32 s3, s2, 7
    s_lshr_b32 s4, s2, 3
    s_mul_i32 s5, s3, 31
    s_add_u32 s5, s5, s4
    s_max_u32 s3, s3, 5
    s_sub_u32 s3, s3, 5
    s_sub_u32 s5, s5, s3
    s_mul_i32 s34, s5, 1338
    s_lshr_b32 s34, s34, 16
    s_mul_i32 s3, s34, 49
    s_sub_u32 s35, s5, s3
    s_lshl_b32 s36, s5, 2
    s_add_u32 s36, s36, s33
    s_lshl_b32 s37, s35, 4
    s_lshl_b32 s3, s33, 2
    s_add_u32 s37, s37, s3
    s_mov_b32 s45, 0
    s_waitcnt lgkmcnt(0)
    """)
    srd(p, 28, 12, WS_SIZE)
    srd(p, 24, 14, N * 2)
    p(f"""
    v_and_b32 v{V_T0}, 1, v{V_G}
    v_mul_u32_u24 v{V_T0}, 12, v{V_T0}
    v_xor_b32 v{V_T0}, v{V_T0}, v{V_I}
    v_lshlrev_b32 v{V_T0}, 4, v{V_T0}
    v_lshl_add_u32 v{V_KL}, v{V_G}, 8, v{V_T0}
    v_lshrrev_b32 v{V_T0}, 2, v{V_LANE}
    v_bfe_u32 v{V_T1}, v{V_LANE}, 1, 1
    v_mul_u32_u24 v{V_T2}, 12, v{V_T1}
    v_xor_b32 v{V_T0}, v{V_T0}, v{V_T2}
    v_lshlrev_b32 v{V_T0}, 4, v{V_T0}
    v_lshl_add_u32 v{V_T0}, v{V_T1}, 8, v{V_T0}
    v_and_b32 v{V_T1}, 1, v{V_LANE}
    v_lshl_add_u32 v{V_VL}, v{V_T1}, 3, v{V_T0}
    """)
    p(f"""
    s_lshl_b32 s38, s37, 12
    s_add_u32 s38, s38, {QIMG_OFF}
    """)
    for j in range(4):
        for ks in range(4):
            p(f"buffer_load_dwordx4 {vr(Qf(j,ks),4,'a')}, v{V_L16}, s[28:31], s38 offen offset:{1024*ks}")
        if j < 3:
            p("s_add_u32 s38, s38, 4096")


def dma_start(p, ntiles):
    p(f"""
    s_mul_i32 s39, s34, {NFULL*16384}
    s_lshl_b32 s3, s33, 12
    s_add_u32 s39, s39, s3
    s_add_u32 s39, s39, {KIMG_OFF}
    s_mov_b32 s40, s39
    s_mov_b32 s41, s3
    """)
    for t in range(ntiles):
        p("s_mov_b32 m0, s41")
        p("s_nop 0")
        for i in range(4):
            p(f"buffer_load_dwordx4 v{V_L16}, s[28:31], s40 offen offset:{1024*i} lds")
        p("s_add_u32 s40, s40, 16384")
        p("s_add_u32 s41, s41, 16384")


def k2_maxpass(p):
    MX = P_B
    CI = NM1_B
    p(f"""
    s_waitcnt vmcnt(0) lgkmcnt(0)
    s_barrier
    s_mov_b32 s40, s39
    s_lshl_b32 s41, s33, 12
    s_mov_b32 s46, 0
    s_cmp_eq_u32 s34, 4
    s_cselect_b32 s47, {NFULL+1}, {NFULL}
    s_mov_b32 s48, 0xff800000
    v_mov_b32 v{V_KA}, v{V_KL}
    """)
    for j in range(4):
        p(f"v_mov_b32 v{MX+j}, s48")
    for k in range(16):
        p(f"v_mov_b32 v{CI+k}, 0")
    p(f"""
    Lk2_mx_loop:
    s_mov_b32 m0, s41
    s_nop 0
    """)
    for i in range(4):
        p(f"buffer_load_dwordx4 v{V_L16}, s[28:31], s40 offen offset:{1024*i} lds")
    p(f"""
    s_add_u32 s40, s40, 16384
    s_cmp_lg_u32 s46, {NFULL}
    s_cbranch_scc1 Lk2_mx_nomask
    v_cmp_eq_u32 vcc, 0, v{V_G}
    v_mov_b32 v{V_T0}, s48
    s_nop 1
    """)
    for k in range(4):
        p(f"v_cndmask_b32 v{CI+4+k}, v{V_T0}, v{CI+4+k}, vcc")
    for k in range(8, 16):
        p(f"v_mov_b32 v{CI+k}, s48")
    p(f"""
    Lk2_mx_nomask:
    s_waitcnt vmcnt(0)
    s_barrier
    """)
    for s in range(4):
        for ks in range(4):
            p.extend([kread(s, ks)])
    p("s_waitcnt lgkmcnt(0)")
    p("s_barrier")
    for j in range(4):
        for s in range(4):
            d = vr(O_B + (j * 4 + s) * 4, 4)
            for ks in range(4):
                p(mf(d, vr(Kf(s, ks), 4, 'a'), vr(Qf(j, ks), 4, 'a'), vr(CI + 4 * s, 4) if ks == 0 else d))
    for j in range(4):
        for k in range(0, 16, 2):
            b = O_B + j * 16 + k
            p(f"v_max3_f32 v{MX+j}, v{MX+j}, v{b}, v{b+1}")
    p(f"""
    s_add_u32 s46, s46, 1
    s_cmp_lt_u32 s46, s47
    s_nop 7
    s_cbranch_scc1 Lk2_mx_loop
    """)
    for j in range(4):
        allreduce_g(p, MX + j, V_T0, 'v_max_f32')
        for r in range(4):
            p(f"v_sub_f32 v{NM(j)+r}, 0, v{MX+j}")


def k2_prologue(p):
    p("Lk2_run:")
    dma_start(p, 3)
    for r in range(128):
        p(f"v_mov_b32 v{O_B+r}, 0")
    p(f"""
    v_mov_b32 v{V_KA}, v{V_KL}
    s_mov_b32 s42, 0
    s_mov_b32 s43, 0
    s_mov_b32 s44, {NFULL-1}
    s_waitcnt vmcnt(8)
    s_barrier
    """)
    stamp(p, 1)
    for s in range(4):
        for ks in range(4):
            p.extend([kread(s, ks)])
    p(f"""
    s_cmp_lg_u32 s45, 0
    s_cbranch_scc1 Lk2_have_m
    s_waitcnt lgkmcnt(12)
    """)
    for j in range(4):
        d = vr(P_B + 4 * j, 4)
        for ks in range(4):
            p(mf(d, vr(Kf(0, ks), 4, 'a'), vr(Qf(j, ks), 4, 'a'), '0' if ks == 0 else d))
    for j in range(4):
        b = P_B + 4 * j
        p(f"v_max3_f32 v{b}, v{b}, v{b+1}, v{b+2}")
        p(f"v_max_f32 v{b}, v{b}, v{b+3}")
    for j in range(4):
        allreduce_g(p, P_B + 4 * j, P_B + 4 * j + 1, 'v_max_f32')
    for j in range(4):
        for r in range(4):
            p(f"v_sub_f32 v{NM(j)+r}, {hexf(-MARGIN)}, v{P_B+4*j}")
    p(f"""
    Lk2_have_m:
    s_waitcnt lgkmcnt(0)
    s_nop 1
    """)
    stamp(p, 2)


def k2_tail_setup(p):
    p(f"""
    s_mov_b32 s48, 0xff800000
    v_cmp_eq_u32 vcc, 0, v{V_G}
    v_mov_b32 v{NINF_B}, s48
    v_mov_b32 v{NINF_B+1}, s48
    v_mov_b32 v{NINF_B+2}, s48
    v_mov_b32 v{NINF_B+3}, s48
    """)
    for k in range(16):
        p(f"v_cndmask_b32 v{NM1_B+k}, v{NINF_B}, v{NM_B+k}, vcc")
    p("s_nop 1")


def k2_epilogue(p):
    stamp(p, 3)
    p(f"""
    s_mul_i32 s46, s34, {PART_STRIDE}
    s_lshl_b32 s47, s37, 12
    s_add_u32 s46, s46, s47
    s_add_u32 s46, s46, {PART_OFF}
    s_mul_i32 s47, s34, {STAT_STRIDE}
    s_lshl_b32 s48, s37, 7
    s_add_u32 s47, s47, s48
    s_add_u32 s47, s47, {STAT_OFF}
    v_lshlrev_b32 v{V_T0}, 3, v{V_I}
    s_mov_b32 s48, {hexf(2.0**100)}
    v_cmp_eq_u32 s[50:51], 3, v{V_G}
    s_mov_b64 s[52:53], 0
    """)
    for j in range(4):
        b = P_B + 2 * j
        p(f"""
        v_sub_f32 v{b}, 0, v{NM(j)}
        v_mov_b32 v{b+1}, v{O(j,7)+3}
        v_cmp_nlt_f32 vcc, v{O(j,7)+3}, s48
        s_or_b64 s[52:53], s[52:53], vcc
        """)
        for kk in range(4):
            d = S_B + 4 * kk
            for h in range(2):
                o = O(j, 2 * kk + h)
                p(f"v_cvt_pk_bf16_f32 v{d+2*h}, v{o}, v{o+1}")
                p(f"v_cvt_pk_bf16_f32 v{d+2*h+1}, v{o+2}, v{o+3}")
            p(f"buffer_store_dwordx4 {vr(d,4)}, v{V_L16}, s[28:31], s46 offen offset:{1024*kk}")
        if j < 3:
            p("s_add_u32 s46, s46, 4096")
    p("s_mov_b64 exec, s[50:51]")
    for j in range(4):
        b = P_B + 2 * j
        p(f"buffer_store_dwordx2 {vr(b,2)}, v{V_T0}, s[28:31], s47 offen offset:{128*j}")
    p(f"""
    s_mov_b64 exec, -1
    s_and_b64 s[52:53], s[52:53], s[50:51]
    s_cselect_b32 s46, 1, 0
    s_lshl_b32 s47, s33, 2
    s_add_u32 s47, s47, {FLAG_OFF}
    v_mov_b32 v{V_T0}, s47
    v_mov_b32 v{V_T1}, s46
    v_mov_b32 v{V_T2}, {FLAG_OFF}
    ds_write_b32 v{V_T0}, v{V_T1}
    s_waitcnt lgkmcnt(0)
    s_barrier
    ds_read_b128 v[{S_B}:{S_B+3}], v{V_T2}
    v_or_b32 v{S_B}, v{S_B}, v{S_B+1}
    v_or3_b32 v{S_B}, v{S_B}, v{S_B+2}, v{S_B+3}
    v_readfirstlane_b32 s46, v{S_B}
    s_nop 1
    s_andn2_b32 s46, s46, s45
    s_cmp_eq_u32 s46, 0
    s_cbranch_scc1 Lk2_gather
    s_mov_b32 s45, 1
    """)


def k2_gather(p):
    E0 = G_B
    LO = G_B + 8
    TA = G_B + 12
    OH = G_B + 20
    AD = G_B + 28
    ROT = G_B + 30
    LA = G_B + 31
    ST, CN, PS = G_B + 32, G_B + 33, G_B + 34
    t0, t1, t2 = V_T0, V_T1, V_T2
    p(f"""
    Lk2_gather:
    """)
    stamp(p, 4)
    p("s_waitcnt vmcnt(0) lgkmcnt(0)")
    stamp(p, 5)
    if STAMPS:
        p("s_mov_b32 s86, s85")
    p(f"""
    s_cmp_ge_u32 s36, {NBIN}
    s_cbranch_scc1 {'Lk2_g_fin' if STAMPS else 'Lk2_exit'}
    s_lshl_b32 s46, s36, 2
    s_add_u32 s46, s46, {OFFT_OFF}
    v_lshlrev_b32 v{t0}, 12, v{V_LANE}
    buffer_load_dwordx2 v[{ST}:{ST+1}], v{t0}, s[28:31], s46 offen
    s_lshl_b32 s46, s36, 5
    v_lshlrev_b32 v{t0}, 1, v{V_I}
    buffer_load_ushort v{G_B+35}, v{t0}, s[24:27], s46 offen
    s_mul_i32 s49, s33, {LIST_STRIDE}
    s_add_u32 s49, s49, {LIST_OFF}
    s_lshl_b32 s54, s33, 14
    s_add_u32 s54, s54, {STG_OFF}
    s_mov_b32 s55, 256
    s_mov_b32 s56, {HROW_OFF - 3072}
    s_mov_b32 s57, 0x40004000
    s_mov_b32 s58, 0x07060302
    """)
    p(f"""
    v_and_b32 v{t0}, 1, v{V_G}
    v_lshlrev_b32 v{t0}, 3, v{t0}
    v_xor_b32 v{t1}, v{t0}, v{V_I}
    v_lshlrev_b32 v{t1}, 4, v{t1}
    """)
    for k in range(4):
        p(f"v_xor_b32 v{LO+k}, {32*k}, v{t1}")
        p(f"v_add_u32 v{LO+k}, {3072-1024*k}, v{LO+k}")
    p(f"""
    v_bfe_u32 v{t1}, v{V_LANE}, 2, 2
    v_lshl_add_u32 v{t2}, v{t1}, 2, v{V_G}
    v_lshlrev_b32 v{t2}, 8, v{t2}
    v_lshlrev_b32 v{t1}, 1, v{t1}
    v_xor_b32 v{t0}, v{t0}, v{t1}
    v_bfe_u32 v{t1}, v{V_LANE}, 1, 1
    v_xor_b32 v{t0}, v{t0}, v{t1}
    v_lshl_add_u32 v{t2}, v{t0}, 4, v{t2}
    v_and_b32 v{t1}, 1, v{V_LANE}
    v_lshl_add_u32 v{t2}, v{t1}, 3, v{t2}
    v_add_u32 v{t2}, s54, v{t2}
    """)
    for dt in range(8):
        p(f"v_xor_b32 v{TA+dt}, {32*dt}, v{t2}")
    p(f"""
    v_add_u32 v{ROT}, 18, v{V_I}
    v_lshlrev_b32 v{LA}, 5, v{V_G}
    v_add_u32 v{LA}, s49, v{LA}
    """)
    for r in range(32):
        p(f"v_accvgpr_write_b32 a{GA_A+r}, 0")
    p(f"""
    v_sub_u32 v{CN}, v{ST+1}, v{ST}
    v_min_u32 v{CN}, {EPW}, v{CN}
    v_mov_b32 v{PS}, v{CN}
    v_add_u32_dpp v{PS}, v{PS}, v{PS} row_shr:1 row_mask:0xf bank_mask:0xf
    v_add_u32_dpp v{PS}, v{PS}, v{PS} row_shr:2 row_mask:0xf bank_mask:0xf
    v_add_u32_dpp v{PS}, v{PS}, v{PS} row_shr:4 row_mask:0xf bank_mask:0xf
    v_add_u32_dpp v{PS}, v{PS}, v{PS} row_shr:8 row_mask:0xf bank_mask:0xf
    v_add_u32_dpp v{PS}, v{PS}, v{PS} row_bcast:15 row_mask:0xa bank_mask:0xf
    v_add_u32_dpp v{PS}, v{PS}, v{PS} row_bcast:31 row_mask:0xc bank_mask:0xf
    v_readlane_b32 s59, v{PS}, 63
    v_sub_u32 v{PS}, v{PS}, v{CN}
    v_mul_u32_u24 v{t0}, {ENT_STRIDE}, v{V_LANE}
    v_lshl_add_u32 v{ST}, v{ST}, 2, v{t0}
    s_mov_b32 s60, {ENT_OFF}
    v_cmp_lt_u32 vcc, 32, v{CN}
    s_mov_b32 s61, 0
    s_cmp_gt_u32 s59, {LIST_CAP}
    s_cbranch_scc1 Lk2_g_slow
    s_cbranch_vccnz Lk2_g_slow
    """)
    for q in range(8):
        p(f"buffer_load_dwordx4 v[{O_B+4*q}:{O_B+4*q+3}], v{ST}, s[28:31], s60 offen offset:{16*q}")
    p(f"""
    v_lshlrev_b32 v{PS}, 2, v{PS}
    v_add_u32 v{PS}, s49, v{PS}
    v_cmp_lt_u32 vcc, 0, v{CN}
    s_mov_b64 exec, vcc
    """)
    for k in range(31, -1, -1):
        p(f"ds_write_b32 v{PS}, v{O_B+k} offset:{4*k}")
    p(f"""
    s_mov_b64 exec, -1
    s_lshl_b32 s46, s59, 2
    s_add_u32 s46, s46, s49
    v_lshlrev_b32 v{t0}, 2, v{V_LANE}
    v_add_u32 v{t0}, s46, v{t0}
    v_mov_b32 v{t1}, 0
    ds_write_b32 v{t0}, v{t1}
    s_add_u32 s62, s59, 31
    s_lshr_b32 s62, s62, 5
    s_mov_b32 s61, -1
    s_branch Lk2_g_proc
    """)
    p(f"""
    Lk2_g_slow:
    s_waitcnt vmcnt(0) lgkmcnt(0)
    v_cmp_lt_u32 vcc, s61, v{CN}
    s_cbranch_vccz Lk2_g_done
    v_mov_b32 v{t1}, 0
    s_lshl_b32 s46, s61, 2
    s_add_u32 s46, s46, s60
    s_mov_b64 exec, vcc
    buffer_load_dword v{t1}, v{ST}, s[28:31], s46 offen
    s_mov_b64 exec, -1
    v_lshlrev_b32 v{t0}, 2, v{V_LANE}
    v_add_u32 v{t0}, s49, v{t0}
    ds_write_b32 v{t0}, v{t1}
    s_add_u32 s61, s61, 1
    s_mov_b32 s62, 2
    """)
    def issue(buf):
        p(f"""
        ds_read_b128 v[{E0}:{E0+3}], v{t2}
        ds_read_b128 v[{E0+4}:{E0+7}], v{t2} offset:16
        v_add_u32 v{t2}, 128, v{t2}
        s_add_u32 s46, s54, {8192*buf}
        s_mov_b32 m0, s46
        """)
        for i in range(8):
            if i == 4:
                p(f"s_add_u32 s46, s54, {8192*buf+4096}")
                p("s_mov_b32 m0, s46")
            a = AD + (i & 1)
            p(f"v_mad_u32_u16 v{a}, v{E0+i}, s55, v{LO+(i&3)}")
            p(f"buffer_load_dwordx4 v{a}, s[28:31], s56 offen offset:{1024*(i&3)} lds")
        for k in range(4):
            o = OH + 4 * buf + k
            p(f"v_perm_b32 v{o}, v{E0+2*k+1}, v{E0+2*k}, s58")
            p(f"v_alignbit_b32 v{o}, v{o}, v{o}, v{ROT}")
            p(f"v_and_b32 v{o}, s57, v{o}")

    def consume(buf):
        for dt in range(8):
            for u in range(2):
                p(f"ds_read_b64_tr_b16 {vr(GF_A+4*dt+2*u,2,'a')}, v{TA+dt} offset:{8192*buf+4096*u}")
        for dt in range(8):
            d = vr(GA_A + 4 * dt, 4, 'a')
            p(mf(d, vr(GF_A + 4 * dt, 4, 'a'), vr(OH + 4 * buf, 4), d))
    p(f"""
    Lk2_g_proc:
    s_waitcnt vmcnt(0) lgkmcnt(0)
    """)
    stamp(p, 6)
    p(f"""
    v_mov_b32 v{t2}, v{LA}
    s_cmp_eq_u32 s62, 0
    s_cbranch_scc1 Lk2_g_procdone
    """)
    issue(0)
    p(f"""
    Lk2_g_loop:
    s_cmp_le_u32 s62, 1
    s_cbranch_scc1 Lk2_g_last0
    """)
    issue(1)
    p("s_waitcnt vmcnt(8)")
    consume(0)
    p(f"""
    s_cmp_le_u32 s62, 2
    s_cbranch_scc1 Lk2_g_last1
    """)
    issue(0)
    p("s_waitcnt vmcnt(8)")
    consume(1)
    p(f"""
    s_sub_u32 s62, s62, 2
    s_branch Lk2_g_loop
    Lk2_g_last0:
    s_waitcnt vmcnt(0) lgkmcnt(0)
    s_nop 1
    """)
    consume(0)
    p(f"""
    s_branch Lk2_g_procdone
    Lk2_g_last1:
    s_waitcnt vmcnt(0) lgkmcnt(0)
    s_nop 1
    """)
    consume(1)
    p(f"""
    Lk2_g_procdone:
    s_nop 7
    s_cmp_lg_u32 s61, -1
    s_cbranch_scc1 Lk2_g_slow
    Lk2_g_done:
    s_waitcnt vmcnt(0) lgkmcnt(0)
    s_nop 7
    v_lshlrev_b32 v{t0}, 16, v{G_B+35}
    v_mul_f32 v{t0}, 0.5, v{t0}
    s_lshl_b32 s46, s36, 12
    s_add_u32 s46, s46, {AGG_OFF}
    """)
    for r in range(32):
        p(f"v_accvgpr_read_b32 v{O_B+r}, a{GA_A+r}")
    for r in range(32):
        p(f"v_mul_f32 v{O_B+r}, v{O_B+r}, v{t0}")
    for k in range(16):
        p(f"v_cvt_pk_bf16_f32 v{O_B+32+k}, v{O_B+2*k}, v{O_B+2*k+1}")
    for kk in range(4):
        p(f"buffer_store_dwordx4 v[{O_B+32+4*kk}:{O_B+35+4*kk}], v{V_L16}, s[28:31], s46 offen offset:{1024*kk}")
    if STAMPS:
        p("Lk2_g_fin:")
    stamp(p, 7)
    if STAMPS:
        p("s_waitcnt vmcnt(0)")
    stamp(p, 8)
    stamp_flush(p, 1, 9)
    p("s_endpgm")


def k2_wprep(p):
    p(f"""
    s_load_dwordx2 s[4:5], s[0:1], {A_WMSG}
    s_load_dwordx2 s[6:7], s[0:1], {A_WV}
    s_load_dwordx2 s[8:9], s[0:1], {A_WOUT}
    s_load_dwordx2 s[12:13], s[0:1], {A_WS}
    v_and_b32 v1, 63, v0
    v_lshrrev_b32 v7, 6, v0
    v_lshrrev_b32 v2, 4, v1
    v_and_b32 v3, 15, v1
    v_readfirstlane_b32 s33, v7
    s_sub_u32 s34, s2, {K2_ATT}
    s_lshl_b32 s34, s34, 2
    s_add_u32 s34, s34, s33
    s_and_b32 s35, s34, 7
    s_waitcnt lgkmcnt(0)
    s_cmp_ge_u32 s34, 8
    s_cselect_b32 s4, s6, s4
    s_cselect_b32 s5, s7, s5
    """)
    srd(p, 16, 4, 32768)
    srd(p, 20, 8, 32768)
    srd(p, 28, 12, WS_SIZE)
    AFR = 16
    BFR = 144
    AC = 160
    p(f"""
    v_lshlrev_b32 v4, 8, v3
    v_lshl_add_u32 v4, v2, 4, v4
    s_mov_b32 s36, 0
    """)
    for t in range(8):
        for kk in range(4):
            b = AFR + (t * 4 + kk) * 4
            p(f"buffer_load_dwordx4 v[{b}:{b+3}], v4, s[16:19], s36 offen offset:{64*kk}")
        p("s_add_u32 s36, s36, 4096")
    p(f"""
    v_lshrrev_b32 v5, 2, v3
    v_lshlrev_b32 v5, 3, v5
    v_and_b32 v6, 3, v3
    v_add_u32 v5, v5, v6
    v_lshlrev_b32 v5, 1, v5
    v_lshl_add_u32 v5, v2, 11, v5
    s_lshr_b32 s36, s35, 1
    s_lshl_b32 s36, s36, 6
    s_and_b32 s37, s35, 1
    s_lshl_b32 s37, s37, 3
    s_add_u32 s36, s36, s37
    """)
    for kk in range(4):
        p(f"s_add_u32 s37, s36, {8192*kk}")
        for x in range(8):
            p(f"buffer_load_ushort v{AC+8*kk+x}, v5, s[20:23], s37 offen offset:{256*x}")
    for k in range(16):
        p(f"v_lshl_or_b32 v{BFR+k}, v{AC+2*k+1}, 16, v{AC+2*k}")
    for t in range(8):
        d = vr(AC + 4 * t, 4)
        for kk in range(4):
            b = AFR + (t * 4 + kk) * 4
            p(mf(d, vr(b, 4), vr(BFR + 4 * kk, 4), '0' if kk == 0 else d))
    for c in range(4):
        p(f"v_add_f32 v{200+c}, v{AC+c}, v{AC+4+c}")
    for k in range(2, 8):
        for c in range(4):
            p(f"v_add_f32 v{200+c}, v{200+c}, v{AC+4*k+c}")
    p("""
    v_add_f32 v200, v200, v201
    v_add_f32 v202, v202, v203
    v_add_f32 v200, v200, v202
    """)
    allreduce_g(p, 200, 201)
    bcast_g3(p, AC + 31, 202, 201)
    p(f"""
    v_mul_f32 v202, {hexf((1.0+CH)/RT128)}, v202
    v_mul_f32 v200, {hexf(-CH/RT128)}, v200
    v_add_f32 v200, v200, v202
    v_cmp_eq_u32 s[42:43], 3, v2
    """)
    for k in range(32):
        p(f"v_add_f32 v{AC+k}, v{AC+k}, v200")
    p(f"v_cndmask_b32 v{AC+31}, v{AC+31}, 0, s[42:43]")
    for k in range(16):
        p(f"v_cvt_pk_bf16_f32 v{16+k}, v{AC+2*k}, v{AC+2*k+1}")
    p(f"""
    v_lshlrev_b32 v4, 4, v1
    s_lshl_b32 s36, s34, 12
    s_add_u32 s36, s36, {WIMG_OFF}
    """)
    for kk in range(4):
        p(f"buffer_store_dwordx4 v[{16+4*kk}:{19+4*kk}], v4, s[28:31], s36 offen offset:{1024*kk}")
    p("s_endpgm")


def gen_k2():
    first, mid, tail, drain = gen_loop_variants()
    s = f"""  s_cmp_ge_u32 s2, {K2_NWG}
  s_cbranch_scc1 Lk2_exit
  s_cmp_ge_u32 s2, {K2_ATT}
  s_cbranch_scc1 Lk2_wprep
"""
    a = Prog()
    k2_setup(a)
    k2_prologue(a)
    s += emit(a.finish())
    s += emit(first)
    s += ".p2align 6\nLk2_loop:\n" + emit(mid) + "  s_cbranch_scc1 Lk2_loop\n"
    s += "  s_cmp_lg_u32 s34, 4\n  s_cbranch_scc1 Lk2_drain\n"
    b = Prog()
    k2_tail_setup(b)
    s += emit(b.finish()) + emit(tail)
    s += "Lk2_drain:\n" + emit(drain) + "  s_nop 7\n  s_waitcnt lgkmcnt(0)\n"
    c = Prog()
    k2_epilogue(c)
    k2_maxpass(c)
    c("s_branch Lk2_run")
    s += emit(c.finish())
    d = Prog()
    k2_gather(d)
    s += emit(d.finish())
    e = Prog()
    k2_wprep(e)
    s += "Lk2_wprep:\n" + emit(e.finish())
    s += "Lk2_exit:\n  s_endpgm\n"
    return s


if __name__ == '__main__':
    first, mid, tail, drain = gen_loop_variants()
    print(emit(mid))
```

```python
from common import *

K3_NWG = 196
K3_LDS = 65536
K3_NREC = K3_NWG * 4


def mf(d, a, b, c):
    return f"v_mfma_f32_16x16x32_bf16 {d}, {a}, {b}, {c}"


def gen_k3():
    p = Prog()
    stamp(p, 0)
    p(f"""
    s_load_dwordx2 s[4:5], s[0:1], {A_X}
    s_load_dwordx2 s[6:7], s[0:1], {A_OUT}
    s_load_dwordx2 s[12:13], s[0:1], {A_WS}
    v_and_b32 v1, 63, v0
    v_lshrrev_b32 v7, 6, v0
    v_lshrrev_b32 v2, 4, v1
    v_and_b32 v3, 15, v1
    v_readfirstlane_b32 s33, v7
    v_lshlrev_b32 v5, 4, v1
    v_lshlrev_b32 v4, 8, v3
    v_lshl_add_u32 v4, v2, 4, v4
    v_lshlrev_b32 v6, 3, v3
    s_lshl_b32 s34, s2, 2
    s_add_u32 s34, s34, s33
    s_lshl_b32 s35, s34, 12
    s_waitcnt lgkmcnt(0)
    """)
    srd(p, 16, 4, N * 256)
    srd(p, 20, 6, N * 256)
    srd(p, 28, 12, WS_SIZE)
    ST = 8
    PT = 20
    AG = 100
    XR = 116
    OA = 132
    OF = 164
    YA = 180
    WF = 212
    p(f"""
    s_lshl_b32 s36, s34, 7
    s_add_u32 s36, s36, {STAT_OFF}
    """)
    for s in range(5):
        p(f"buffer_load_dwordx2 v[{ST+2*s}:{ST+2*s+1}], v6, s[28:31], s36 offen")
        if s < 4:
            p(f"s_add_u32 s36, s36, {STAT_STRIDE}")
    p(f"s_add_u32 s37, s35, {PART_OFF}")
    for s in range(5):
        for kk in range(4):
            b = PT + 16 * s + 4 * kk
            p(f"buffer_load_dwordx4 v[{b}:{b+3}], v5, s[28:31], s37 offen offset:{1024*kk}")
        if s < 4:
            p(f"s_add_u32 s37, s37, {PART_STRIDE}")
    p(f"""
    s_lshl_b32 s38, s33, 14
    s_add_u32 s39, s38, {WIMG_OFF}
    """)
    for a in range(4):
        p("s_mov_b32 m0, s38")
        p("s_nop 0")
        for i in range(4):
            p(f"buffer_load_dwordx4 v5, s[28:31], s39 offen offset:{1024*i} lds")
        if a < 3:
            p("s_add_u32 s38, s38, 4096")
            p("s_add_u32 s39, s39, 4096")
    p(f"s_add_u32 s40, s35, {AGG_OFF}")
    for kk in range(4):
        p(f"buffer_load_dwordx4 v[{AG+4*kk}:{AG+4*kk+3}], v5, s[28:31], s40 offen offset:{1024*kk}")
    for kk in range(4):
        p(f"buffer_load_dwordx4 v[{XR+4*kk}:{XR+4*kk+3}], v4, s[16:19], s35 offen offset:{64*kk}")
    if STAMPS:
        p("s_waitcnt vmcnt(24)")
        stamp(p, 1)
    L = 244
    for s in range(5):
        p(f"v_log_f32 v{L+s}, v{ST+2*s+1}")
    for s in range(5):
        p(f"v_add_f32 v{L+s}, v{L+s}, v{ST+2*s}")
    p(f"""
    v_max3_f32 v249, v{L}, v{L+1}, v{L+2}
    v_max3_f32 v249, v249, v{L+3}, v{L+4}
    """)
    for s in range(5):
        p(f"v_sub_f32 v{L+s}, v{L+s}, v249")
    for s in range(5):
        p(f"v_exp_f32 v{L+s}, v{L+s}")
    for s in range(5):
        p(f"v_rcp_f32 v{ST+2*s}, v{ST+2*s+1}")
    p(f"""
    v_add_f32 v249, v{L}, v{L+1}
    v_add_f32 v250, v{L+2}, v{L+3}
    v_add_f32 v249, v249, v{L+4}
    v_add_f32 v249, v249, v250
    v_rcp_f32 v249, v249
    """)
    for s in range(5):
        p(f"v_mul_f32 v{L+s}, v{L+s}, v249")
    for s in range(5):
        p(f"v_mul_f32 v{L+s}, v{L+s}, v{ST+2*s}")
    for s in range(5):
        for k in range(16):
            r = PT + 16 * s + k
            t = 250 + 2 * (k & 1)
            p(f"v_lshlrev_b32 v{t}, 16, v{r}")
            p(f"v_and_b32 v{t+1}, 0xffff0000, v{r}")
            if s == 0:
                p(f"v_mul_f32 v{OA+2*k}, v{t}, v{L}")
                p(f"v_mul_f32 v{OA+2*k+1}, v{t+1}, v{L}")
            else:
                p(f"v_fmac_f32 v{OA+2*k}, v{t}, v{L+s}")
                p(f"v_fmac_f32 v{OA+2*k+1}, v{t+1}, v{L+s}")
    for k in range(16):
        p(f"v_cvt_pk_bf16_f32 v{OF+k}, v{OA+2*k}, v{OA+2*k+1}")
    p("""
    s_waitcnt vmcnt(8)
    s_barrier
    """)
    stamp(p, 2)
    steps = [(ft, m) for ft in range(8) for m in range(2)]

    def rd(n):
        ft, m = steps[n]
        b = WF + 16 * (n & 1)
        for kk in range(4):
            p(f"ds_read_b128 v[{b+4*kk}:{b+4*kk+3}], v5 offset:{32768*m+4096*ft+1024*kk}")
    rd(0)
    for n, (ft, m) in enumerate(steps):
        if n + 1 < len(steps):
            rd(n + 1)
        b = WF + 16 * (n & 1)
        d = vr(YA + 4 * ft, 4)
        B = AG if m == 0 else OF
        for kk in range(4):
            p(mf(d, vr(b + 4 * kk, 4), vr(B + 4 * kk, 4), '0' if (m == 0 and kk == 0) else d))
    for k in range(16):
        t = 250 + 2 * (k & 1)
        p(f"v_lshlrev_b32 v{t}, 16, v{XR+k}")
        p(f"v_and_b32 v{t+1}, 0xffff0000, v{XR+k}")
        p(f"v_add_f32 v{t}, v{t}, v{YA+2*k}")
        p(f"v_add_f32 v{t+1}, v{t+1}, v{YA+2*k+1}")
        p(f"v_cvt_pk_bf16_f32 v{PT+k}, v{t}, v{t+1}")
        if k % 4 == 3:
            kk = k // 4
            p(f"buffer_store_dwordx4 v[{PT+4*kk}:{PT+4*kk+3}], v4, s[20:23], s35 offen offset:{64*kk}")
    stamp(p, 3)
    if STAMPS:
        p("s_waitcnt vmcnt(0)")
    stamp(p, 4)
    stamp_flush(p, 2, 5)
    s = f"  s_cmp_ge_u32 s2, {K3_NWG}\n  s_cbranch_scc1 Lk3_exit\n" + emit(p.finish()) + "Lk3_exit:\n  s_endpgm\n"
    return s
```

```python
import sys
from common import *
import k1, k2, k3, diag

NAME = "gather_scatter__hybrid_graph_tf_graphgps__graph"


def main(out):
    ref = open(f"cdna_kernels/{NAME}.s.ref").read().split('\n')
    head = [l for l in ref if l.startswith(';') and '@launch' not in l and 'Override launch' not in l and 'grid=ceil' not in l]
    s = '\n'.join(head) + '\n'
    s += f"; @launch kernel=gps_prep_kernel grid=({k1.K1_NWG},1,1) block=(256,1,1) lds={k1.K1_LDS}\n"
    s += f"; @launch kernel=gps_attn_kernel grid=({k2.K2_NWG},1,1) block=(256,1,1) lds={k2.K2_LDS}\n"
    s += f"; @launch kernel=gps_out_kernel grid=({k3.K3_NWG},1,1) block=(256,1,1) lds={k3.K3_LDS}\n"
    DIAG = os.environ.get("STAMPS") == "2"
    if DIAG:
        s += "; @launch kernel=gps_diag_kernel grid=(1,1,1) block=(64,1,1) lds=0\n"
    s += '.amdgcn_target "amdgcn-amd-amdhsa--gfx950"\n.text\n'
    s += kernel_wrap("gps_prep_kernel", k1.gen_k1(), 0, 0)
    s += kernel_wrap("gps_attn_kernel", k2.gen_k2(), 0, 0)
    s += kernel_wrap("gps_out_kernel", k3.gen_k3(), 0, 0)
    if DIAG:
        n1, n2, n3 = k1.K1_NREC, k2.K2_ATT * 4, k3.K3_NREC
        specs = [(0, 0, 0, n1, 0), (0, 0, 0, n1, 1), (0, 1, 0, n1, 1), (0, 4, 0, n1, 1),
                 (1, 0, 0, n2, 0), (1, 0, 0, n2, 1), (1, 1, 0, n2, 1), (1, 2, 0, n2, 1), (1, 3, 0, n2, 0), (1, 3, 0, n2, 1),
                 (1, 5, 0, n2, 1), (1, 8, 0, n2, 1),
                 (2, 0, 0, n3, 0), (2, 1, 0, n3, 1), (2, 2, 0, n3, 1), (2, 4, 0, n3, 1)]
        s += kernel_wrap("gps_diag_kernel", diag.gen_diag(specs, 0, int(os.environ.get('SPIN', '-1'))), 0, 0)
    s += '.section .rodata,"a"\n'
    if DIAG:
        s += kernel_desc("gps_diag_kernel", 64, 64)
    s += kernel_desc("gps_prep_kernel", 216, 216)
    s += kernel_desc("gps_attn_kernel", 512, 256)
    s += kernel_desc("gps_out_kernel", 256, 256)
    fl = os.environ.get("STFLAG", "sc1")
    if fl != "none":
        s = '\n'.join((l + ' ' + fl) if l.strip().startswith('buffer_store') else l for l in s.split('\n'))
    open(out, 'w').write(s)


if __name__ == '__main__':
    main(sys.argv[1] if len(sys.argv) > 1 else f"cdna_kernels/{NAME}.s")
```

```python
import math
from asmlib import *

N = 12500
D = 128
E = 400000
NT16 = 784
NBIN = 782
G = 64
EPW = E // G
ENT_STRIDE = 9216 * 4
OFFT_STRIDE = 4096

KIMG_OFF = 0x0000000
QIMG_OFF = 0x0400000
HROW_OFF = 0x0800000
ENT_OFF = 0x0C00000
OFFT_OFF = 0x0F00000
PART_OFF = 0x1000000
PART_STRIDE = 0x400000
STAT_OFF = 0x3000000
STAT_STRIDE = 0x20000
AGG_OFF = 0x3400000
WIMG_OFF = 0x3800000
CNT_OFF = 0x3900000
WS_SIZE = 0x4000000

RT128 = math.sqrt(128.0)
CH = 1.0 / (RT128 - 1.0)
QSCALE = math.log2(math.e) / RT128

A_X, A_SRC, A_DST, A_DEG, A_WMSG, A_WQ, A_WK, A_WV, A_WOUT, A_OUT, A_DBG, A_WS = [8 * i for i in range(12)]


def srd(p, d, base, size):
    p(f"""
    s_mov_b32 s{d}, s{base}
    s_and_b32 s{d+1}, s{base+1}, 0xffff
    s_mov_b32 s{d+2}, {size}
    s_mov_b32 s{d+3}, 0x20000
    """)


def allreduce_g(p, v, t, op='v_add_f32'):
    p(f"""
    v_mov_b32 v{t}, v{v}
    v_permlane16_swap_b32 v{v}, v{t}
    {op} v{v}, v{v}, v{t}
    v_mov_b32 v{t}, v{v}
    v_permlane32_swap_b32 v{v}, v{t}
    {op} v{v}, v{v}, v{t}
    """)


def bcast_g3(p, src, dst, t):
    p(f"""
    v_mov_b32 v{t}, v{src}
    v_mov_b32 v{dst}, v{src}
    v_permlane32_swap_b32 v{t}, v{dst}
    v_mov_b32 v{t}, v{dst}
    v_permlane16_swap_b32 v{t}, v{dst}
    """)


def kernel_wrap(name, body, nvgpr, accum, nsgpr=102):
    s = f""".globl {name}
.p2align 8
.type {name},@function
{name}:
"""
    s += body
    return s


def kernel_desc(name, nvgpr, accum, nsgpr=102):
    return f""".p2align 6
.amdhsa_kernel {name}
  .amdhsa_next_free_vgpr {nvgpr}
  .amdhsa_next_free_sgpr {nsgpr}
  .amdhsa_accum_offset {accum}
  .amdhsa_group_segment_fixed_size 0
  .amdhsa_kernarg_size 96
  .amdhsa_user_sgpr_count 2
  .amdhsa_user_sgpr_kernarg_segment_ptr 1
  .amdhsa_system_sgpr_workgroup_id_x 1
.end_amdhsa_kernel
"""


import os
STAMPS = bool(os.environ.get("STAMPS"))
STAMP_OFF = 0x3C00000


def stamp(p, idx, cyc=False):
    if not STAMPS:
        return
    p(f"""
    {'s_memtime' if cyc else 's_memrealtime'} s[98:99]
    s_waitcnt lgkmcnt(0)
    s_mov_b32 s{80+idx}, s98
    """)


def stamp_flush(p, kern, n, wave_sgpr=33):
    if not STAMPS:
        return
    p(f"""
    s_lshl_b32 s98, s2, 2
    s_add_u32 s98, s98, s{wave_sgpr}
    s_lshl_b32 s98, s98, 6
    s_add_u32 s98, s98, {STAMP_OFF + kern * 0x20000}
    s_mov_b64 exec, 1
    v_mov_b32 v200, 0
    """)
    for i in range(n):
        p(f"v_mov_b32 v201, s{80+i}")
        p(f"buffer_store_dword v201, v200, s[28:31], s98 offen offset:{4*i}")
```

```python
from common import *

K1_NWG = G + 196
K1_LDS = 65536
K1_NREC = K1_NWG * 4


def bf16_round(p, v, t):
    p(f"""
    v_cvt_pk_bf16_f32 v{t}, v{v}, v{v}
    v_lshlrev_b32 v{v}, 16, v{t}
    """)


def k1_ln(p):
    stamp(p, 0)
    p(f"""
    s_load_dwordx2 s[4:5], s[0:1], {A_X}
    s_load_dwordx4 s[8:11], s[0:1], {A_WQ}
    s_load_dwordx2 s[12:13], s[0:1], {A_WS}
    v_and_b32 v1, 63, v0
    v_lshrrev_b32 v7, 6, v0
    v_lshrrev_b32 v2, 4, v1
    v_and_b32 v3, 15, v1
    v_readfirstlane_b32 s33, v7
    s_sub_u32 s34, s2, {G}
    s_lshl_b32 s34, s34, 2
    s_waitcnt lgkmcnt(0)
    s_add_u32 s34, s34, s33
    s_lshl_b32 s35, s34, 12
    """)
    srd(p, 16, 4, N * 256)
    srd(p, 20, 8, 32768)
    srd(p, 24, 10, 32768)
    srd(p, 28, 12, WS_SIZE)
    p(f"""
    v_lshlrev_b32 v4, 8, v3
    v_lshl_add_u32 v4, v2, 4, v4
    """)
    for ks in range(4):
        p(f"buffer_load_dwordx4 v[{8+4*ks}:{11+4*ks}], v4, s[16:19], s35 offen offset:{64*ks}")
    p(f"""
    v_lshlrev_b32 v5, 2, v2
    v_xor_b32 v5, v5, v3
    v_lshlrev_b32 v5, 4, v5
    v_lshl_add_u32 v5, v2, 8, v5
    s_lshl_b32 s36, s33, 13
    s_mov_b32 m0, s36
    s_add_u32 s37, s36, 4096
    """)
    for j in range(4):
        p(f"buffer_load_dwordx4 v5, s[20:23], s36 offen offset:{1024*j} lds")
    p("s_mov_b32 m0, s37")
    for j in range(4):
        p(f"buffer_load_dwordx4 v5, s[20:23], s37 offen offset:{1024*j} lds")
    p(f"""
    s_lshl_b32 s38, s33, 2
    v_xor_b32 v6, v3, v2
    v_xor_b32 v6, s38, v6
    v_lshlrev_b32 v6, 4, v6
    v_lshl_add_u32 v6, v2, 8, v6
    s_lshl_b32 s38, s33, 11
    """)
    for a in range(4):
        p(f"""
        s_add_u32 s39, s38, {8192*a}
        s_add_u32 s40, s39, 32768
        s_mov_b32 m0, s40
        s_nop 0
        buffer_load_dwordx4 v6, s[24:27], s39 offen lds
        buffer_load_dwordx4 v6, s[24:27], s39 offen offset:1024 lds
        """)
    if STAMPS:
        p("s_waitcnt vmcnt(16)")
        stamp(p, 1)
    F = 24
    for k in range(16):
        p(f"v_lshlrev_b32 v{F+2*k}, 16, v{8+k}")
        p(f"v_and_b32 v{F+2*k+1}, 0xffff0000, v{8+k}")
    for c in range(4):
        p(f"v_add_f32 v{200+c}, v{F+c}, v{F+4+c}")
    for k in range(2, 8):
        for c in range(4):
            p(f"v_add_f32 v{200+c}, v{200+c}, v{F+4*k+c}")
    p("""
    v_add_f32 v200, v200, v201
    v_add_f32 v202, v202, v203
    v_add_f32 v200, v200, v202
    """)
    allreduce_g(p, 200, 201)
    p(f"v_mul_f32 v200, {hexf(1.0/128)}, v200")
    for k in range(32):
        p(f"v_sub_f32 v{F+k}, v{F+k}, v200")
    for c in range(4):
        p(f"v_mul_f32 v{200+c}, v{F+c}, v{F+c}")
    for k in range(1, 8):
        for c in range(4):
            p(f"v_fmac_f32 v{200+c}, v{F+4*k+c}, v{F+4*k+c}")
    p("""
    v_add_f32 v200, v200, v201
    v_add_f32 v202, v202, v203
    v_add_f32 v200, v200, v202
    """)
    allreduce_g(p, 200, 201)
    p(f"v_mul_f32 v200, {hexf(1.0/128)}, v200")
    bf16_round(p, 200, 201)
    p(f"v_add_f32 v200, {hexf(1e-5)}, v200")
    bf16_round(p, 200, 201)
    p("v_sqrt_f32 v200, v200")
    bf16_round(p, 200, 201)
    p("v_rcp_f32 v200, v200")
    for k in range(32):
        p(f"v_mul_f32 v{F+k}, v{F+k}, v200")
    HB = 56
    for k in range(16):
        p(f"v_cvt_pk_bf16_f32 v{HB+k}, v{F+2*k}, v{F+2*k+1}")
    bcast_g3(p, F + 31, 202, 201)
    p(f"v_mul_f32 v202, {hexf(CH)}, v202")
    for k in range(32):
        p(f"v_add_f32 v{F+k}, v{F+k}, v202")
    p(f"""
    v_cmp_eq_u32 s[42:43], 3, v2
    v_mov_b32 v203, 1.0
    v_cndmask_b32 v{F+31}, v{F+31}, v203, s[42:43]
    """)
    HT = 72
    for k in range(16):
        p(f"v_cvt_pk_bf16_f32 v{HT+k}, v{F+2*k}, v{F+2*k+1}")
    p(f"""
    v_and_b32 v204, 1, v2
    v_mul_u32_u24 v204, 12, v204
    v_xor_b32 v204, v204, v3
    v_lshlrev_b32 v204, 4, v204
    v_lshl_add_u32 v204, v2, 8, v204
    s_add_u32 s44, s35, {KIMG_OFF}
    s_add_u32 s45, s35, {HROW_OFF}
    s_add_u32 s46, s35, {QIMG_OFF}
    """)
    for ks in range(4):
        p(f"buffer_store_dwordx4 v[{HT+4*ks}:{HT+4*ks+3}], v204, s[28:31], s44 offen offset:{1024*ks}")
    for ks in range(4):
        p(f"buffer_store_dwordx4 v[{HT+4*ks}:{HT+4*ks+3}], v4, s[28:31], s45 offen offset:{64*ks}")
    p(f"""
    v_bfe_u32 v205, v1, 2, 2
    v_and_b32 v206, 3, v1
    v_lshl_add_u32 v207, v2, 3, v205
    v_lshlrev_b32 v207, 8, v207
    v_lshl_add_u32 v207, v206, 4, v207
    v_lshl_add_u32 v208, v205, 6, v207
    v_xor_b32 v209, 64, v208
    v_xor_b32 v210, 128, v208
    v_xor_b32 v211, 192, v208
    """)
    p(f"""
    v_lshrrev_b32 v212, 2, v3
    v_lshlrev_b32 v212, 3, v212
    v_and_b32 v213, 3, v3
    v_add_u32 v212, v212, v213
    v_lshlrev_b32 v212, 8, v212
    v_xor_b32 v213, v2, v3
    v_lshl_add_u32 v212, v213, 4, v212
    v_add_u32 v212, 32768, v212
    v_xor_b32 v213, 64, v212
    v_xor_b32 v214, 128, v212
    v_xor_b32 v215, 192, v212
    """)
    p("""
    s_waitcnt vmcnt(8)
    s_barrier
    """)
    stamp(p, 2)
    QA = 88
    AF = 168

    def rd1(t):
        b = AF + 16 * (t & 1)
        for ks in range(4):
            for u in range(2):
                p(f"ds_read_b64_tr_b16 v[{b+4*ks+2*u}:{b+4*ks+2*u+1}], v{208+(t>>1)} offset:{8192*ks+1024*u+8*(t&1)}")
    rd1(0)
    for t in range(8):
        if t < 7:
            rd1(t + 1)
        b = AF + 16 * (t & 1)
        for ks in range(4):
            c = '0' if ks == 0 else f'v[{QA+4*t}:{QA+4*t+3}]'
            p(f"v_mfma_f32_16x16x32_bf16 v[{QA+4*t}:{QA+4*t+3}], v[{b+4*ks}:{b+4*ks+3}], v[{HB+4*ks}:{HB+4*ks+3}], {c}")
    UA = 136
    QF = 120

    def rd2(t):
        b = AF + 16 * (t & 1)
        for kk in range(4):
            p(f"ds_read_b128 v[{b+4*kk}:{b+4*kk+3}], v{212+kk} offset:{8192*(t>>1)+1024*(t&1)}")
    rd2(0)
    for k in range(16):
        p(f"v_cvt_pk_bf16_f32 v{QF+k}, v{QA+2*k}, v{QA+2*k+1}")
    for t in range(8):
        if t < 7:
            rd2(t + 1)
        b = AF + 16 * (t & 1)
        for kk in range(4):
            c = '0' if kk == 0 else f'v[{UA+4*t}:{UA+4*t+3}]'
            p(f"v_mfma_f32_16x16x32_bf16 v[{UA+4*t}:{UA+4*t+3}], v[{b+4*kk}:{b+4*kk+3}], v[{QF+4*kk}:{QF+4*kk+3}], {c}")
    for c in range(4):
        p(f"v_add_f32 v{200+c}, v{UA+c}, v{UA+4+c}")
    for k in range(2, 8):
        for c in range(4):
            p(f"v_add_f32 v{200+c}, v{200+c}, v{UA+4*k+c}")
    p("""
    v_add_f32 v200, v200, v201
    v_add_f32 v202, v202, v203
    v_add_f32 v200, v200, v202
    """)
    allreduce_g(p, 200, 201)
    bcast_g3(p, UA + 31, 202, 201)
    k1c = (1.0 + CH) / RT128 * QSCALE
    k2c = -CH / RT128 * QSCALE
    p(f"""
    v_mul_f32 v202, {hexf(k1c)}, v202
    v_mul_f32 v200, {hexf(k2c)}, v200
    v_add_f32 v200, v200, v202
    s_mov_b32 s47, {hexf(QSCALE)}
    """)
    for k in range(32):
        p(f"v_fma_f32 v{UA+k}, v{UA+k}, s47, v200")
    p(f"v_cndmask_b32 v{UA+31}, v{UA+31}, 0, s[42:43]")
    for k in range(16):
        p(f"v_cvt_pk_bf16_f32 v{QF+k}, v{UA+2*k}, v{UA+2*k+1}")
    p("v_lshlrev_b32 v204, 4, v1")
    for ks in range(4):
        p(f"buffer_store_dwordx4 v[{QF+4*ks}:{QF+4*ks+3}], v204, s[28:31], s46 offen offset:{1024*ks}")
    stamp(p, 3)
    if STAMPS:
        p("s_waitcnt vmcnt(0)")
    stamp(p, 4)
    stamp_flush(p, 0, 5)
    p("s_endpgm")


def k1_bin(p):
    NR = 7
    stamp(p, 0)
    STG = 4096
    TOT = 4096 + 10240 * 4
    NO = 9
    p(f"""
    s_load_dwordx4 s[4:7], s[0:1], {A_SRC}
    s_load_dwordx2 s[12:13], s[0:1], {A_WS}
    v_lshlrev_b32 v1, 4, v0
    v_lshrrev_b32 v7, 6, v0
    v_mov_b32 v8, 0
    v_mov_b32 v9, 0
    v_mov_b32 v10, 0
    v_mov_b32 v11, 0
    v_readfirstlane_b32 s33, v7
    ds_write_b128 v1, v[8:11]
    s_mul_i32 s34, s2, {EPW*4}
    v_mov_b32 v12, 0xffff
    v_mov_b32 v13, 0xffff
    v_mov_b32 v14, 0xffff
    v_mov_b32 v15, 0xffff
    s_waitcnt lgkmcnt(0)
    """)
    srd(p, 16, 4, E * 4)
    srd(p, 20, 6, E * 4)
    srd(p, 28, 12, WS_SIZE)
    DS = 16
    SR = 44
    RK = 72
    BA = 100
    for r in range(NR):
        p(f"s_add_u32 s35, s34, {4096*r}")
        p(f"buffer_load_dwordx4 v[{DS+4*r}:{DS+4*r+3}], v1, s[20:23], s35 offen")
    for r in range(NR):
        p(f"s_add_u32 s35, s34, {4096*r}")
        p(f"buffer_load_dwordx4 v[{SR+4*r}:{SR+4*r+3}], v1, s[16:19], s35 offen")
    for r in range(NO):
        p(f"ds_write_b128 v1, v[12:15] offset:{STG+4096*r}")
    p("""
    s_waitcnt lgkmcnt(0)
    s_barrier
    v_mov_b32 v2, 1
    v_lshlrev_b32 v3, 2, v0
    """)
    for r in range(NR):
        for k in range(4):
            e = 4 * r + k
            p(f"v_lshrrev_b32 v{BA+e}, 4, v{DS+e}")
            p(f"v_lshlrev_b32 v{BA+e}, 2, v{BA+e}")
            if r == NR - 1:
                p(f"""
                v_cmp_gt_u32 vcc, {EPW - 1024*(NR-1) - k}, v3
                v_mov_b32 v4, {783*4}
                v_cndmask_b32 v{BA+e}, v4, v{BA+e}, vcc
                """)
            p(f"v_min_u32 v{BA+e}, {783*4}, v{BA+e}")
            p(f"ds_add_rtn_u32 v{RK+e}, v{BA+e}, v2")
    stamp(p, 1)
    p("s_mov_b32 s43, 0x10000")
    for e in range(4 * NR):
        p(f"v_and_b32 v{DS+e}, 15, v{DS+e}")
        p(f"v_lshl_or_b32 v{DS+e}, s43, v{DS+e}, v{SR+e}")
    p(f"""
    s_waitcnt lgkmcnt(0)
    s_barrier
    ds_read_b128 v[8:11], v1
    v_add_u32 v8, 3, v8
    v_add_u32 v9, 3, v9
    v_add_u32 v10, 3, v10
    v_add_u32 v11, 3, v11
    v_and_b32 v8, -4, v8
    v_and_b32 v9, -4, v9
    v_and_b32 v10, -4, v10
    v_and_b32 v11, -4, v11
    v_add_u32 v13, v8, v9
    v_add_u32 v14, v13, v10
    v_add_u32 v15, v14, v11
    v_mov_b32 v5, v15
    v_add_u32_dpp v5, v5, v5 row_shr:1 row_mask:0xf bank_mask:0xf
    v_add_u32_dpp v5, v5, v5 row_shr:2 row_mask:0xf bank_mask:0xf
    v_add_u32_dpp v5, v5, v5 row_shr:4 row_mask:0xf bank_mask:0xf
    v_add_u32_dpp v5, v5, v5 row_shr:8 row_mask:0xf bank_mask:0xf
    v_add_u32_dpp v5, v5, v5 row_bcast:15 row_mask:0xa bank_mask:0xf
    v_add_u32_dpp v5, v5, v5 row_bcast:31 row_mask:0xc bank_mask:0xf
    v_readlane_b32 s36, v5, 63
    s_lshl_b32 s37, s33, 2
    s_add_u32 s37, s37, {TOT}
    v_mov_b32 v6, s37
    v_mov_b32 v4, s36
    ds_write_b32 v6, v4
    v_mov_b32 v6, {TOT}
    s_waitcnt lgkmcnt(0)
    s_barrier
    ds_read_b128 v[128:131], v6
    s_cmp_gt_u32 s33, 0
    s_cselect_b32 s38, -1, 0
    s_cmp_gt_u32 s33, 1
    s_cselect_b32 s39, -1, 0
    s_cmp_gt_u32 s33, 2
    s_cselect_b32 s40, -1, 0
    v_sub_u32 v5, v5, v15
    v_and_b32 v128, s38, v128
    v_and_b32 v129, s39, v129
    v_and_b32 v130, s40, v130
    v_add3_u32 v5, v5, v128, v129
    v_add_u32 v132, v5, v130
    v_add_u32 v133, v132, v8
    v_add_u32 v134, v132, v13
    v_add_u32 v135, v132, v14
    ds_write_b128 v1, v[132:135]
    s_lshl_b32 s41, s2, 12
    s_add_u32 s41, s41, {OFFT_OFF}
    buffer_store_dwordx4 v[132:135], v1, s[28:31], s41 offen
    s_waitcnt lgkmcnt(0)
    s_barrier
    """)
    stamp(p, 2)
    for e in range(4 * NR):
        p(f"ds_read_b32 v{BA+e}, v{BA+e}")
    for e in range(4 * NR):
        p(f"v_add_lshl_u32 v{BA+e}, v{BA+e}, v{RK+e}, 2")
        p(f"ds_write_b32 v{BA+e}, v{DS+e} offset:{STG}")
    p(f"""
    s_waitcnt lgkmcnt(0)
    s_barrier
    s_mul_i32 s42, s2, {ENT_STRIDE}
    s_add_u32 s42, s42, {ENT_OFF}
    """)
    for r in range(NO):
        p(f"ds_read_b128 v[{SR+4*r}:{SR+4*r+3}], v1 offset:{STG+4096*r}")
    for r in range(NO):
        p(f"s_add_u32 s35, s42, {4096*r}")
        p(f"buffer_store_dwordx4 v[{SR+4*r}:{SR+4*r+3}], v1, s[28:31], s35 offen")
    stamp(p, 3)
    if STAMPS:
        p("s_waitcnt vmcnt(0)")
    stamp(p, 4)
    stamp_flush(p, 0, 5)
    p("s_endpgm")


def gen_k1():
    h = Prog()
    h(f"""
    s_cmp_ge_u32 s2, {K1_NWG}
    s_cbranch_scc1 Lk1_exit
    s_cmp_ge_u32 s2, {G}
    s_cbranch_scc1 Lk1_ln
    """)
    a = Prog()
    k1_bin(a)
    b = Prog()
    k1_ln(b)
    body = emit(h.ins) + emit(a.finish()) + "Lk1_ln:\n" + emit(b.finish()) + "Lk1_exit:\n  s_endpgm\n"
    return body
```

```python
from common import *

K2_ATT = 245
K2_NWG = 249
NFULL = 39
LAG = 5
MARGIN = 32.0
MAPB = bool(int(os.environ.get('MAPB', '0')))
RING = 65536
STG_OFF = 65536
GW_OFF = 131072
GW_STRIDE = 7424
NULLQ = 6144
IDX = 6160
IDX_TRASH = 6160 + 4 * 290
MAXQ = 6
MAXTOT = 224
FLAG_OFF = GW_OFF + 4 * GW_STRIDE
K2_LDS = FLAG_OFF + 64

V_LANE, V_G, V_I, V_L16 = 1, 2, 3, 4
V_KL, V_VL, V_KA, V_VA = 5, 6, 7, 8
V_T0, V_T1, V_T2, V_T3 = 9, 10, 11, 12
V_LA, V_LC, V_ROT = 13, 14, 15
O_B = 16
S_B = 144
P_B = 160
NM_B = 192
NM1_B = 208
NINF_B = 224
E0 = 208
LO = 216
TA = 220
OH = 228
OT = 232
AD = 236
ST, CN, PS, DEG = 238, 239, 240, 241
IX = 242
OH2 = 244
AD8 = 248
Q_A = 0
K_A = 64
V_A = 128
GA_A = 192
GF_A = 224


def O(j, dt): return O_B + (j * 8 + dt) * 4
def Sr(s): return S_B + 4 * s
def Pr(j, k2): return P_B + j * 8 + k2 * 4
def NM(j): return NM_B + 4 * j
def Qf(j, ks): return Q_A + (j * 4 + ks) * 4
def Kf(s, ks): return K_A + (s * 4 + ks) * 4
def Vf(dt, k2): return V_A + (dt * 2 + k2) * 4


def mf(d, a, b, c):
    return f"v_mfma_f32_16x16x32_bf16 {d}, {a}, {b}, {c}"


def kread(s, ks, areg=V_KA):
    return I(f"ds_read_b128 {vr(Kf(s,ks),4,'a')}, v{areg} offset:{4096*s+1024*ks}", 'kread')


def vread(dt, k2, u):
    return I(f"ds_read_b64_tr_b16 {vr(Vf(dt,k2)+2*u,2,'a')}, v{V_VA} offset:{4096*(2*k2+u)+512*dt}", 'vread')


def build_iter(variant):
    NG = 128
    mf_l = [None] * NG
    fixed = [[] for _ in range(NG)]
    units = [2] * NG
    for p in range(16):
        j, s = divmod(p, 4)
        for ks in range(4):
            if ks == 0:
                c = vr(NM(j), 4)
                if variant == 'tail':
                    c = [vr(NM(j), 4), vr(NM1_B + 4 * j, 4), vr(NINF_B, 4), vr(NINF_B, 4)][s]
            else:
                c = vr(Sr(s), 4)
            mf_l[8 * p + ks] = I(mf(vr(Sr(s), 4), vr(Kf(s, ks), 4, 'a'), vr(Qf(j, ks), 4, 'a'), c), 'qk')
        pp = (p - LAG) % 16
        jp, a = divmod(pp, 4)
        prev = p < LAG
        n = 0
        for dt in (2 * a, 2 * a + 1):
            for k2 in (0, 1):
                mf_l[8 * p + 4 + n] = I(mf(vr(O(jp, dt), 4), vr(Vf(dt, k2), 4, 'a'), vr(Pr(jp, k2), 4), vr(O(jp, dt), 4)),
                                        'pv_prev' if prev else 'pv')
                n += 1
        q = (p - 1) % 16
        jq, sq = divmod(q, 4)
        tg = 'sm_prev' if p == 0 else 'sm'
        for r in range(4):
            fixed[8 * p + 2 * r].append(I(f"v_exp_f32 v{Sr(sq)+r}, v{Sr(sq)+r}", tg))
            units[8 * p + 2 * r] -= 2
        pd = Pr(jq, sq >> 1) + 2 * (sq & 1)
        fixed[8 * p + 3].append(I(f"v_cvt_pk_bf16_f32 v{pd}, v{Sr(sq)}, v{Sr(sq)+1}", tg))
        units[8 * p + 3] -= 1
        fixed[8 * p + 7].append(I(f"v_cvt_pk_bf16_f32 v{pd+1}, v{Sr(sq)+2}, v{Sr(sq)+3}", tg))
        units[8 * p + 7] -= 1
    LATM = 9
    BAR = 95
    placed = [[] for _ in range(NG)]

    def sched(mov, start):
        pend = sorted(mov, key=lambda m: (m[1], m[0]))
        for ga in range(start, start + NG):
            g = ga % NG
            while units[g] > 0:
                cand = [m for m in pend if m[0] <= ga and m[2] <= units[g]]
                if not cand:
                    break
                m = cand[0]
                assert ga <= m[1], ('deadline miss', ga, m)
                pend.remove(m)
                placed[g].append(m[3])
                units[g] -= m[2]
        assert not pend, pend
    units[BLK] = 0
    mov = []
    for i, g in enumerate(KVPOS):
        mov.append((g, g, 1, I(f"buffer_load_dwordx4 v{V_L16}, s[28:31], s40 offen offset:{1024*i} lds", 'dma')))
    for i, g in enumerate(GPOS):
        mov.append((g, g, 1, gdma8(i)))
    sched(mov, 0)
    mov = [(1, 11, 1, I(f"v_add_u32 v{V_VA}, s43, v{V_VL}", 'va'))]
    for a in range(4):
        n = 0
        for dt in (2 * a, 2 * a + 1):
            for k2 in (0, 1):
                last = 8 * ((12 + LAG + a) - 16) + 4 + n
                nxt = 8 * (LAG + a) + 4 + n
                for u in range(2):
                    mov.append((last, nxt - LATM, 1, vread(dt, k2, u)))
                n += 1
    for s in range(4):
        for ks in range(4):
            mov.append((max(8 * (12 + s) + ks, BAR + 1), 127, 1, kread(s, ks)))
    sched(mov, 0)
    mov = []
    mov.append((128 + 4, 128 + 8, 1, I(f"v_add_u32 v{V_LC}, s63, v{V_LA}", 'g')))
    mov.append((128 + 9, 128 + 12, 1, I(f"ds_read_b64 v[{IX}:{IX+1}], v{V_LC}", 'g')))
    mov.append((57, 60, 1, I(f"ds_read_b128 v[{E0}:{E0+3}], v{IX}", 'g')))
    mov.append((57, 60, 1, I(f"ds_read_b128 v[{E0+4}:{E0+7}], v{IX+1}", 'g')))
    k = 0
    for u in range(2):
        for dt in range(8):
            mov.append((58 if u == 0 else 69, 64 + k, 1, I(f"ds_read_b64_tr_b16 {vr(GF_A+4*dt+2*u,2,'a')}, v{TA+dt} offset:{4096*u}", 'g')))
            k += 1
    mov.append((80, 94, 1, I(f"v_add_u32 v{V_KA}, s42, v{V_KL}", 'ka')))
    for k in range(4):
        mov.append((87, 150 + k, 1, I(f"v_and_b32 v{OH+k}, s57, v{OT+k}", 'g')))
    sched(mov, 54)
    needs = {84: set(('v', E0 + k) for k in range(8)) | set(('a', GF_A + k) for k in range(32))}
    scal = [[] for _ in range(NG)]
    sops = [
        (0, 0, I("s_mov_b32 m0, s41", 'dma')),
        (14, 17, I("s_add_u32 s40, s40, 16384", 'dma')),
        (18, 21, I("s_add_u32 s41, s41, 16384", 'dma')),
        (24, 27, I("s_and_b32 s41, s41, 0xffff", 'dma')),
        (50, 53, I("s_add_u32 s42, s42, 16384", 'ka')),
        (54, 56, I("s_and_b32 s42, s42, 0xffff", 'ka')),
        (57, 57, I("s_waitcnt vmcnt(8)", 'bar')),
        (68, 68, I("s_waitcnt vmcnt(4)", 'bar')),
        (60, 64, I("s_add_u32 s63, s63, 32", 'g')),
        (65, 67, I("s_min_u32 s63, s63, s64", 'g')),
        (70, 76, I("s_mov_b32 m0, s54", 'g')),
        (80, 83, I("s_cmp_lg_u32 s62, 0", 'g')),
        (BAR, BAR, I("s_barrier", 'bar')),
        (98, 101, I("s_mov_b32 s43, s42", 'va')),
        (GPOS[3] + 1, GPOS[4] - 1, I("s_mov_b32 m0, s65", 'g')),
        (119, 121, I("s_sub_u32 s44, s44, 1", 'loop')),
        (122, 126, I("s_cmp_lg_u32 s44, 0", 'loop')),
    ]
    for lo, hi, ins in sops:
        g = next((g for g in range(lo, hi + 1) if g not in WAITGAPS and not scal[g]), lo)
        scal[g].append(ins)
    gaps = []
    for g in range(NG):
        vec = [x for x in placed[g] if x.kind != 'valu'] + [x for x in placed[g] if x.kind == 'valu'] + fixed[g]
        gaps.append([mf_l[g], scal[g], vec])
    if variant == 'drain':
        keep = lambda i: i.tag in ('pv_prev', 'sm_prev')
        needs = {}
    elif variant == 'tail':
        keep = lambda i: i.tag in ('qk', 'pv', 'pv_prev', 'sm', 'sm_prev', 'vread', 'va')
        needs = {}
    else:
        keep = lambda i: True
    out = []
    for m, sc, ve in gaps:
        out.append([m if keep(m) else None, [x for x in sc if keep(x)], [x for x in ve if keep(x)]])
    if variant in ('mid', 'midskip'):
        out[BLK][2] = gblock(variant == 'mid')
    return out, needs


BLK = 85


def gmad(i):
    return I(f"v_mad_u32_u16 v{AD+(i&1)}, v{E0+i}, s55, v{LO+(i&3)}", 'g')


def gdma(i):
    return I(f"buffer_load_dwordx4 v{AD+(i&1)}, s[20:23], 0 offen offset:{1024*(i&3)} lds", 'g')


KVPOS = (1, 5, 9, 13)
GPOS = (87, 93, 99, 103, 109, 115, 119, 125)


def gmad8(i):
    return I(f"v_mad_u32_u16 v{AD8+i}, v{E0+i}, s55, v{LO+(i&3)}", 'g')


def gdma8(i):
    return I(f"buffer_load_dwordx4 v{AD8+i}, s[20:23], 0 offen offset:{1024*(i&3)} lds", 'g')


def gblock(on):
    r = [I("s_cbranch_scc0 Lk2_gskip", 'g')]
    if on:
        gm = lambda dt: I(mf(vr(GA_A + 4 * dt, 4, 'a'), vr(GF_A + 4 * dt, 4, 'a'), vr(OH, 4), vr(GA_A + 4 * dt, 4, 'a')), 'gm')
        pm = lambda k: I(f"v_perm_b32 v{OT+k}, v{E0+2*k+1}, v{E0+2*k}, s58", 'g')
        al = lambda k: I(f"v_alignbit_b32 v{OT+k}, v{OT+k}, v{OT+k}, v{V_ROT}", 'g')
        r += [gm(0), gmad8(0), gmad8(1), gm(1), gmad8(2), gmad8(3), gm(2), gmad8(4), gmad8(5), gm(3), gmad8(6), gmad8(7),
              gm(4), I("s_sub_u32 s62, s62, 1", 'g'), pm(0), pm(1), gm(5), pm(2), pm(3), gm(6), al(0), al(1), gm(7), al(2), al(3)]
    r += [I("Lk2_gskip:")]
    return r


WAITGAPS = set()


def place_waits(gaps, needs, entry, nextm, AGE=7):
    issued = list(entry)
    done = 0
    flat = []
    n = len(gaps)
    wg = set()

    def need_for(t):
        q = -1
        for k in range(done, len(issued)):
            if issued[k][0] & t:
                q = k
        return q
    touch = lambda i: set(i.rd) | set(i.wr)
    for g in range(n):
        m, sc, ve = gaps[g]
        if m is not None:
            assert need_for(touch(m)) < 0, ('late ds', g, m)
            flat.append(m)
        nx = gaps[g + 1][0] if g + 1 < n else nextm
        t = set(needs.get(g, set()))
        if nx is not None:
            t |= touch(nx)
        q = need_for(t)
        if q >= 0:
            for k in range(q, len(issued)):
                if issued[k][1] <= g - AGE:
                    q = k
            N = min(15, len(issued) - 1 - q)
            flat.append(I(f"s_waitcnt lgkmcnt({N})", 'w'))
            wg.add(g)
            done = len(issued) - N
        flat.extend(sc)
        for x in ve:
            if x.kind not in ('label', 'dir'):
                assert need_for(touch(x)) < 0, ('late ds', g, x)
            if x.kind == 'ds':
                issued.append((set(x.wr), g))
            flat.append(x)
    return flat, [(r, g - n) for r, g in issued[done:]], wg


def iter_code(variant, entry, pre):
    gaps, needs = build_iter(variant)
    nextm = None if variant in ('drain', 'tail') else gaps[0][0]
    flat, ex, wg = place_waits(gaps, needs, entry, nextm)
    fixed, problems = pad_hazards(flat, fix=True, pre=pre)
    return fixed, problems, ex, wg


def gen_loop_variants():
    WAITGAPS.clear()
    _, _, ex, _ = iter_code('mid', [], [])
    _, _, ex2, wg = iter_code('mid', ex, [])
    assert ex == ex2
    WAITGAPS.update(wg)
    mid0, _, _, _ = iter_code('mid', ex, [])
    mid, prob, _, _ = iter_code('mid', ex, mid0[-30:])
    assert not prob, prob
    _, prob, _, _ = iter_code('midskip', ex, mid0[-30:])
    assert not prob, prob
    tail, _, ex3, _ = iter_code('tail', ex, mid[-30:])
    drain, _, _, _ = iter_code('drain', ex, mid[-30:])
    drain2, _, _, _ = iter_code('drain', ex3, tail[-30:])
    assert [x.text for x in drain] == [x.text for x in drain2]
    return mid, tail, drain


def k2_setup(p):
    stamp(p, 0)
    p(f"""
    s_load_dwordx2 s[12:13], s[0:1], {A_WS}
    s_load_dwordx2 s[14:15], s[0:1], {A_DEG}
    v_and_b32 v{V_LANE}, 63, v0
    v_lshrrev_b32 v{V_T0}, 6, v0
    v_lshrrev_b32 v{V_G}, 4, v{V_LANE}
    v_and_b32 v{V_I}, 15, v{V_LANE}
    v_readfirstlane_b32 s33, v{V_T0}
    v_lshlrev_b32 v{V_L16}, 4, v{V_LANE}
    """)
    if MAPB:
        p(f"""
        s_and_b32 s3, s2, 7
        s_lshr_b32 s4, s2, 3
        s_mul_i32 s5, s3, 31
        s_add_u32 s5, s5, s4
        s_max_u32 s3, s3, 5
        s_sub_u32 s3, s3, 5
        s_sub_u32 s5, s5, s3
        s_mul_i32 s35, s5, 13108
        s_lshr_b32 s35, s35, 16
        s_mul_i32 s3, s35, 5
        s_sub_u32 s34, s5, s3
        """)
    else:
        p(f"""
        s_and_b32 s3, s2, 7
        s_lshr_b32 s4, s2, 3
        s_mul_i32 s5, s3, 31
        s_add_u32 s5, s5, s4
        s_max_u32 s3, s3, 5
        s_sub_u32 s3, s3, 5
        s_sub_u32 s5, s5, s3
        s_mul_i32 s34, s5, 1338
        s_lshr_b32 s34, s34, 16
        s_mul_i32 s3, s34, 49
        s_sub_u32 s35, s5, s3
        """)
    p(f"""
    s_mul_i32 s36, s33, {K2_ATT}
    s_add_u32 s36, s36, s2
    s_lshl_b32 s37, s35, 4
    s_lshl_b32 s3, s33, 2
    s_add_u32 s37, s37, s3
    s_mov_b32 s45, 0
    s_waitcnt lgkmcnt(0)
    """)
    srd(p, 28, 12, WS_SIZE)
    srd(p, 24, 14, N * 2)
    p(f"""
    s_add_u32 s16, s12, {HROW_OFF - 3072}
    s_addc_u32 s17, s13, 0
    """)
    srd(p, 20, 16, 12544 * 256 + 3072)
    p(f"""
    s_lshl_b32 s46, s36, 2
    s_add_u32 s46, s46, {OFFT_OFF}
    v_lshlrev_b32 v{V_T0}, 12, v{V_LANE}
    buffer_load_dwordx2 v[{ST}:{ST+1}], v{V_T0}, s[28:31], s46 offen
    s_lshl_b32 s46, s36, 5
    v_lshlrev_b32 v{V_T1}, 1, v{V_I}
    buffer_load_ushort v{DEG}, v{V_T1}, s[24:27], s46 offen
    s_mul_i32 s39, s34, {NFULL*16384}
    s_lshl_b32 s3, s33, 12
    s_add_u32 s39, s39, s3
    s_add_u32 s39, s39, {KIMG_OFF}
    """)
    dma_tiles(p, 0, 1)
    p(f"""
    s_lshl_b32 s38, s37, 12
    s_add_u32 s38, s38, {QIMG_OFF}
    """)
    for j in range(4):
        for ks in range(4):
            p(f"buffer_load_dwordx4 {vr(Qf(j,ks),4,'a')}, v{V_L16}, s[28:31], s38 offen offset:{1024*ks}")
        if j < 3:
            p("s_add_u32 s38, s38, 4096")
    p(f"""
    v_and_b32 v{V_T0}, 1, v{V_G}
    v_mul_u32_u24 v{V_T0}, 12, v{V_T0}
    v_xor_b32 v{V_T0}, v{V_T0}, v{V_I}
    v_lshlrev_b32 v{V_T0}, 4, v{V_T0}
    v_lshl_add_u32 v{V_KL}, v{V_G}, 8, v{V_T0}
    v_lshrrev_b32 v{V_T0}, 2, v{V_LANE}
    v_bfe_u32 v{V_T1}, v{V_LANE}, 1, 1
    v_mul_u32_u24 v{V_T2}, 12, v{V_T1}
    v_xor_b32 v{V_T0}, v{V_T0}, v{V_T2}
    v_lshlrev_b32 v{V_T0}, 4, v{V_T0}
    v_lshl_add_u32 v{V_T0}, v{V_T1}, 8, v{V_T0}
    v_and_b32 v{V_T1}, 1, v{V_LANE}
    v_lshl_add_u32 v{V_VL}, v{V_T1}, 3, v{V_T0}
    s_mul_i32 s49, s33, {GW_STRIDE}
    s_add_u32 s49, s49, {GW_OFF}
    s_lshl_b32 s54, s33, 14
    s_add_u32 s54, s54, {STG_OFF}
    s_add_u32 s65, s54, 4096
    s_mov_b32 s55, 256
    s_mov_b32 s57, 0x40004000
    s_mov_b32 s58, 0x07060302
    s_mov_b32 s60, {ENT_OFF}
    """)


def dma_tiles(p, t0, t1):
    if t0 == 0:
        p(f"""
        s_mov_b32 s40, s39
        s_lshl_b32 s41, s33, 12
        """)
    for t in range(t0, t1):
        p("s_mov_b32 m0, s41")
        p("s_nop 0")
        for i in range(4):
            p(f"buffer_load_dwordx4 v{V_L16}, s[28:31], s40 offen offset:{1024*i} lds")
        p("s_add_u32 s40, s40, 16384")
        p("s_add_u32 s41, s41, 16384")


def gather_consts(p):
    t0, t1, t2 = V_T0, V_T1, V_T2
    p(f"""
    v_and_b32 v{t0}, 1, v{V_G}
    v_lshlrev_b32 v{t0}, 3, v{t0}
    v_xor_b32 v{t1}, v{t0}, v{V_I}
    v_lshlrev_b32 v{t1}, 4, v{t1}
    """)
    for k in range(4):
        p(f"v_xor_b32 v{LO+k}, {32*k}, v{t1}")
        p(f"v_add_u32 v{LO+k}, {3072-1024*k}, v{LO+k}")
    p(f"""
    v_bfe_u32 v{t1}, v{V_LANE}, 2, 2
    v_lshl_add_u32 v{t2}, v{t1}, 2, v{V_G}
    v_lshlrev_b32 v{t2}, 8, v{t2}
    v_lshlrev_b32 v{t1}, 1, v{t1}
    v_xor_b32 v{t0}, v{t0}, v{t1}
    v_bfe_u32 v{t1}, v{V_LANE}, 1, 1
    v_xor_b32 v{t0}, v{t0}, v{t1}
    v_lshl_add_u32 v{t2}, v{t0}, 4, v{t2}
    v_and_b32 v{t1}, 1, v{V_LANE}
    v_lshl_add_u32 v{t2}, v{t1}, 3, v{t2}
    v_add_u32 v{t2}, s54, v{t2}
    """)
    for dt in range(8):
        p(f"v_xor_b32 v{TA+dt}, {32*dt}, v{t2}")
    p(f"v_add_u32 v{V_ROT}, 18, v{V_I}")


def gather_plan(p):
    t0, t1, t2 = V_T0, V_T1, V_T2
    p(f"""
    s_cmp_lt_u32 s36, {NBIN}
    s_cselect_b32 s46, {(EPW + 3) // 4}, 0
    v_sub_u32 v{CN}, v{ST+1}, v{ST}
    v_lshrrev_b32 v{CN}, 2, v{CN}
    v_min_u32 v{CN}, s46, v{CN}
    v_mov_b32 v{PS}, v{CN}
    v_add_u32_dpp v{PS}, v{PS}, v{PS} row_shr:1 row_mask:0xf bank_mask:0xf
    v_add_u32_dpp v{PS}, v{PS}, v{PS} row_shr:2 row_mask:0xf bank_mask:0xf
    v_add_u32_dpp v{PS}, v{PS}, v{PS} row_shr:4 row_mask:0xf bank_mask:0xf
    v_add_u32_dpp v{PS}, v{PS}, v{PS} row_shr:8 row_mask:0xf bank_mask:0xf
    v_add_u32_dpp v{PS}, v{PS}, v{PS} row_bcast:15 row_mask:0xa bank_mask:0xf
    v_add_u32_dpp v{PS}, v{PS}, v{PS} row_bcast:31 row_mask:0xc bank_mask:0xf
    v_mul_u32_u24 v{t0}, {ENT_STRIDE}, v{V_LANE}
    v_readlane_b32 s59, v{PS}, 63
    v_lshl_add_u32 v{ST}, v{ST}, 2, v{t0}
    v_cmp_lt_u32 vcc, {MAXQ}, v{CN}
    v_sub_u32 v{PS}, v{PS}, v{CN}
    s_cmp_gt_u32 s59, {MAXTOT}
    s_cselect_b32 s46, 1, 0
    s_cmp_lg_u64 vcc, 0
    s_cselect_b32 s46, 1, s46
    s_cmp_eq_u32 s46, 0
    s_cselect_b32 s61, -1, 0
    s_cselect_b32 s59, s59, 0
    s_add_u32 s66, s59, 7
    s_lshr_b32 s66, s66, 3
    """)
    for q in range(MAXQ):
        p(f"""
        s_add_u32 s46, s49, {1024*q}
        s_add_u32 s47, s60, {16*q}
        s_mov_b32 m0, s46
        s_nop 0
        buffer_load_dwordx4 v{ST}, s[28:31], s47 offen lds
        """)
    p(f"""
    v_lshlrev_b32 v{t0}, 2, v{PS}
    v_add_u32 v{t0}, {IDX}, v{t0}
    v_and_b32 v{t1}, s61, v{CN}
    v_cmp_eq_u32 vcc, 0, v{t1}
    v_mov_b32 v{t1}, {IDX_TRASH}
    v_add_u32 v{t2}, s49, v{V_L16}
    v_cndmask_b32 v{t0}, v{t0}, v{t1}, vcc
    v_add_u32 v{t0}, s49, v{t0}
    """)
    for q in range(MAXQ - 1, -1, -1):
        r = E0 + q
        p(f"v_add_u32 v{r}, {1024*q}, v{t2}")
        p(f"ds_write_b32 v{t0}, v{r} offset:{4*q}")
    p(f"""
    s_lshl_b32 s46, s59, 2
    s_add_u32 s46, s46, s49
    s_add_u32 s47, s49, {NULLQ}
    v_lshlrev_b32 v{t0}, 2, v{V_LANE}
    v_add_u32 v{t0}, s46, v{t0}
    v_mov_b32 v{t1}, s47
    ds_write_b32 v{t0}, v{t1} offset:{IDX}
    v_and_b32 v{t0}, 3, v{V_LANE}
    v_lshl_add_u32 v{t0}, v{t0}, 2, v{t1}
    v_mov_b32 v{t2}, 0xffff
    ds_write_b32 v{t0}, v{t2}
    v_lshlrev_b32 v{V_LA}, 3, v{V_G}
    v_add_u32 v{V_LA}, s49, v{V_LA}
    v_add_u32 v{V_LA}, {IDX}, v{V_LA}
    """)


def k2_maxpass(p):
    MX = P_B
    CI = NM1_B
    p(f"""
    s_waitcnt vmcnt(0) lgkmcnt(0)
    s_barrier
    s_mov_b32 s40, s39
    s_lshl_b32 s41, s33, 12
    s_mov_b32 s46, 0
    s_cmp_eq_u32 s34, 4
    s_cselect_b32 s47, {NFULL+1}, {NFULL}
    s_mov_b32 s48, 0xff800000
    v_mov_b32 v{V_KA}, v{V_KL}
    """)
    for j in range(4):
        p(f"v_mov_b32 v{MX+j}, s48")
    for k in range(16):
        p(f"v_mov_b32 v{CI+k}, 0")
    p(f"""
    Lk2_mx_loop:
    s_mov_b32 m0, s41
    s_nop 0
    """)
    for i in range(4):
        p(f"buffer_load_dwordx4 v{V_L16}, s[28:31], s40 offen offset:{1024*i} lds")
    p(f"""
    s_add_u32 s40, s40, 16384
    s_cmp_lg_u32 s46, {NFULL}
    s_cbranch_scc1 Lk2_mx_nomask
    v_cmp_eq_u32 vcc, 0, v{V_G}
    v_mov_b32 v{V_T0}, s48
    s_nop 1
    """)
    for k in range(4):
        p(f"v_cndmask_b32 v{CI+4+k}, v{V_T0}, v{CI+4+k}, vcc")
    for k in range(8, 16):
        p(f"v_mov_b32 v{CI+k}, s48")
    p(f"""
    Lk2_mx_nomask:
    s_waitcnt vmcnt(0)
    s_barrier
    """)
    for s in range(4):
        for ks in range(4):
            p.extend([kread(s, ks)])
    p("s_waitcnt lgkmcnt(0)")
    p("s_barrier")
    for j in range(4):
        for s in range(4):
            d = vr(O_B + (j * 4 + s) * 4, 4)
            for ks in range(4):
                p(mf(d, vr(Kf(s, ks), 4, 'a'), vr(Qf(j, ks), 4, 'a'), vr(CI + 4 * s, 4) if ks == 0 else d))
    for j in range(4):
        for k in range(0, 16, 2):
            b = O_B + j * 16 + k
            p(f"v_max3_f32 v{MX+j}, v{MX+j}, v{b}, v{b+1}")
    p(f"""
    s_add_u32 s46, s46, 1
    s_cmp_lt_u32 s46, s47
    s_nop 7
    s_cbranch_scc1 Lk2_mx_loop
    """)
    for j in range(4):
        allreduce_g(p, MX + j, V_T0, 'v_max_f32')
        for r in range(4):
            p(f"v_sub_f32 v{NM(j)+r}, 0, v{MX+j}")


def k2_prologue(p):
    p("s_branch Lk2_run1")
    p("Lk2_run:")
    dma_tiles(p, 0, 1)
    p("Lk2_run1:")
    dma_tiles(p, 1, 2)
    p(f"""
    v_mov_b32 v{V_T3}, 0x7fff0000
    s_mov_b32 m0, s54
    s_nop 0
    """)
    for i in range(8):
        if i == 4:
            p("s_mov_b32 m0, s65")
            p("s_nop 0")
        p(f"buffer_load_dwordx4 v{V_T3}, s[20:23], 0 offen offset:{1024*(i&3)} lds")
    gather_consts(p)
    for r in range(128):
        p(f"v_mov_b32 v{O_B+r}, 0")
    for r in range(64):
        p(f"v_accvgpr_write_b32 a{V_A+r}, 0")
    for r in range(32):
        p(f"v_accvgpr_write_b32 a{GA_A+r}, 0")
    for r in range(8):
        p(f"v_mov_b32 v{OH+r}, 0")
    for r in range(8):
        p(f"v_mov_b32 v{AD8+r}, v{V_T3}")
    for r in range(16):
        p(f"v_mov_b32 v{S_B+r}, 0")
    p(f"""
    v_mov_b32 v{V_KA}, v{V_KL}
    s_mov_b32 s42, 0
    s_mov_b32 s43, 0
    s_mov_b32 s44, {NFULL}
    s_cmp_lg_u32 s45, 0
    s_cbranch_scc1 Lk2_noplan
    s_waitcnt vmcnt(33)
    """)
    q = Prog()
    gather_plan(q)
    p.extend(q.ins)
    dma_tiles(p, 2, 3)
    p(f"""
    s_waitcnt vmcnt(22)
    s_branch Lk2_planned
    Lk2_noplan:
    """)
    dma_tiles(p, 2, 3)
    p(f"""
    s_waitcnt vmcnt(16)
    Lk2_planned:
    s_mov_b32 s63, 0
    s_lshl_b32 s64, s66, 5
    s_add_u32 s62, s66, 1
    s_cmp_eq_u32 s66, 0
    s_cselect_b32 s62, 0, s62
    s_barrier
    """)
    stamp(p, 1)
    for s in range(4):
        for ks in range(4):
            p.extend([kread(s, ks)])
    p(f"""
    s_cmp_lg_u32 s45, 0
    s_cbranch_scc1 Lk2_have_m
    s_waitcnt lgkmcnt(12)
    """)
    for j in range(4):
        d = vr(P_B + 4 * j, 4)
        for ks in range(4):
            p(mf(d, vr(Kf(0, ks), 4, 'a'), vr(Qf(j, ks), 4, 'a'), '0' if ks == 0 else d))
    for j in range(4):
        b = P_B + 4 * j
        p(f"v_max3_f32 v{b}, v{b}, v{b+1}, v{b+2}")
        p(f"v_max_f32 v{b}, v{b}, v{b+3}")
    for j in range(4):
        allreduce_g(p, P_B + 4 * j, P_B + 4 * j + 1, 'v_max_f32')
    for j in range(4):
        for r in range(4):
            p(f"v_sub_f32 v{NM(j)+r}, {hexf(-MARGIN)}, v{P_B+4*j}")
    p(f"""
    Lk2_have_m:
    """)
    for r in range(16, 32):
        p(f"v_mov_b32 v{P_B+r}, 0")
    p(f"""
    s_waitcnt lgkmcnt(0)
    s_nop 1
    """)
    stamp(p, 2)
    stamp(p, 9, True)


def k2_tail_setup(p):
    p(f"""
    s_mov_b32 s48, 0xff800000
    v_cmp_eq_u32 vcc, 0, v{V_G}
    v_mov_b32 v{NINF_B}, s48
    v_mov_b32 v{NINF_B+1}, s48
    v_mov_b32 v{NINF_B+2}, s48
    v_mov_b32 v{NINF_B+3}, s48
    """)
    for k in range(16):
        p(f"v_cndmask_b32 v{NM1_B+k}, v{NINF_B}, v{NM_B+k}, vcc")
    p("s_nop 1")


def k2_epilogue(p):
    stamp(p, 10, True)
    stamp(p, 3)
    p(f"""
    s_mul_i32 s46, s34, {PART_STRIDE}
    s_lshl_b32 s47, s37, 12
    s_add_u32 s46, s46, s47
    s_add_u32 s46, s46, {PART_OFF}
    s_mul_i32 s47, s34, {STAT_STRIDE}
    s_lshl_b32 s48, s37, 7
    s_add_u32 s47, s47, s48
    s_add_u32 s47, s47, {STAT_OFF}
    v_lshlrev_b32 v{V_T0}, 3, v{V_I}
    s_mov_b32 s48, {hexf(2.0**100)}
    v_cmp_eq_u32 s[50:51], 3, v{V_G}
    s_mov_b64 s[52:53], 0
    """)
    for j in range(4):
        b = P_B + 2 * j
        p(f"""
        v_sub_f32 v{b}, 0, v{NM(j)}
        v_mov_b32 v{b+1}, v{O(j,7)+3}
        v_cmp_nlt_f32 vcc, v{O(j,7)+3}, s48
        s_or_b64 s[52:53], s[52:53], vcc
        """)
        for kk in range(4):
            d = S_B + 4 * kk
            for h in range(2):
                o = O(j, 2 * kk + h)
                p(f"v_cvt_pk_bf16_f32 v{d+2*h}, v{o}, v{o+1}")
                p(f"v_cvt_pk_bf16_f32 v{d+2*h+1}, v{o+2}, v{o+3}")
            p(f"buffer_store_dwordx4 {vr(d,4)}, v{V_L16}, s[28:31], s46 offen offset:{1024*kk}")
        if j < 3:
            p("s_add_u32 s46, s46, 4096")
    p("s_mov_b64 exec, s[50:51]")
    for j in range(4):
        b = P_B + 2 * j
        p(f"buffer_store_dwordx2 {vr(b,2)}, v{V_T0}, s[28:31], s47 offen offset:{128*j}")
    p(f"""
    s_mov_b64 exec, -1
    s_and_b64 s[52:53], s[52:53], s[50:51]
    s_cselect_b32 s46, 1, 0
    s_lshl_b32 s47, s33, 2
    s_add_u32 s47, s47, {FLAG_OFF}
    v_mov_b32 v{V_T0}, s47
    v_mov_b32 v{V_T1}, s46
    v_mov_b32 v{V_T2}, {FLAG_OFF}
    ds_write_b32 v{V_T0}, v{V_T1}
    s_waitcnt lgkmcnt(0)
    s_barrier
    ds_read_b128 v[{S_B}:{S_B+3}], v{V_T2}
    v_or_b32 v{S_B}, v{S_B}, v{S_B+1}
    v_or3_b32 v{S_B}, v{S_B}, v{S_B+2}, v{S_B+3}
    v_readfirstlane_b32 s46, v{S_B}
    s_nop 1
    s_andn2_b32 s46, s46, s45
    s_cmp_eq_u32 s46, 0
    s_cbranch_scc1 Lk2_gather
    s_mov_b32 s45, 1
    """)


def k2_gather(p):
    t0, t1, t2 = V_T0, V_T1, V_T2
    p("Lk2_gather:")
    stamp(p, 4)
    stamp(p, 5)
    stamp(p, 6)
    p(f"""
    s_cmp_ge_u32 s36, {NBIN}
    s_cbranch_scc1 {'Lk2_g_fin' if STAMPS else 'Lk2_exit'}
    s_cmp_eq_u32 s61, -1
    s_cbranch_scc1 Lk2_g_done
    """)
    gather_consts(p)
    p(f"""
    Lk2_g_slow:
    s_waitcnt vmcnt(0) lgkmcnt(0)
    v_cmp_lt_u32 vcc, s61, v{CN}
    s_cbranch_vccz Lk2_g_done
    v_mov_b32 v{O_B}, 0xffff
    v_mov_b32 v{O_B+1}, 0xffff
    v_mov_b32 v{O_B+2}, 0xffff
    v_mov_b32 v{O_B+3}, 0xffff
    s_lshl_b32 s46, s61, 4
    s_add_u32 s46, s46, s60
    s_mov_b64 exec, vcc
    buffer_load_dwordx4 v[{O_B}:{O_B+3}], v{ST}, s[28:31], s46 offen
    s_mov_b64 exec, -1
    v_add_u32 v{t0}, s49, v{V_L16}
    ds_write_b128 v{t0}, v[{O_B}:{O_B+3}]
    s_add_u32 s61, s61, 1
    s_mov_b32 s62, 4
    v_lshlrev_b32 v{t2}, 5, v{V_G}
    v_add_u32 v{t2}, s49, v{t2}
    s_waitcnt lgkmcnt(0)
    """)
    OHB = (OH, OH2)

    def issue(buf):
        p(f"""
        ds_read_b128 v[{E0}:{E0+3}], v{t2}
        ds_read_b128 v[{E0+4}:{E0+7}], v{t2} offset:16
        v_add_u32 v{t2}, 128, v{t2}
        s_add_u32 s46, s54, {8192*buf}
        s_mov_b32 m0, s46
        """)
        for i in range(8):
            if i == 4:
                p(f"s_add_u32 s46, s54, {8192*buf+4096}")
                p("s_mov_b32 m0, s46")
            p.extend([gmad(i), gdma(i)])
        for k in range(4):
            o = OHB[buf] + k
            p(f"v_perm_b32 v{o}, v{E0+2*k+1}, v{E0+2*k}, s58")
            p(f"v_alignbit_b32 v{o}, v{o}, v{o}, v{V_ROT}")
            p(f"v_and_b32 v{o}, s57, v{o}")

    def consume(buf):
        for dt in range(8):
            for u in range(2):
                p(f"ds_read_b64_tr_b16 {vr(GF_A+4*dt+2*u,2,'a')}, v{TA+dt} offset:{8192*buf+4096*u}")
        for dt in range(8):
            d = vr(GA_A + 4 * dt, 4, 'a')
            p(mf(d, vr(GF_A + 4 * dt, 4, 'a'), vr(OHB[buf], 4), d))
    p("Lk2_g_loop:")
    issue(0)
    issue(1)
    p("s_waitcnt vmcnt(8)")
    consume(0)
    p("s_waitcnt vmcnt(0)")
    consume(1)
    p(f"""
    s_sub_u32 s62, s62, 1
    s_cmp_lg_u32 s62, 0
    s_cbranch_scc1 Lk2_g_loop
    s_branch Lk2_g_slow
    Lk2_g_done:
    s_nop 7
    v_lshlrev_b32 v{t0}, 16, v{DEG}
    v_mul_f32 v{t0}, 0.5, v{t0}
    s_lshl_b32 s46, s36, 12
    s_add_u32 s46, s46, {AGG_OFF}
    """)
    for r in range(32):
        p(f"v_accvgpr_read_b32 v{O_B+r}, a{GA_A+r}")
    for r in range(32):
        p(f"v_mul_f32 v{O_B+r}, v{O_B+r}, v{t0}")
    for k in range(16):
        p(f"v_cvt_pk_bf16_f32 v{O_B+32+k}, v{O_B+2*k}, v{O_B+2*k+1}")
    for kk in range(4):
        p(f"buffer_store_dwordx4 v[{O_B+32+4*kk}:{O_B+35+4*kk}], v{V_L16}, s[28:31], s46 offen offset:{1024*kk}")
    if STAMPS:
        p("Lk2_g_fin:")
    stamp(p, 7)
    if STAMPS:
        p("s_waitcnt vmcnt(0)")
    stamp(p, 8)
    stamp_flush(p, 1, 12)
    p("s_endpgm")


def k2_wprep(p):
    p(f"""
    s_load_dwordx2 s[4:5], s[0:1], {A_WMSG}
    s_load_dwordx2 s[6:7], s[0:1], {A_WV}
    s_load_dwordx2 s[8:9], s[0:1], {A_WOUT}
    s_load_dwordx2 s[12:13], s[0:1], {A_WS}
    v_and_b32 v1, 63, v0
    v_lshrrev_b32 v7, 6, v0
    v_lshrrev_b32 v2, 4, v1
    v_and_b32 v3, 15, v1
    v_readfirstlane_b32 s33, v7
    s_sub_u32 s34, s2, {K2_ATT}
    s_lshl_b32 s34, s34, 2
    s_add_u32 s34, s34, s33
    s_and_b32 s35, s34, 7
    s_waitcnt lgkmcnt(0)
    s_cmp_ge_u32 s34, 8
    s_cselect_b32 s4, s6, s4
    s_cselect_b32 s5, s7, s5
    """)
    srd(p, 16, 4, 32768)
    srd(p, 20, 8, 32768)
    srd(p, 28, 12, WS_SIZE)
    AFR = 16
    BFR = 144
    AC = 160
    p(f"""
    v_lshlrev_b32 v4, 8, v3
    v_lshl_add_u32 v4, v2, 4, v4
    s_mov_b32 s36, 0
    """)
    for t in range(8):
        for kk in range(4):
            b = AFR + (t * 4 + kk) * 4
            p(f"buffer_load_dwordx4 v[{b}:{b+3}], v4, s[16:19], s36 offen offset:{64*kk}")
        p("s_add_u32 s36, s36, 4096")
    p(f"""
    v_lshrrev_b32 v5, 2, v3
    v_lshlrev_b32 v5, 3, v5
    v_and_b32 v6, 3, v3
    v_add_u32 v5, v5, v6
    v_lshlrev_b32 v5, 1, v5
    v_lshl_add_u32 v5, v2, 11, v5
    s_lshr_b32 s36, s35, 1
    s_lshl_b32 s36, s36, 6
    s_and_b32 s37, s35, 1
    s_lshl_b32 s37, s37, 3
    s_add_u32 s36, s36, s37
    """)
    for kk in range(4):
        p(f"s_add_u32 s37, s36, {8192*kk}")
        for x in range(8):
            p(f"buffer_load_ushort v{AC+8*kk+x}, v5, s[20:23], s37 offen offset:{256*x}")
    for k in range(16):
        p(f"v_lshl_or_b32 v{BFR+k}, v{AC+2*k+1}, 16, v{AC+2*k}")
    for t in range(8):
        d = vr(AC + 4 * t, 4)
        for kk in range(4):
            b = AFR + (t * 4 + kk) * 4
            p(mf(d, vr(b, 4), vr(BFR + 4 * kk, 4), '0' if kk == 0 else d))
    for c in range(4):
        p(f"v_add_f32 v{200+c}, v{AC+c}, v{AC+4+c}")
    for k in range(2, 8):
        for c in range(4):
            p(f"v_add_f32 v{200+c}, v{200+c}, v{AC+4*k+c}")
    p("""
    v_add_f32 v200, v200, v201
    v_add_f32 v202, v202, v203
    v_add_f32 v200, v200, v202
    """)
    allreduce_g(p, 200, 201)
    bcast_g3(p, AC + 31, 202, 201)
    p(f"""
    v_mul_f32 v202, {hexf((1.0+CH)/RT128)}, v202
    v_mul_f32 v200, {hexf(-CH/RT128)}, v200
    v_add_f32 v200, v200, v202
    v_cmp_eq_u32 s[42:43], 3, v2
    """)
    for k in range(32):
        p(f"v_add_f32 v{AC+k}, v{AC+k}, v200")
    p(f"v_cndmask_b32 v{AC+31}, v{AC+31}, 0, s[42:43]")
    for k in range(16):
        p(f"v_cvt_pk_bf16_f32 v{16+k}, v{AC+2*k}, v{AC+2*k+1}")
    p(f"""
    v_lshlrev_b32 v4, 4, v1
    s_lshl_b32 s36, s34, 12
    s_add_u32 s36, s36, {WIMG_OFF}
    """)
    for kk in range(4):
        p(f"buffer_store_dwordx4 v[{16+4*kk}:{19+4*kk}], v4, s[28:31], s36 offen offset:{1024*kk}")
    p("s_endpgm")


def gen_k2():
    mid, tail, drain = gen_loop_variants()
    s = f"""  s_cmp_ge_u32 s2, {K2_NWG}
  s_cbranch_scc1 Lk2_exit
  s_cmp_ge_u32 s2, {K2_ATT}
  s_cbranch_scc1 Lk2_wprep
"""
    a = Prog()
    k2_setup(a)
    k2_prologue(a)
    s += emit(a.finish())
    s += ".p2align 6\nLk2_loop:\n" + emit(mid) + "  s_cbranch_scc1 Lk2_loop\n"
    if STAMPS:
        z = Prog()
        stamp(z, 11, True)
        s += emit(z.ins)
    s += "  s_cmp_lg_u32 s34, 4\n  s_cbranch_scc1 Lk2_drain\n"
    b = Prog()
    k2_tail_setup(b)
    s += emit(b.finish()) + emit(tail)
    s += "Lk2_drain:\n" + emit(drain) + "  s_nop 7\n  s_waitcnt lgkmcnt(0)\n"
    c = Prog()
    k2_epilogue(c)
    k2_maxpass(c)
    c("s_branch Lk2_run")
    s += emit(c.finish())
    d = Prog()
    k2_gather(d)
    s += emit(d.finish())
    e = Prog()
    k2_wprep(e)
    s += "Lk2_wprep:\n" + emit(e.finish())
    s += "Lk2_exit:\n  s_endpgm\n"
    return s


if __name__ == '__main__':
    mid, tail, drain = gen_loop_variants()
    print(emit(mid))
```

```python
from common import *

def gen_diag(specs, back, spin=-1):
    p = Prog()
    p(f"""
    s_load_dwordx2 s[12:13], s[0:1], {A_WS}
    s_load_dwordx2 s[14:15], s[0:1], {A_DBG}
    v_lshlrev_b32 v1, 6, v0
    s_waitcnt lgkmcnt(0)
    s_sub_u32 s14, s14, {back}
    s_subb_u32 s15, s15, 0
    """)
    srd(p, 28, 12, WS_SIZE)
    srd(p, 24, 14, 256)
    for n, (kern, idx, first, nrec, ismax) in enumerate(specs):
        op = 'max' if ismax else 'min'
        rounds = (nrec + 63) // 64
        for r in range(rounds):
            base = STAMP_OFF + kern * 0x20000 + (first + 64 * r) * 64 + idx * 4
            if r == rounds - 1 and nrec % 64:
                base -= (64 - nrec % 64) * 64
            p(f"s_mov_b32 s40, {base}")
            p(f"buffer_load_dword v{8+r}, v1, s[28:31], s40 offen")
        for r in range(1, rounds):
            p(f"v_{op}_u32 v8, v8, v{8+r}")
        p("s_nop 1")
        p("v_readlane_b32 s41, v8, 0")
        for l in range(1, 64):
            p(f"v_readlane_b32 s42, v8, {l}")
            p(f"s_{op}_u32 s41, s41, s42")
        if n == 0:
            p("s_mov_b32 s43, s41")
        else:
            p("s_sub_u32 s41, s41, s43")
        if n == spin:
            p("s_lshl_b32 s50, s41, 1")
        p(f"""
        v_mov_b32 v2, s41
        v_mov_b32 v3, {4*n}
        buffer_store_dword v2, v3, s[24:27], 0 offen
        s_waitcnt vmcnt(0)
        """)
    if spin > 0:
        p("""
        s_min_u32 s50, s50, 40000
        s_memrealtime s[52:53]
        s_waitcnt lgkmcnt(0)
        Ldiag_spin:
        s_memrealtime s[54:55]
        s_waitcnt lgkmcnt(0)
        s_sub_u32 s56, s54, s52
        s_cmp_lt_u32 s56, s50
        s_cbranch_scc1 Ldiag_spin
        """)
    return "  s_cmp_ge_u32 s2, 1\n  s_cbranch_scc1 Ldiag_exit\n" + emit(p.finish()) + "Ldiag_exit:\n  s_endpgm\n"
```

```python
from common import *

K1_NWG = G + 196
K1_LDS = 65536
K1_NREC = K1_NWG * 4


def bf16_round(p, v, t):
    p(f"""
    v_cvt_pk_bf16_f32 v{t}, v{v}, v{v}
    v_lshlrev_b32 v{v}, 16, v{t}
    """)


def k1_ln(p):
    stamp(p, 0)
    p(f"""
    s_load_dwordx2 s[4:5], s[0:1], {A_X}
    s_load_dwordx4 s[8:11], s[0:1], {A_WQ}
    s_load_dwordx2 s[12:13], s[0:1], {A_WS}
    v_and_b32 v1, 63, v0
    v_lshrrev_b32 v7, 6, v0
    v_lshrrev_b32 v2, 4, v1
    v_and_b32 v3, 15, v1
    v_readfirstlane_b32 s33, v7
    s_sub_u32 s34, s2, {G}
    s_lshl_b32 s34, s34, 2
    s_waitcnt lgkmcnt(0)
    s_add_u32 s34, s34, s33
    s_lshl_b32 s35, s34, 12
    """)
    srd(p, 16, 4, N * 256)
    srd(p, 20, 8, 32768)
    srd(p, 24, 10, 32768)
    srd(p, 28, 12, WS_SIZE)
    p(f"""
    v_lshlrev_b32 v4, 8, v3
    v_lshl_add_u32 v4, v2, 4, v4
    """)
    for ks in range(4):
        p(f"buffer_load_dwordx4 v[{8+4*ks}:{11+4*ks}], v4, s[16:19], s35 offen offset:{64*ks}")
    p(f"""
    v_lshlrev_b32 v5, 2, v2
    v_xor_b32 v5, v5, v3
    v_lshlrev_b32 v5, 4, v5
    v_lshl_add_u32 v5, v2, 8, v5
    s_lshl_b32 s36, s33, 13
    s_mov_b32 m0, s36
    s_add_u32 s37, s36, 4096
    """)
    for j in range(4):
        p(f"buffer_load_dwordx4 v5, s[20:23], s36 offen offset:{1024*j} lds")
    p("s_mov_b32 m0, s37")
    for j in range(4):
        p(f"buffer_load_dwordx4 v5, s[20:23], s37 offen offset:{1024*j} lds")
    p(f"""
    s_lshl_b32 s38, s33, 2
    v_xor_b32 v6, v3, v2
    v_xor_b32 v6, s38, v6
    v_lshlrev_b32 v6, 4, v6
    v_lshl_add_u32 v6, v2, 8, v6
    s_lshl_b32 s38, s33, 11
    """)
    for a in range(4):
        p(f"""
        s_add_u32 s39, s38, {8192*a}
        s_add_u32 s40, s39, 32768
        s_mov_b32 m0, s40
        s_nop 0
        buffer_load_dwordx4 v6, s[24:27], s39 offen lds
        buffer_load_dwordx4 v6, s[24:27], s39 offen offset:1024 lds
        """)
    if STAMPS:
        p("s_waitcnt vmcnt(16)")
        stamp(p, 1)
    F = 24
    for k in range(16):
        p(f"v_lshlrev_b32 v{F+2*k}, 16, v{8+k}")
        p(f"v_and_b32 v{F+2*k+1}, 0xffff0000, v{8+k}")
    for c in range(4):
        p(f"v_add_f32 v{200+c}, v{F+c}, v{F+4+c}")
    for k in range(2, 8):
        for c in range(4):
            p(f"v_add_f32 v{200+c}, v{200+c}, v{F+4*k+c}")
    p("""
    v_add_f32 v200, v200, v201
    v_add_f32 v202, v202, v203
    v_add_f32 v200, v200, v202
    """)
    allreduce_g(p, 200, 201)
    p(f"v_mul_f32 v200, {hexf(1.0/128)}, v200")
    for k in range(32):
        p(f"v_sub_f32 v{F+k}, v{F+k}, v200")
    for c in range(4):
        p(f"v_mul_f32 v{200+c}, v{F+c}, v{F+c}")
    for k in range(1, 8):
        for c in range(4):
            p(f"v_fmac_f32 v{200+c}, v{F+4*k+c}, v{F+4*k+c}")
    p("""
    v_add_f32 v200, v200, v201
    v_add_f32 v202, v202, v203
    v_add_f32 v200, v200, v202
    """)
    allreduce_g(p, 200, 201)
    p(f"v_mul_f32 v200, {hexf(1.0/128)}, v200")
    bf16_round(p, 200, 201)
    p(f"v_add_f32 v200, {hexf(1e-5)}, v200")
    bf16_round(p, 200, 201)
    p("v_sqrt_f32 v200, v200")
    bf16_round(p, 200, 201)
    p("v_rcp_f32 v200, v200")
    for k in range(32):
        p(f"v_mul_f32 v{F+k}, v{F+k}, v200")
    HB = 56
    for k in range(16):
        p(f"v_cvt_pk_bf16_f32 v{HB+k}, v{F+2*k}, v{F+2*k+1}")
    bcast_g3(p, F + 31, 202, 201)
    p(f"v_mul_f32 v202, {hexf(CH)}, v202")
    for k in range(32):
        p(f"v_add_f32 v{F+k}, v{F+k}, v202")
    p(f"""
    v_cmp_eq_u32 s[42:43], 3, v2
    v_mov_b32 v203, 1.0
    v_cndmask_b32 v{F+31}, v{F+31}, v203, s[42:43]
    """)
    HT = 72
    for k in range(16):
        p(f"v_cvt_pk_bf16_f32 v{HT+k}, v{F+2*k}, v{F+2*k+1}")
    p(f"""
    v_and_b32 v204, 1, v2
    v_mul_u32_u24 v204, 12, v204
    v_xor_b32 v204, v204, v3
    v_lshlrev_b32 v204, 4, v204
    v_lshl_add_u32 v204, v2, 8, v204
    s_add_u32 s44, s35, {KIMG_OFF}
    s_add_u32 s45, s35, {HROW_OFF}
    s_add_u32 s46, s35, {QIMG_OFF}
    """)
    for ks in range(4):
        p(f"buffer_store_dwordx4 v[{HT+4*ks}:{HT+4*ks+3}], v204, s[28:31], s44 offen offset:{1024*ks}")
    for ks in range(4):
        p(f"buffer_store_dwordx4 v[{HT+4*ks}:{HT+4*ks+3}], v4, s[28:31], s45 offen offset:{64*ks}")
    p(f"""
    v_bfe_u32 v205, v1, 2, 2
    v_and_b32 v206, 3, v1
    v_lshl_add_u32 v207, v2, 3, v205
    v_lshlrev_b32 v207, 8, v207
    v_lshl_add_u32 v207, v206, 4, v207
    v_lshl_add_u32 v208, v205, 6, v207
    v_xor_b32 v209, 64, v208
    v_xor_b32 v210, 128, v208
    v_xor_b32 v211, 192, v208
    """)
    p(f"""
    v_lshrrev_b32 v212, 2, v3
    v_lshlrev_b32 v212, 3, v212
    v_and_b32 v213, 3, v3
    v_add_u32 v212, v212, v213
    v_lshlrev_b32 v212, 8, v212
    v_xor_b32 v213, v2, v3
    v_lshl_add_u32 v212, v213, 4, v212
    v_add_u32 v212, 32768, v212
    v_xor_b32 v213, 64, v212
    v_xor_b32 v214, 128, v212
    v_xor_b32 v215, 192, v212
    """)
    p("""
    s_waitcnt vmcnt(8)
    s_barrier
    """)
    stamp(p, 2)
    QA = 88
    AF = 168

    def rd1(t):
        b = AF + 16 * (t & 1)
        for ks in range(4):
            for u in range(2):
                p(f"ds_read_b64_tr_b16 v[{b+4*ks+2*u}:{b+4*ks+2*u+1}], v{208+(t>>1)} offset:{8192*ks+1024*u+8*(t&1)}")
    rd1(0)
    for t in range(8):
        if t < 7:
            rd1(t + 1)
        b = AF + 16 * (t & 1)
        for ks in range(4):
            c = '0' if ks == 0 else f'v[{QA+4*t}:{QA+4*t+3}]'
            p(f"v_mfma_f32_16x16x32_bf16 v[{QA+4*t}:{QA+4*t+3}], v[{b+4*ks}:{b+4*ks+3}], v[{HB+4*ks}:{HB+4*ks+3}], {c}")
    UA = 136
    QF = 120

    def rd2(t):
        b = AF + 16 * (t & 1)
        for kk in range(4):
            p(f"ds_read_b128 v[{b+4*kk}:{b+4*kk+3}], v{212+kk} offset:{8192*(t>>1)+1024*(t&1)}")
    rd2(0)
    for k in range(16):
        p(f"v_cvt_pk_bf16_f32 v{QF+k}, v{QA+2*k}, v{QA+2*k+1}")
    for t in range(8):
        if t < 7:
            rd2(t + 1)
        b = AF + 16 * (t & 1)
        for kk in range(4):
            c = '0' if kk == 0 else f'v[{UA+4*t}:{UA+4*t+3}]'
            p(f"v_mfma_f32_16x16x32_bf16 v[{UA+4*t}:{UA+4*t+3}], v[{b+4*kk}:{b+4*kk+3}], v[{QF+4*kk}:{QF+4*kk+3}], {c}")
    for c in range(4):
        p(f"v_add_f32 v{200+c}, v{UA+c}, v{UA+4+c}")
    for k in range(2, 8):
        for c in range(4):
            p(f"v_add_f32 v{200+c}, v{200+c}, v{UA+4*k+c}")
    p("""
    v_add_f32 v200, v200, v201
    v_add_f32 v202, v202, v203
    v_add_f32 v200, v200, v202
    """)
    allreduce_g(p, 200, 201)
    bcast_g3(p, UA + 31, 202, 201)
    k1c = (1.0 + CH) / RT128 * QSCALE
    k2c = -CH / RT128 * QSCALE
    p(f"""
    v_mul_f32 v202, {hexf(k1c)}, v202
    v_mul_f32 v200, {hexf(k2c)}, v200
    v_add_f32 v200, v200, v202
    s_mov_b32 s47, {hexf(QSCALE)}
    """)
    for k in range(32):
        p(f"v_fma_f32 v{UA+k}, v{UA+k}, s47, v200")
    p(f"v_cndmask_b32 v{UA+31}, v{UA+31}, 0, s[42:43]")
    for k in range(16):
        p(f"v_cvt_pk_bf16_f32 v{QF+k}, v{UA+2*k}, v{UA+2*k+1}")
    p("v_lshlrev_b32 v204, 4, v1")
    for ks in range(4):
        p(f"buffer_store_dwordx4 v[{QF+4*ks}:{QF+4*ks+3}], v204, s[28:31], s46 offen offset:{1024*ks}")
    stamp(p, 3)
    if STAMPS:
        p("s_waitcnt vmcnt(0)")
    stamp(p, 4)
    stamp_flush(p, 0, 5)
    p("s_endpgm")


def k1_bin(p):
    NR = 7
    stamp(p, 0)
    STG = 4096
    TOT = 4096 + 10240 * 4
    NO = 9
    p(f"""
    s_load_dwordx4 s[4:7], s[0:1], {A_SRC}
    s_load_dwordx2 s[12:13], s[0:1], {A_WS}
    v_lshlrev_b32 v1, 4, v0
    v_lshrrev_b32 v7, 6, v0
    v_mov_b32 v8, 0
    v_mov_b32 v9, 0
    v_mov_b32 v10, 0
    v_mov_b32 v11, 0
    v_readfirstlane_b32 s33, v7
    ds_write_b128 v1, v[8:11]
    s_mul_i32 s34, s2, {EPW*4}
    v_mov_b32 v12, 0xffff
    v_mov_b32 v13, 0xffff
    v_mov_b32 v14, 0xffff
    v_mov_b32 v15, 0xffff
    s_waitcnt lgkmcnt(0)
    """)
    srd(p, 16, 4, E * 4)
    srd(p, 20, 6, E * 4)
    srd(p, 28, 12, WS_SIZE)
    p(f"""
    v_and_b32 v2, 0xf0, v1
    s_lshl_b32 s35, s2, 8
    s_add_u32 s35, s35, {CNT_OFF}
    buffer_store_dwordx4 v[8:11], v2, s[28:31], s35 offen
    """)
    DS = 16
    SR = 44
    RK = 72
    BA = 100
    for r in range(NR):
        p(f"s_add_u32 s35, s34, {4096*r}")
        p(f"buffer_load_dwordx4 v[{DS+4*r}:{DS+4*r+3}], v1, s[20:23], s35 offen")
    for r in range(NR):
        p(f"s_add_u32 s35, s34, {4096*r}")
        p(f"buffer_load_dwordx4 v[{SR+4*r}:{SR+4*r+3}], v1, s[16:19], s35 offen")
    for r in range(NO):
        p(f"ds_write_b128 v1, v[12:15] offset:{STG+4096*r}")
    p("""
    s_waitcnt lgkmcnt(0)
    s_barrier
    v_mov_b32 v2, 1
    v_lshlrev_b32 v3, 2, v0
    """)
    for r in range(NR):
        for k in range(4):
            e = 4 * r + k
            p(f"v_lshrrev_b32 v{BA+e}, 4, v{DS+e}")
            p(f"v_lshlrev_b32 v{BA+e}, 2, v{BA+e}")
            if r == NR - 1:
                p(f"""
                v_cmp_gt_u32 vcc, {EPW - 1024*(NR-1) - k}, v3
                v_mov_b32 v4, {783*4}
                v_cndmask_b32 v{BA+e}, v4, v{BA+e}, vcc
                """)
            p(f"v_min_u32 v{BA+e}, {783*4}, v{BA+e}")
            p(f"ds_add_rtn_u32 v{RK+e}, v{BA+e}, v2")
    stamp(p, 1)
    p("s_mov_b32 s43, 0x10000")
    for e in range(4 * NR):
        p(f"v_and_b32 v{DS+e}, 15, v{DS+e}")
        p(f"v_lshl_or_b32 v{DS+e}, s43, v{DS+e}, v{SR+e}")
    p(f"""
    s_waitcnt lgkmcnt(0)
    s_barrier
    ds_read_b128 v[8:11], v1
    v_add_u32 v8, 3, v8
    v_add_u32 v9, 3, v9
    v_add_u32 v10, 3, v10
    v_add_u32 v11, 3, v11
    v_and_b32 v8, -4, v8
    v_and_b32 v9, -4, v9
    v_and_b32 v10, -4, v10
    v_and_b32 v11, -4, v11
    v_add_u32 v13, v8, v9
    v_add_u32 v14, v13, v10
    v_add_u32 v15, v14, v11
    v_mov_b32 v5, v15
    v_add_u32_dpp v5, v5, v5 row_shr:1 row_mask:0xf bank_mask:0xf
    v_add_u32_dpp v5, v5, v5 row_shr:2 row_mask:0xf bank_mask:0xf
    v_add_u32_dpp v5, v5, v5 row_shr:4 row_mask:0xf bank_mask:0xf
    v_add_u32_dpp v5, v5, v5 row_shr:8 row_mask:0xf bank_mask:0xf
    v_add_u32_dpp v5, v5, v5 row_bcast:15 row_mask:0xa bank_mask:0xf
    v_add_u32_dpp v5, v5, v5 row_bcast:31 row_mask:0xc bank_mask:0xf
    v_readlane_b32 s36, v5, 63
    s_lshl_b32 s37, s33, 2
    s_add_u32 s37, s37, {TOT}
    v_mov_b32 v6, s37
    v_mov_b32 v4, s36
    ds_write_b32 v6, v4
    v_mov_b32 v6, {TOT}
    s_waitcnt lgkmcnt(0)
    s_barrier
    ds_read_b128 v[128:131], v6
    s_cmp_gt_u32 s33, 0
    s_cselect_b32 s38, -1, 0
    s_cmp_gt_u32 s33, 1
    s_cselect_b32 s39, -1, 0
    s_cmp_gt_u32 s33, 2
    s_cselect_b32 s40, -1, 0
    v_sub_u32 v5, v5, v15
    v_and_b32 v128, s38, v128
    v_and_b32 v129, s39, v129
    v_and_b32 v130, s40, v130
    v_add3_u32 v5, v5, v128, v129
    v_add_u32 v132, v5, v130
    v_add_u32 v133, v132, v8
    v_add_u32 v134, v132, v13
    v_add_u32 v135, v132, v14
    ds_write_b128 v1, v[132:135]
    s_lshl_b32 s41, s2, 12
    s_add_u32 s41, s41, {OFFT_OFF}
    buffer_store_dwordx4 v[132:135], v1, s[28:31], s41 offen
    s_waitcnt lgkmcnt(0)
    s_barrier
    """)
    stamp(p, 2)
    for e in range(4 * NR):
        p(f"ds_read_b32 v{BA+e}, v{BA+e}")
    for e in range(4 * NR):
        p(f"v_add_lshl_u32 v{BA+e}, v{BA+e}, v{RK+e}, 2")
        p(f"ds_write_b32 v{BA+e}, v{DS+e} offset:{STG}")
    p(f"""
    s_waitcnt lgkmcnt(0)
    s_barrier
    s_mul_i32 s42, s2, {ENT_STRIDE}
    s_add_u32 s42, s42, {ENT_OFF}
    """)
    for r in range(NO):
        p(f"ds_read_b128 v[{SR+4*r}:{SR+4*r+3}], v1 offset:{STG+4096*r}")
    for r in range(NO):
        p(f"s_add_u32 s35, s42, {4096*r}")
        p(f"buffer_store_dwordx4 v[{SR+4*r}:{SR+4*r+3}], v1, s[28:31], s35 offen")
    stamp(p, 3)
    if STAMPS:
        p("s_waitcnt vmcnt(0)")
    stamp(p, 4)
    stamp_flush(p, 0, 5)
    p("s_endpgm")


def gen_k1():
    h = Prog()
    h(f"""
    s_cmp_ge_u32 s2, {K1_NWG}
    s_cbranch_scc1 Lk1_exit
    s_cmp_ge_u32 s2, {G}
    s_cbranch_scc1 Lk1_ln
    """)
    a = Prog()
    k1_bin(a)
    b = Prog()
    k1_ln(b)
    body = emit(h.ins) + emit(a.finish()) + "Lk1_ln:\n" + emit(b.finish()) + "Lk1_exit:\n  s_endpgm\n"
    return body
```

```python
from common import *

K2_ATT = 245
K2_NWG = 249
NFULL = 39
LAG = 5
MARGIN = 32.0
MAPB = bool(int(os.environ.get('MAPB', '0')))
RING = 65536
STG_OFF = 65536
GW_OFF = 131072
GW_STRIDE = 7424
NULLQ = 6144
IDX = 6160
IDX_TRASH = 6160 + 4 * 290
MAXQ = 6
MAXTOT = 224
FLAG_OFF = GW_OFF + 4 * GW_STRIDE
LOG_OFF = FLAG_OFF + 64
K2_LDS = LOG_OFF + 1024
NSTAT = 6
NTILE = 195

V_LANE, V_G, V_I, V_L16 = 1, 2, 3, 4
V_KL, V_VL, V_KA, V_VA = 5, 6, 7, 8
V_T0, V_T1, V_T2, V_T3 = 9, 10, 11, 12
V_LA, V_LC, V_ROT = 13, 14, 15
O_B = 16
S_B = 144
P_B = 160
NM_B = 192
NM1_B = 208
NINF_B = 224
E0 = 208
LO = 216
TA = 220
OH = 228
OT = 232
AD = 236
ST, CN, PS, DEG = 238, 239, 240, 241
IX = 242
OH2 = 244
V_TK, V_ONE, V_AOFF, V_LG, V_TN = 244, 245, 246, 247, 236
AD8 = 248
Q_A = 0
K_A = 64
V_A = 128
GA_A = 192
GF_A = 224


def O(j, dt): return O_B + (j * 8 + dt) * 4
def Sr(s): return S_B + 4 * s
def Pr(j, k2): return P_B + j * 8 + k2 * 4
def NM(j): return NM_B + 4 * j
def Qf(j, ks): return Q_A + (j * 4 + ks) * 4
def Kf(s, ks): return K_A + (s * 4 + ks) * 4
def Vf(dt, k2): return V_A + (dt * 2 + k2) * 4


def mf(d, a, b, c):
    return f"v_mfma_f32_16x16x32_bf16 {d}, {a}, {b}, {c}"


def kread(s, ks, areg=V_KA):
    return I(f"ds_read_b128 {vr(Kf(s,ks),4,'a')}, v{areg} offset:{4096*s+1024*ks}", 'kread')


def vread(dt, k2, u):
    return I(f"ds_read_b64_tr_b16 {vr(Vf(dt,k2)+2*u,2,'a')}, v{V_VA} offset:{4096*(2*k2+u)+512*dt}", 'vread')


def build_iter(variant):
    NG = 128
    mf_l = [None] * NG
    fixed = [[] for _ in range(NG)]
    units = [2] * NG
    for p in range(16):
        j, s = divmod(p, 4)
        for ks in range(4):
            if ks == 0:
                c = vr(NM(j), 4)
                if variant == 'tail':
                    c = [vr(NM(j), 4), vr(NM1_B + 4 * j, 4), vr(NINF_B, 4), vr(NINF_B, 4)][s]
            else:
                c = vr(Sr(s), 4)
            mf_l[8 * p + ks] = I(mf(vr(Sr(s), 4), vr(Kf(s, ks), 4, 'a'), vr(Qf(j, ks), 4, 'a'), c), 'qk')
        pp = (p - LAG) % 16
        jp, a = divmod(pp, 4)
        prev = p < LAG
        n = 0
        for dt in (2 * a, 2 * a + 1):
            for k2 in (0, 1):
                mf_l[8 * p + 4 + n] = I(mf(vr(O(jp, dt), 4), vr(Vf(dt, k2), 4, 'a'), vr(Pr(jp, k2), 4), vr(O(jp, dt), 4)),
                                        'pv_prev' if prev else 'pv')
                n += 1
        q = (p - 1) % 16
        jq, sq = divmod(q, 4)
        tg = 'sm_prev' if p == 0 else 'sm'
        for r in range(4):
            fixed[8 * p + 2 * r].append(I(f"v_exp_f32 v{Sr(sq)+r}, v{Sr(sq)+r}", tg))
            units[8 * p + 2 * r] -= 2
        pd = Pr(jq, sq >> 1) + 2 * (sq & 1)
        fixed[8 * p + 3].append(I(f"v_cvt_pk_bf16_f32 v{pd}, v{Sr(sq)}, v{Sr(sq)+1}", tg))
        units[8 * p + 3] -= 1
        fixed[8 * p + 7].append(I(f"v_cvt_pk_bf16_f32 v{pd+1}, v{Sr(sq)+2}, v{Sr(sq)+3}", tg))
        units[8 * p + 7] -= 1
    LATM = 9
    BAR = 95
    placed = [[] for _ in range(NG)]

    def sched(mov, start):
        pend = sorted(mov, key=lambda m: (m[1], m[0]))
        for ga in range(start, start + NG):
            g = ga % NG
            while units[g] > 0:
                cand = [m for m in pend if m[0] <= ga and m[2] <= units[g]]
                if not cand:
                    break
                m = cand[0]
                assert ga <= m[1], ('deadline miss', ga, m)
                pend.remove(m)
                placed[g].append(m[3])
                units[g] -= m[2]
        assert not pend, pend
    units[BLK] = 0
    mov = []
    for i, g in enumerate(KVPOS):
        mov.append((g, g, 1, I(f"buffer_load_dwordx4 v{V_L16}, s[28:31], s40 offen offset:{1024*i} lds", 'dma')))
    for i, g in enumerate(GPOS):
        mov.append((g, g, 1, gdma8(i)))
    sched(mov, 0)
    mov = [(1, 11, 1, I(f"v_add_u32 v{V_VA}, s43, v{V_VL}", 'va'))]
    for a in range(4):
        n = 0
        for dt in (2 * a, 2 * a + 1):
            for k2 in (0, 1):
                last = 8 * ((12 + LAG + a) - 16) + 4 + n
                nxt = 8 * (LAG + a) + 4 + n
                for u in range(2):
                    mov.append((last, nxt - LATM, 1, vread(dt, k2, u)))
                n += 1
    for s in range(4):
        for ks in range(4):
            mov.append((max(8 * (12 + s) + ks, BAR + 1), 127, 1, kread(s, ks)))
    sched(mov, 0)
    mov = []
    mov.append((128 + 4, 128 + 8, 1, I(f"v_add_u32 v{V_LC}, s63, v{V_LA}", 'g')))
    mov.append((128 + 9, 128 + 12, 1, I(f"ds_read_b64 v[{IX}:{IX+1}], v{V_LC}", 'g')))
    mov.append((57, 60, 1, I(f"ds_read_b128 v[{E0}:{E0+3}], v{IX}", 'g')))
    mov.append((57, 60, 1, I(f"ds_read_b128 v[{E0+4}:{E0+7}], v{IX+1}", 'g')))
    k = 0
    for u in range(2):
        for dt in range(8):
            mov.append((58 if u == 0 else 69, 64 + k, 1, I(f"ds_read_b64_tr_b16 {vr(GF_A+4*dt+2*u,2,'a')}, v{TA+dt} offset:{4096*u}", 'g')))
            k += 1
    tk = I(f"ds_add_u32 v{V_LG}, v{V_TK}", 'tk')
    tk.wr = [('x', 'log')]
    mov.append((80, 81, 1, tk))
    mov.append((82, 83, 1, I(f"v_mov_b32 v{V_TK}, v{V_ONE}", 'tk')))
    mov.append((BAR + 1, 112, 1, I(f"ds_read_b32 v{V_TN}, v{V_LG}", 'tk')))
    mov.append((113, 127, 1, I(f"v_add_u32 v{V_LG}, 4, v{V_LG}", 'tk')))
    mov.append((128 + 2, 128 + 4, 1, I(f"v_readfirstlane_b32 s69, v{V_TN}", 'tk')))
    mov.append((80, 95, 1, I(f"v_add_u32 v{V_KA}, s42, v{V_KL}", 'ka')))
    for k in range(4):
        mov.append((87, 150 + k, 1, I(f"v_and_b32 v{OH+k}, s57, v{OT+k}", 'g')))
    sched(mov, 54)
    needs = {84: set(('v', E0 + k) for k in range(8)) | set(('a', GF_A + k) for k in range(32)),
             94: {('x', 'log')}, 127: {('v', V_TN)}}
    scal = [[] for _ in range(NG)]
    sops = [
        (0, 0, I("s_mov_b32 m0, s41", 'dma')),
        (6, 7, I("s_cmp_lt_u32 s68, 200", 'tk')),
        (8, 12, I("s_cselect_b32 s69, s69, 0xff", 'tk')),
        (14, 15, I("s_lshl_b32 s40, s69, 14", 'dma')),
        (16, 17, I("s_add_u32 s40, s40, s39", 'dma')),
        (28, 30, I(f"s_cmp_lt_u32 s69, {NTILE}", 'tk')),
        (31, 33, I("s_addc_u32 s44, s44, 0", 'tk')),
        (34, 36, I(f"s_cmp_eq_u32 s69, {NTILE}", 'tk')),
        (37, 39, I("s_addc_u32 s67, s67, 0", 'tk')),
        (40, 42, I("s_add_u32 s68, s68, 1", 'tk')),
        (18, 21, I("s_add_u32 s41, s41, 16384", 'dma')),
        (24, 27, I("s_and_b32 s41, s41, 0xffff", 'dma')),
        (50, 53, I("s_add_u32 s42, s42, 16384", 'ka')),
        (54, 56, I("s_and_b32 s42, s42, 0xffff", 'ka')),
        (57, 57, I("s_waitcnt vmcnt(8)", 'bar')),
        (68, 68, I("s_waitcnt vmcnt(4)", 'bar')),
        (60, 64, I("s_add_u32 s63, s63, 32", 'g')),
        (65, 67, I("s_min_u32 s63, s63, s64", 'g')),
        (70, 76, I("s_mov_b32 m0, s54", 'g')),
        (80, 83, I("s_cmp_lg_u32 s62, 0", 'g')),
        (BAR, BAR, I("s_barrier", 'bar')),
        (98, 101, I("s_mov_b32 s43, s42", 'va')),
        (GPOS[3] + 1, GPOS[4] - 1, I("s_mov_b32 m0, s65", 'g')),
        (119, 121, I("s_sub_u32 s44, s44, 1", 'loop')),
        (122, 126, I("s_cmp_lg_u32 s44, 0", 'loop')),
    ]
    for lo, hi, ins in sops:
        g = next((g for g in range(lo, hi + 1) if g not in WAITGAPS and not scal[g]), lo)
        scal[g].append(ins)
    gaps = []
    for g in range(NG):
        vec = [x for x in placed[g] if x.kind != 'valu'] + [x for x in placed[g] if x.kind == 'valu'] + fixed[g]
        gaps.append([mf_l[g], scal[g], vec])
    if variant == 'drain':
        keep = lambda i: i.tag in ('pv_prev', 'sm_prev')
        needs = {}
    elif variant == 'tail':
        keep = lambda i: i.tag in ('qk', 'pv', 'pv_prev', 'sm', 'sm_prev', 'vread', 'va')
        needs = {}
    else:
        keep = lambda i: True
    out = []
    for m, sc, ve in gaps:
        out.append([m if keep(m) else None, [x for x in sc if keep(x)], [x for x in ve if keep(x)]])
    if variant in ('mid', 'midskip'):
        out[BLK][2] = gblock(variant == 'mid')
    return out, needs


BLK = 85
ATOMFLAGS = os.environ.get('ATOMFLAGS', 'sc0')


def gmad(i):
    return I(f"v_mad_u32_u16 v{AD+(i&1)}, v{E0+i}, s55, v{LO+(i&3)}", 'g')


def gdma(i):
    return I(f"buffer_load_dwordx4 v{AD+(i&1)}, s[20:23], 0 offen offset:{1024*(i&3)} lds", 'g')


KVPOS = (1, 5, 9, 13)
GPOS = (87, 93, 99, 103, 109, 115, 119, 125)


def gmad8(i):
    return I(f"v_mad_u32_u16 v{AD8+i}, v{E0+i}, s55, v{LO+(i&3)}", 'g')


def gdma8(i):
    return I(f"buffer_load_dwordx4 v{AD8+i}, s[20:23], 0 offen offset:{1024*(i&3)} lds", 'g')


def gblock(on):
    r = [I(f"buffer_atomic_add v{V_TK}, v{V_AOFF}, s[28:31], 0 offen {ATOMFLAGS}", 'tk'), I("s_cbranch_scc0 Lk2_gskip", 'g')]
    if on:
        gm = lambda dt: I(mf(vr(GA_A + 4 * dt, 4, 'a'), vr(GF_A + 4 * dt, 4, 'a'), vr(OH, 4), vr(GA_A + 4 * dt, 4, 'a')), 'gm')
        pm = lambda k: I(f"v_perm_b32 v{OT+k}, v{E0+2*k+1}, v{E0+2*k}, s58", 'g')
        al = lambda k: I(f"v_alignbit_b32 v{OT+k}, v{OT+k}, v{OT+k}, v{V_ROT}", 'g')
        r += [gm(0), gmad8(0), gmad8(1), gm(1), gmad8(2), gmad8(3), gm(2), gmad8(4), gmad8(5), gm(3), gmad8(6), gmad8(7),
              gm(4), I("s_sub_u32 s62, s62, 1", 'g'), pm(0), pm(1), gm(5), pm(2), pm(3), gm(6), al(0), al(1), gm(7), al(2), al(3)]
    r += [I("Lk2_gskip:")]
    return r


WAITGAPS = set()


def place_waits(gaps, needs, entry, nextm, AGE=7):
    issued = list(entry)
    done = 0
    flat = []
    n = len(gaps)
    wg = set()

    def need_for(t):
        q = -1
        for k in range(done, len(issued)):
            if issued[k][0] & t:
                q = k
        return q
    touch = lambda i: set(i.rd) | set(i.wr)
    for g in range(n):
        m, sc, ve = gaps[g]
        if m is not None:
            assert need_for(touch(m)) < 0, ('late ds', g, m)
            flat.append(m)
        nx = gaps[g + 1][0] if g + 1 < n else nextm
        t = set(needs.get(g, set()))
        if nx is not None:
            t |= touch(nx)
        q = need_for(t)
        if q >= 0:
            for k in range(q, len(issued)):
                if issued[k][1] <= g - AGE:
                    q = k
            N = min(15, len(issued) - 1 - q)
            flat.append(I(f"s_waitcnt lgkmcnt({N})", 'w'))
            wg.add(g)
            done = len(issued) - N
        flat.extend(sc)
        for x in ve:
            if x.kind not in ('label', 'dir'):
                assert need_for(touch(x)) < 0, ('late ds', g, x)
            if x.kind == 'ds':
                issued.append((set(x.wr), g))
            flat.append(x)
    return flat, [(r, g - n) for r, g in issued[done:]], wg


def iter_code(variant, entry, pre):
    gaps, needs = build_iter(variant)
    nextm = None if variant in ('drain', 'tail') else gaps[0][0]
    flat, ex, wg = place_waits(gaps, needs, entry, nextm)
    fixed, problems = pad_hazards(flat, fix=True, pre=pre)
    return fixed, problems, ex, wg


def gen_loop_variants():
    WAITGAPS.clear()
    _, _, ex, _ = iter_code('mid', [], [])
    _, _, ex2, wg = iter_code('mid', ex, [])
    assert ex == ex2
    WAITGAPS.update(wg)
    mid0, _, _, _ = iter_code('mid', ex, [])
    mid, prob, _, _ = iter_code('mid', ex, mid0[-30:])
    assert not prob, prob
    _, prob, _, _ = iter_code('midskip', ex, mid0[-30:])
    assert not prob, prob
    tail, _, ex3, _ = iter_code('tail', ex, mid[-30:])
    drain, _, _, _ = iter_code('drain', ex, mid[-30:])
    drain2, _, _, _ = iter_code('drain', ex3, tail[-30:])
    assert [x.text for x in drain] == [x.text for x in drain2]
    return mid, tail, drain


def k2_setup(p):
    stamp(p, 0)
    p(f"""
    s_load_dwordx2 s[12:13], s[0:1], {A_WS}
    s_load_dwordx2 s[14:15], s[0:1], {A_DEG}
    v_and_b32 v{V_LANE}, 63, v0
    v_lshrrev_b32 v{V_T0}, 6, v0
    v_lshrrev_b32 v{V_G}, 4, v{V_LANE}
    v_and_b32 v{V_I}, 15, v{V_LANE}
    v_readfirstlane_b32 s33, v{V_T0}
    v_lshlrev_b32 v{V_L16}, 4, v{V_LANE}
    """)
    p(f"""
    s_mul_i32 s35, s2, 13108
    s_lshr_b32 s35, s35, 16
    s_mul_i32 s3, s35, 5
    s_sub_u32 s34, s2, s3
    """)
    p(f"""
    s_mul_i32 s36, s33, {K2_ATT}
    s_add_u32 s36, s36, s2
    s_lshl_b32 s37, s35, 4
    s_lshl_b32 s3, s33, 2
    s_add_u32 s37, s37, s3
    s_mov_b32 s45, 0
    s_waitcnt lgkmcnt(0)
    """)
    srd(p, 28, 12, WS_SIZE)
    srd(p, 24, 14, N * 2)
    p(f"""
    s_add_u32 s16, s12, {HROW_OFF - 3072}
    s_addc_u32 s17, s13, 0
    """)
    srd(p, 20, 16, 12544 * 256 + 3072)
    p(f"""
    s_lshl_b32 s46, s36, 2
    s_add_u32 s46, s46, {OFFT_OFF}
    v_lshlrev_b32 v{V_T0}, 12, v{V_LANE}
    buffer_load_dwordx2 v[{ST}:{ST+1}], v{V_T0}, s[28:31], s46 offen
    s_lshl_b32 s46, s36, 5
    v_lshlrev_b32 v{V_T1}, 1, v{V_I}
    buffer_load_ushort v{DEG}, v{V_T1}, s[24:27], s46 offen
    s_lshl_b32 s39, s33, 12
    s_add_u32 s39, s39, {KIMG_OFF}
    s_mul_i32 s70, s34, {NSTAT}
    """)
    dma_tiles(p, 0, 1)
    p(f"""
    s_lshl_b32 s38, s37, 12
    s_add_u32 s38, s38, {QIMG_OFF}
    """)
    for j in range(4):
        for ks in range(4):
            p(f"buffer_load_dwordx4 {vr(Qf(j,ks),4,'a')}, v{V_L16}, s[28:31], s38 offen offset:{1024*ks}")
        if j < 3:
            p("s_add_u32 s38, s38, 4096")
    p(f"""
    v_and_b32 v{V_T0}, 1, v{V_G}
    v_mul_u32_u24 v{V_T0}, 12, v{V_T0}
    v_xor_b32 v{V_T0}, v{V_T0}, v{V_I}
    v_lshlrev_b32 v{V_T0}, 4, v{V_T0}
    v_lshl_add_u32 v{V_KL}, v{V_G}, 8, v{V_T0}
    v_lshrrev_b32 v{V_T0}, 2, v{V_LANE}
    v_bfe_u32 v{V_T1}, v{V_LANE}, 1, 1
    v_mul_u32_u24 v{V_T2}, 12, v{V_T1}
    v_xor_b32 v{V_T0}, v{V_T0}, v{V_T2}
    v_lshlrev_b32 v{V_T0}, 4, v{V_T0}
    v_lshl_add_u32 v{V_T0}, v{V_T1}, 8, v{V_T0}
    v_and_b32 v{V_T1}, 1, v{V_LANE}
    v_lshl_add_u32 v{V_VL}, v{V_T1}, 3, v{V_T0}
    s_mul_i32 s49, s33, {GW_STRIDE}
    s_add_u32 s49, s49, {GW_OFF}
    s_lshl_b32 s54, s33, 14
    s_add_u32 s54, s54, {STG_OFF}
    s_add_u32 s65, s54, 4096
    s_mov_b32 s55, 256
    s_mov_b32 s57, 0x40004000
    s_mov_b32 s58, 0x07060302
    s_mov_b32 s60, {ENT_OFF}
    """)


def dma_tiles(p, t0, t1):
    if t0 == 0:
        p(f"""
        s_lshl_b32 s40, s70, 14
        s_add_u32 s40, s40, s39
        s_lshl_b32 s41, s33, 12
        """)
    for t in range(t0, t1):
        p("s_mov_b32 m0, s41")
        p("s_nop 0")
        for i in range(4):
            p(f"buffer_load_dwordx4 v{V_L16}, s[28:31], s40 offen offset:{1024*i} lds")
        p("s_add_u32 s40, s40, 16384")
        p("s_add_u32 s41, s41, 16384")


def gather_consts(p):
    t0, t1, t2 = V_T0, V_T1, V_T2
    p(f"""
    v_and_b32 v{t0}, 1, v{V_G}
    v_lshlrev_b32 v{t0}, 3, v{t0}
    v_xor_b32 v{t1}, v{t0}, v{V_I}
    v_lshlrev_b32 v{t1}, 4, v{t1}
    """)
    for k in range(4):
        p(f"v_xor_b32 v{LO+k}, {32*k}, v{t1}")
        p(f"v_add_u32 v{LO+k}, {3072-1024*k}, v{LO+k}")
    p(f"""
    v_bfe_u32 v{t1}, v{V_LANE}, 2, 2
    v_lshl_add_u32 v{t2}, v{t1}, 2, v{V_G}
    v_lshlrev_b32 v{t2}, 8, v{t2}
    v_lshlrev_b32 v{t1}, 1, v{t1}
    v_xor_b32 v{t0}, v{t0}, v{t1}
    v_bfe_u32 v{t1}, v{V_LANE}, 1, 1
    v_xor_b32 v{t0}, v{t0}, v{t1}
    v_lshl_add_u32 v{t2}, v{t0}, 4, v{t2}
    v_and_b32 v{t1}, 1, v{V_LANE}
    v_lshl_add_u32 v{t2}, v{t1}, 3, v{t2}
    v_add_u32 v{t2}, s54, v{t2}
    """)
    for dt in range(8):
        p(f"v_xor_b32 v{TA+dt}, {32*dt}, v{t2}")
    p(f"v_add_u32 v{V_ROT}, 18, v{V_I}")


def gather_plan(p):
    t0, t1, t2 = V_T0, V_T1, V_T2
    p(f"""
    s_cmp_lt_u32 s36, {NBIN}
    s_cselect_b32 s46, {(EPW + 3) // 4}, 0
    v_sub_u32 v{CN}, v{ST+1}, v{ST}
    v_lshrrev_b32 v{CN}, 2, v{CN}
    v_min_u32 v{CN}, s46, v{CN}
    v_mov_b32 v{PS}, v{CN}
    v_add_u32_dpp v{PS}, v{PS}, v{PS} row_shr:1 row_mask:0xf bank_mask:0xf
    v_add_u32_dpp v{PS}, v{PS}, v{PS} row_shr:2 row_mask:0xf bank_mask:0xf
    v_add_u32_dpp v{PS}, v{PS}, v{PS} row_shr:4 row_mask:0xf bank_mask:0xf
    v_add_u32_dpp v{PS}, v{PS}, v{PS} row_shr:8 row_mask:0xf bank_mask:0xf
    v_add_u32_dpp v{PS}, v{PS}, v{PS} row_bcast:15 row_mask:0xa bank_mask:0xf
    v_add_u32_dpp v{PS}, v{PS}, v{PS} row_bcast:31 row_mask:0xc bank_mask:0xf
    v_mul_u32_u24 v{t0}, {ENT_STRIDE}, v{V_LANE}
    v_readlane_b32 s59, v{PS}, 63
    v_lshl_add_u32 v{ST}, v{ST}, 2, v{t0}
    v_cmp_lt_u32 vcc, {MAXQ}, v{CN}
    v_sub_u32 v{PS}, v{PS}, v{CN}
    s_cmp_gt_u32 s59, {MAXTOT}
    s_cselect_b32 s46, 1, 0
    s_cmp_lg_u64 vcc, 0
    s_cselect_b32 s46, 1, s46
    s_cmp_eq_u32 s46, 0
    s_cselect_b32 s61, -1, 0
    s_cselect_b32 s59, s59, 0
    s_add_u32 s66, s59, 7
    s_lshr_b32 s66, s66, 3
    """)
    for q in range(MAXQ):
        p(f"""
        s_add_u32 s46, s49, {1024*q}
        s_add_u32 s47, s60, {16*q}
        s_mov_b32 m0, s46
        s_nop 0
        buffer_load_dwordx4 v{ST}, s[28:31], s47 offen lds
        """)
    p(f"""
    v_lshlrev_b32 v{t0}, 2, v{PS}
    v_add_u32 v{t0}, {IDX}, v{t0}
    v_and_b32 v{t1}, s61, v{CN}
    v_cmp_eq_u32 vcc, 0, v{t1}
    v_mov_b32 v{t1}, {IDX_TRASH}
    v_add_u32 v{t2}, s49, v{V_L16}
    v_cndmask_b32 v{t0}, v{t0}, v{t1}, vcc
    v_add_u32 v{t0}, s49, v{t0}
    """)
    for q in range(MAXQ - 1, -1, -1):
        r = E0 + q
        p(f"v_add_u32 v{r}, {1024*q}, v{t2}")
        p(f"ds_write_b32 v{t0}, v{r} offset:{4*q}")
    p(f"""
    s_lshl_b32 s46, s59, 2
    s_add_u32 s46, s46, s49
    s_add_u32 s47, s49, {NULLQ}
    v_lshlrev_b32 v{t0}, 2, v{V_LANE}
    v_add_u32 v{t0}, s46, v{t0}
    v_mov_b32 v{t1}, s47
    ds_write_b32 v{t0}, v{t1} offset:{IDX}
    v_and_b32 v{t0}, 3, v{V_LANE}
    v_lshl_add_u32 v{t0}, v{t0}, 2, v{t1}
    v_mov_b32 v{t2}, 0xffff
    ds_write_b32 v{t0}, v{t2}
    v_lshlrev_b32 v{V_LA}, 3, v{V_G}
    v_add_u32 v{V_LA}, s49, v{V_LA}
    v_add_u32 v{V_LA}, {IDX}, v{V_LA}
    """)


def k2_maxpass(p):
    MX = P_B
    CI = NM1_B
    p(f"""
    s_waitcnt vmcnt(0) lgkmcnt(0)
    s_barrier
    s_lshl_b32 s41, s33, 12
    s_mov_b32 s46, 0
    s_add_u32 s47, s68, s67
    s_mov_b32 s48, 0xff800000
    v_mov_b32 v{V_KA}, v{V_KL}
    """)
    for j in range(4):
        p(f"v_mov_b32 v{MX+j}, s48")
    for k in range(16):
        p(f"v_mov_b32 v{CI+k}, 0")
    p(f"""
    Lk2_mx_loop:
    s_max_u32 s40, s46, 5
    s_lshl_b32 s40, s40, 2
    s_add_u32 s40, s40, {LOG_OFF - 20}
    v_mov_b32 v{V_T0}, s40
    ds_read_b32 v{V_T0}, v{V_T0}
    v_readfirstlane_b32 s69, v{V_T0}
    s_add_u32 s40, s70, s46
    s_cmp_lt_u32 s46, 5
    s_cselect_b32 s69, s40, s69
    s_lshl_b32 s40, s69, 14
    s_add_u32 s40, s40, s39
    s_mov_b32 m0, s41
    s_nop 0
    """)
    for i in range(4):
        p(f"buffer_load_dwordx4 v{V_L16}, s[28:31], s40 offen offset:{1024*i} lds")
    p(f"""
    s_cmp_lg_u32 s69, {NTILE}
    s_cbranch_scc1 Lk2_mx_nomask
    v_cmp_eq_u32 vcc, 0, v{V_G}
    v_mov_b32 v{V_T0}, s48
    s_nop 1
    """)
    for k in range(4):
        p(f"v_cndmask_b32 v{CI+4+k}, v{V_T0}, v{CI+4+k}, vcc")
    for k in range(8, 16):
        p(f"v_mov_b32 v{CI+k}, s48")
    p(f"""
    Lk2_mx_nomask:
    s_waitcnt vmcnt(0)
    s_barrier
    """)
    for s in range(4):
        for ks in range(4):
            p.extend([kread(s, ks)])
    p("s_waitcnt lgkmcnt(0)")
    p("s_barrier")
    for j in range(4):
        for s in range(4):
            d = vr(O_B + (j * 4 + s) * 4, 4)
            for ks in range(4):
                p(mf(d, vr(Kf(s, ks), 4, 'a'), vr(Qf(j, ks), 4, 'a'), vr(CI + 4 * s, 4) if ks == 0 else d))
    for j in range(4):
        for k in range(0, 16, 2):
            b = O_B + j * 16 + k
            p(f"v_max3_f32 v{MX+j}, v{MX+j}, v{b}, v{b+1}")
    p(f"""
    s_add_u32 s46, s46, 1
    s_cmp_lt_u32 s46, s47
    s_nop 7
    s_cbranch_scc1 Lk2_mx_loop
    """)
    for j in range(4):
        allreduce_g(p, MX + j, V_T0, 'v_max_f32')
        for r in range(4):
            p(f"v_sub_f32 v{NM(j)+r}, 0, v{MX+j}")


def k2_prologue(p):
    p("s_branch Lk2_run1")
    p("Lk2_run:")
    dma_tiles(p, 0, 1)
    p("Lk2_run1:")
    dma_tiles(p, 1, 2)
    p(f"""
    v_mov_b32 v{V_T3}, 0x7fff0000
    s_mov_b32 m0, s54
    s_nop 0
    """)
    for i in range(8):
        if i == 4:
            p("s_mov_b32 m0, s65")
            p("s_nop 0")
        p(f"buffer_load_dwordx4 v{V_T3}, s[20:23], 0 offen offset:{1024*(i&3)} lds")
    gather_consts(p)
    for r in range(128):
        p(f"v_mov_b32 v{O_B+r}, 0")
    for r in range(64):
        p(f"v_accvgpr_write_b32 a{V_A+r}, 0")
    for r in range(32):
        p(f"v_accvgpr_write_b32 a{GA_A+r}, 0")
    for r in range(8):
        p(f"v_mov_b32 v{OH+r}, 0")
    for r in range(8):
        p(f"v_mov_b32 v{AD8+r}, v{V_T3}")
    for r in range(16):
        p(f"v_mov_b32 v{S_B+r}, 0")
    p(f"""
    v_mov_b32 v{V_KA}, v{V_KL}
    s_mov_b32 s42, 0
    s_mov_b32 s43, 0
    s_mov_b32 s44, 4
    s_mov_b32 s67, 0
    s_mov_b32 s68, 0
    s_add_u32 s46, s70, 4
    v_mov_b32 v{V_TN}, s46
    v_mov_b32 v{V_TK}, 0
    v_mov_b32 v{V_ONE}, 0
    v_mov_b32 v{V_AOFF}, v{V_T3}
    v_cmp_eq_u32 vcc, 0, v{V_LANE}
    v_mov_b32 v{V_T0}, {LOG_OFF}
    v_cndmask_b32 v{V_LG}, v{V_T3}, v{V_T0}, vcc
    s_cmp_lg_u32 s45, 0
    s_cbranch_scc1 Lk2_noplan
    v_cmp_eq_u32 vcc, 0, v0
    s_lshl_b32 s46, s35, 8
    s_add_u32 s46, s46, {CNT_OFF}
    v_mov_b32 v{V_T0}, s46
    v_cndmask_b32 v{V_AOFF}, v{V_T3}, v{V_T0}, vcc
    v_cndmask_b32 v{V_ONE}, 0, 1, vcc
    s_add_u32 s46, s70, 5
    v_mov_b32 v{V_T0}, {5*NSTAT}
    v_mov_b32 v{V_T1}, s46
    v_cndmask_b32 v{V_T0}, v{V_T0}, v{V_T1}, vcc
    v_lshlrev_b32 v{V_T1}, 2, v0
    v_add_u32 v{V_T1}, {LOG_OFF}, v{V_T1}
    ds_write_b32 v{V_T1}, v{V_T0}
    s_waitcnt vmcnt(33)
    """)
    q = Prog()
    gather_plan(q)
    p.extend(q.ins)
    dma_tiles(p, 2, 3)
    p(f"""
    s_waitcnt vmcnt(22)
    s_branch Lk2_planned
    Lk2_noplan:
    """)
    dma_tiles(p, 2, 3)
    p(f"""
    s_waitcnt vmcnt(16)
    Lk2_planned:
    s_mov_b32 s63, 0
    s_lshl_b32 s64, s66, 5
    s_add_u32 s62, s66, 1
    s_cmp_eq_u32 s66, 0
    s_cselect_b32 s62, 0, s62
    s_waitcnt lgkmcnt(0)
    s_barrier
    """)
    stamp(p, 1)
    for s in range(4):
        for ks in range(4):
            p.extend([kread(s, ks)])
    p(f"""
    s_cmp_lg_u32 s45, 0
    s_cbranch_scc1 Lk2_have_m
    s_waitcnt lgkmcnt(12)
    """)
    for j in range(4):
        d = vr(P_B + 4 * j, 4)
        for ks in range(4):
            p(mf(d, vr(Kf(0, ks), 4, 'a'), vr(Qf(j, ks), 4, 'a'), '0' if ks == 0 else d))
    for j in range(4):
        b = P_B + 4 * j
        p(f"v_max3_f32 v{b}, v{b}, v{b+1}, v{b+2}")
        p(f"v_max_f32 v{b}, v{b}, v{b+3}")
    for j in range(4):
        allreduce_g(p, P_B + 4 * j, P_B + 4 * j + 1, 'v_max_f32')
    for j in range(4):
        for r in range(4):
            p(f"v_sub_f32 v{NM(j)+r}, {hexf(-MARGIN)}, v{P_B+4*j}")
    p(f"""
    Lk2_have_m:
    """)
    for r in range(16, 32):
        p(f"v_mov_b32 v{P_B+r}, 0")
    p(f"""
    s_waitcnt lgkmcnt(0)
    s_nop 1
    """)
    stamp(p, 2)
    stamp(p, 9, True)


def k2_tail_setup(p):
    p(f"""
    s_mov_b32 s48, 0xff800000
    v_cmp_eq_u32 vcc, 0, v{V_G}
    v_mov_b32 v{NINF_B}, s48
    v_mov_b32 v{NINF_B+1}, s48
    v_mov_b32 v{NINF_B+2}, s48
    v_mov_b32 v{NINF_B+3}, s48
    """)
    for k in range(16):
        p(f"v_cndmask_b32 v{NM1_B+k}, v{NINF_B}, v{NM_B+k}, vcc")
    p("s_nop 1")


def k2_epilogue(p):
    stamp(p, 10, True)
    stamp(p, 3)
    p(f"""
    s_mul_i32 s46, s34, {PART_STRIDE}
    s_lshl_b32 s47, s37, 12
    s_add_u32 s46, s46, s47
    s_add_u32 s46, s46, {PART_OFF}
    s_mul_i32 s47, s34, {STAT_STRIDE}
    s_lshl_b32 s48, s37, 7
    s_add_u32 s47, s47, s48
    s_add_u32 s47, s47, {STAT_OFF}
    v_lshlrev_b32 v{V_T0}, 3, v{V_I}
    s_mov_b32 s48, {hexf(2.0**100)}
    v_cmp_eq_u32 s[50:51], 3, v{V_G}
    s_mov_b64 s[52:53], 0
    """)
    for j in range(4):
        b = P_B + 2 * j
        p(f"""
        v_sub_f32 v{b}, 0, v{NM(j)}
        v_mov_b32 v{b+1}, v{O(j,7)+3}
        v_cmp_nlt_f32 vcc, v{O(j,7)+3}, s48
        s_or_b64 s[52:53], s[52:53], vcc
        """)
        for kk in range(4):
            d = S_B + 4 * kk
            for h in range(2):
                o = O(j, 2 * kk + h)
                p(f"v_cvt_pk_bf16_f32 v{d+2*h}, v{o}, v{o+1}")
                p(f"v_cvt_pk_bf16_f32 v{d+2*h+1}, v{o+2}, v{o+3}")
            p(f"buffer_store_dwordx4 {vr(d,4)}, v{V_L16}, s[28:31], s46 offen offset:{1024*kk}")
        if j < 3:
            p("s_add_u32 s46, s46, 4096")
    p("s_mov_b64 exec, s[50:51]")
    for j in range(4):
        b = P_B + 2 * j
        p(f"buffer_store_dwordx2 {vr(b,2)}, v{V_T0}, s[28:31], s47 offen offset:{128*j}")
    p(f"""
    s_mov_b64 exec, -1
    s_and_b64 s[52:53], s[52:53], s[50:51]
    s_cselect_b32 s46, 1, 0
    s_lshl_b32 s47, s33, 2
    s_add_u32 s47, s47, {FLAG_OFF}
    v_mov_b32 v{V_T0}, s47
    v_mov_b32 v{V_T1}, s46
    v_mov_b32 v{V_T2}, {FLAG_OFF}
    ds_write_b32 v{V_T0}, v{V_T1}
    s_waitcnt lgkmcnt(0)
    s_barrier
    ds_read_b128 v[{S_B}:{S_B+3}], v{V_T2}
    v_or_b32 v{S_B}, v{S_B}, v{S_B+1}
    v_or3_b32 v{S_B}, v{S_B}, v{S_B+2}, v{S_B+3}
    v_readfirstlane_b32 s46, v{S_B}
    s_nop 1
    s_andn2_b32 s46, s46, s45
    s_cmp_eq_u32 s46, 0
    s_cbranch_scc1 Lk2_gather
    s_mov_b32 s45, 1
    """)


def k2_gather(p):
    t0, t1, t2 = V_T0, V_T1, V_T2
    p("Lk2_gather:")
    stamp(p, 4)
    stamp(p, 5)
    stamp(p, 6)
    p(f"""
    s_cmp_ge_u32 s36, {NBIN}
    s_cbranch_scc1 {'Lk2_g_fin' if STAMPS else 'Lk2_exit'}
    s_cmp_lg_u32 s62, 0
    s_cselect_b32 s61, 0, s61
    s_cmp_eq_u32 s61, -1
    s_cbranch_scc1 Lk2_g_done
    """)
    for r in range(32):
        p(f"v_accvgpr_write_b32 a{GA_A+r}, 0")
    gather_consts(p)
    p(f"""
    Lk2_g_slow:
    s_waitcnt vmcnt(0) lgkmcnt(0)
    v_cmp_lt_u32 vcc, s61, v{CN}
    s_cbranch_vccz Lk2_g_done
    v_mov_b32 v{O_B}, 0xffff
    v_mov_b32 v{O_B+1}, 0xffff
    v_mov_b32 v{O_B+2}, 0xffff
    v_mov_b32 v{O_B+3}, 0xffff
    s_lshl_b32 s46, s61, 4
    s_add_u32 s46, s46, s60
    s_mov_b64 exec, vcc
    buffer_load_dwordx4 v[{O_B}:{O_B+3}], v{ST}, s[28:31], s46 offen
    s_mov_b64 exec, -1
    v_add_u32 v{t0}, s49, v{V_L16}
    ds_write_b128 v{t0}, v[{O_B}:{O_B+3}]
    s_add_u32 s61, s61, 1
    s_mov_b32 s62, 4
    v_lshlrev_b32 v{t2}, 5, v{V_G}
    v_add_u32 v{t2}, s49, v{t2}
    s_waitcnt lgkmcnt(0)
    """)
    OHB = (OH, OH2)

    def issue(buf):
        p(f"""
        ds_read_b128 v[{E0}:{E0+3}], v{t2}
        ds_read_b128 v[{E0+4}:{E0+7}], v{t2} offset:16
        v_add_u32 v{t2}, 128, v{t2}
        s_add_u32 s46, s54, {8192*buf}
        s_mov_b32 m0, s46
        """)
        for i in range(8):
            if i == 4:
                p(f"s_add_u32 s46, s54, {8192*buf+4096}")
                p("s_mov_b32 m0, s46")
            p.extend([gmad(i), gdma(i)])
        for k in range(4):
            o = OHB[buf] + k
            p(f"v_perm_b32 v{o}, v{E0+2*k+1}, v{E0+2*k}, s58")
            p(f"v_alignbit_b32 v{o}, v{o}, v{o}, v{V_ROT}")
            p(f"v_and_b32 v{o}, s57, v{o}")

    def consume(buf):
        for dt in range(8):
            for u in range(2):
                p(f"ds_read_b64_tr_b16 {vr(GF_A+4*dt+2*u,2,'a')}, v{TA+dt} offset:{8192*buf+4096*u}")
        for dt in range(8):
            d = vr(GA_A + 4 * dt, 4, 'a')
            p(mf(d, vr(GF_A + 4 * dt, 4, 'a'), vr(OHB[buf], 4), d))
    p("Lk2_g_loop:")
    issue(0)
    issue(1)
    p("s_waitcnt vmcnt(8)")
    consume(0)
    p("s_waitcnt vmcnt(0)")
    consume(1)
    p(f"""
    s_sub_u32 s62, s62, 1
    s_cmp_lg_u32 s62, 0
    s_cbranch_scc1 Lk2_g_loop
    s_branch Lk2_g_slow
    Lk2_g_done:
    s_nop 7
    v_lshlrev_b32 v{t0}, 16, v{DEG}
    v_mul_f32 v{t0}, 0.5, v{t0}
    s_lshl_b32 s46, s36, 12
    s_add_u32 s46, s46, {AGG_OFF}
    """)
    for r in range(32):
        p(f"v_accvgpr_read_b32 v{O_B+r}, a{GA_A+r}")
    for r in range(32):
        p(f"v_mul_f32 v{O_B+r}, v{O_B+r}, v{t0}")
    for k in range(16):
        p(f"v_cvt_pk_bf16_f32 v{O_B+32+k}, v{O_B+2*k}, v{O_B+2*k+1}")
    for kk in range(4):
        p(f"buffer_store_dwordx4 v[{O_B+32+4*kk}:{O_B+35+4*kk}], v{V_L16}, s[28:31], s46 offen offset:{1024*kk}")
    if STAMPS:
        p("Lk2_g_fin:")
    stamp(p, 7)
    if STAMPS:
        p("s_waitcnt vmcnt(0)")
    stamp(p, 8)
    if STAMPS:
        p("s_mov_b32 s92, s68")
    stamp_flush(p, 1, 13)
    p("s_endpgm")


def k2_wprep(p):
    p(f"""
    s_load_dwordx2 s[4:5], s[0:1], {A_WMSG}
    s_load_dwordx2 s[6:7], s[0:1], {A_WV}
    s_load_dwordx2 s[8:9], s[0:1], {A_WOUT}
    s_load_dwordx2 s[12:13], s[0:1], {A_WS}
    v_and_b32 v1, 63, v0
    v_lshrrev_b32 v7, 6, v0
    v_lshrrev_b32 v2, 4, v1
    v_and_b32 v3, 15, v1
    v_readfirstlane_b32 s33, v7
    s_sub_u32 s34, s2, {K2_ATT}
    s_lshl_b32 s34, s34, 2
    s_add_u32 s34, s34, s33
    s_and_b32 s35, s34, 7
    s_waitcnt lgkmcnt(0)
    s_cmp_ge_u32 s34, 8
    s_cselect_b32 s4, s6, s4
    s_cselect_b32 s5, s7, s5
    """)
    srd(p, 16, 4, 32768)
    srd(p, 20, 8, 32768)
    srd(p, 28, 12, WS_SIZE)
    AFR = 16
    BFR = 144
    AC = 160
    p(f"""
    v_lshlrev_b32 v4, 8, v3
    v_lshl_add_u32 v4, v2, 4, v4
    s_mov_b32 s36, 0
    """)
    for t in range(8):
        for kk in range(4):
            b = AFR + (t * 4 + kk) * 4
            p(f"buffer_load_dwordx4 v[{b}:{b+3}], v4, s[16:19], s36 offen offset:{64*kk}")
        p("s_add_u32 s36, s36, 4096")
    p(f"""
    v_lshrrev_b32 v5, 2, v3
    v_lshlrev_b32 v5, 3, v5
    v_and_b32 v6, 3, v3
    v_add_u32 v5, v5, v6
    v_lshlrev_b32 v5, 1, v5
    v_lshl_add_u32 v5, v2, 11, v5
    s_lshr_b32 s36, s35, 1
    s_lshl_b32 s36, s36, 6
    s_and_b32 s37, s35, 1
    s_lshl_b32 s37, s37, 3
    s_add_u32 s36, s36, s37
    """)
    for kk in range(4):
        p(f"s_add_u32 s37, s36, {8192*kk}")
        for x in range(8):
            p(f"buffer_load_ushort v{AC+8*kk+x}, v5, s[20:23], s37 offen offset:{256*x}")
    for k in range(16):
        p(f"v_lshl_or_b32 v{BFR+k}, v{AC+2*k+1}, 16, v{AC+2*k}")
    for t in range(8):
        d = vr(AC + 4 * t, 4)
        for kk in range(4):
            b = AFR + (t * 4 + kk) * 4
            p(mf(d, vr(b, 4), vr(BFR + 4 * kk, 4), '0' if kk == 0 else d))
    for c in range(4):
        p(f"v_add_f32 v{200+c}, v{AC+c}, v{AC+4+c}")
    for k in range(2, 8):
        for c in range(4):
            p(f"v_add_f32 v{200+c}, v{200+c}, v{AC+4*k+c}")
    p("""
    v_add_f32 v200, v200, v201
    v_add_f32 v202, v202, v203
    v_add_f32 v200, v200, v202
    """)
    allreduce_g(p, 200, 201)
    bcast_g3(p, AC + 31, 202, 201)
    p(f"""
    v_mul_f32 v202, {hexf((1.0+CH)/RT128)}, v202
    v_mul_f32 v200, {hexf(-CH/RT128)}, v200
    v_add_f32 v200, v200, v202
    v_cmp_eq_u32 s[42:43], 3, v2
    """)
    for k in range(32):
        p(f"v_add_f32 v{AC+k}, v{AC+k}, v200")
    p(f"v_cndmask_b32 v{AC+31}, v{AC+31}, 0, s[42:43]")
    for k in range(16):
        p(f"v_cvt_pk_bf16_f32 v{16+k}, v{AC+2*k}, v{AC+2*k+1}")
    p(f"""
    v_lshlrev_b32 v4, 4, v1
    s_lshl_b32 s36, s34, 12
    s_add_u32 s36, s36, {WIMG_OFF}
    """)
    for kk in range(4):
        p(f"buffer_store_dwordx4 v[{16+4*kk}:{19+4*kk}], v4, s[28:31], s36 offen offset:{1024*kk}")
    p("s_endpgm")


def gen_k2():
    mid, tail, drain = gen_loop_variants()
    s = f"""  s_cmp_ge_u32 s2, {K2_NWG}
  s_cbranch_scc1 Lk2_exit
  s_cmp_ge_u32 s2, {K2_ATT}
  s_cbranch_scc1 Lk2_wprep
"""
    a = Prog()
    k2_setup(a)
    k2_prologue(a)
    s += emit(a.finish())
    s += ".p2align 6\nLk2_loop:\n" + emit(mid) + "  s_cbranch_scc1 Lk2_loop\n"
    if STAMPS:
        z = Prog()
        stamp(z, 11, True)
        s += emit(z.ins)
    s += "  s_cmp_eq_u32 s67, 0\n  s_cbranch_scc1 Lk2_drain\n"
    b = Prog()
    k2_tail_setup(b)
    s += emit(b.finish()) + emit(tail)
    s += "Lk2_drain:\n" + emit(drain) + "  s_nop 7\n  s_waitcnt lgkmcnt(0)\n"
    c = Prog()
    k2_epilogue(c)
    k2_maxpass(c)
    c("s_branch Lk2_run")
    s += emit(c.finish())
    d = Prog()
    k2_gather(d)
    s += emit(d.finish())
    e = Prog()
    k2_wprep(e)
    s += "Lk2_wprep:\n" + emit(e.finish())
    s += "Lk2_exit:\n  s_endpgm\n"
    return s


if __name__ == '__main__':
    mid, tail, drain = gen_loop_variants()
    print(emit(mid))
```

```python
import math
from asmlib import *

N = 12500
D = 128
E = 400000
NT16 = 784
NBIN = 782
G = 64
EPW = E // G
ENT_STRIDE = 9216 * 4
OFFT_STRIDE = 4096

KIMG_OFF = 0x0000000
QIMG_OFF = 0x0400000
HROW_OFF = 0x0800000
CELL = 24
BINB = G * CELL * 4
ENT2_OFF = 0x3400000
OVF_OFF = 0x0C00000
OVF_STRIDE = 7168 * 4
OVC_OFF = 0x0F00000
ENT_OFF = 0x0C00000
OFFT_OFF = 0x0F00000
PART_OFF = 0x1000000
PART_STRIDE = 0x400000
STAT_OFF = 0x3000000
STAT_STRIDE = 0x20000
AGG_OFF = 0x3400000
WIMG_OFF = 0x3B00000
NULLG_OFF = 0x3910000
MZ_OFF = 0x3A00000
MARGIN = 32.0
CNT_OFF = 0x3900000
WS_SIZE = 0x4000000

RT128 = math.sqrt(128.0)
CH = 1.0 / (RT128 - 1.0)
QSCALE = math.log2(math.e) / RT128

A_X, A_SRC, A_DST, A_DEG, A_WMSG, A_WQ, A_WK, A_WV, A_WOUT, A_OUT, A_DBG, A_WS = [8 * i for i in range(12)]


def srd(p, d, base, size):
    p(f"""
    s_mov_b32 s{d}, s{base}
    s_and_b32 s{d+1}, s{base+1}, 0xffff
    s_mov_b32 s{d+2}, {size}
    s_mov_b32 s{d+3}, 0x20000
    """)


def allreduce_g(p, v, t, op='v_add_f32'):
    p(f"""
    v_mov_b32 v{t}, v{v}
    v_permlane16_swap_b32 v{v}, v{t}
    {op} v{v}, v{v}, v{t}
    v_mov_b32 v{t}, v{v}
    v_permlane32_swap_b32 v{v}, v{t}
    {op} v{v}, v{v}, v{t}
    """)


def bcast_g3(p, src, dst, t):
    p(f"""
    v_mov_b32 v{t}, v{src}
    v_mov_b32 v{dst}, v{src}
    v_permlane32_swap_b32 v{t}, v{dst}
    v_mov_b32 v{t}, v{dst}
    v_permlane16_swap_b32 v{t}, v{dst}
    """)


def kernel_wrap(name, body, nvgpr, accum, nsgpr=102):
    s = f""".globl {name}
.p2align 8
.type {name},@function
{name}:
"""
    s += body
    return s


def kernel_desc(name, nvgpr, accum, nsgpr=102):
    return f""".p2align 6
.amdhsa_kernel {name}
  .amdhsa_next_free_vgpr {nvgpr}
  .amdhsa_next_free_sgpr {nsgpr}
  .amdhsa_accum_offset {accum}
  .amdhsa_group_segment_fixed_size 0
  .amdhsa_kernarg_size 96
  .amdhsa_user_sgpr_count 2
  .amdhsa_user_sgpr_kernarg_segment_ptr 1
  .amdhsa_system_sgpr_workgroup_id_x 1
.end_amdhsa_kernel
"""


import os
STAMPS = bool(os.environ.get("STAMPS"))
STAMP_OFF = 0x3C00000


def stamp(p, idx, cyc=False):
    if not STAMPS:
        return
    p(f"""
    {'s_memtime' if cyc else 's_memrealtime'} s[98:99]
    s_waitcnt lgkmcnt(0)
    s_mov_b32 s{80+idx}, s98
    """)


def stamp_flush(p, kern, n, wave_sgpr=33):
    if not STAMPS:
        return
    p(f"""
    s_lshl_b32 s98, s2, 2
    s_add_u32 s98, s98, s{wave_sgpr}
    s_lshl_b32 s98, s98, 6
    s_add_u32 s98, s98, {STAMP_OFF + kern * 0x20000}
    s_mov_b64 exec, 1
    v_mov_b32 v200, 0
    """)
    for i in range(n):
        p(f"v_mov_b32 v201, s{80+i}")
        p(f"buffer_store_dword v201, v200, s[28:31], s98 offen offset:{4*i}")
```

```python
from common import *

NW = 4
K1_NWG = G + NW + 196
K1_LDS = 65536
K1_NREC = K1_NWG * 4


def bf16_round(p, v, t):
    p(f"""
    v_cvt_pk_bf16_f32 v{t}, v{v}, v{v}
    v_lshlrev_b32 v{v}, 16, v{t}
    """)


def k1_ln(p):
    stamp(p, 0)
    p(f"""
    s_load_dwordx2 s[4:5], s[0:1], {A_X}
    s_load_dwordx4 s[8:11], s[0:1], {A_WQ}
    s_load_dwordx2 s[12:13], s[0:1], {A_WS}
    v_and_b32 v1, 63, v0
    v_lshrrev_b32 v7, 6, v0
    v_lshrrev_b32 v2, 4, v1
    v_and_b32 v3, 15, v1
    v_readfirstlane_b32 s33, v7
    s_sub_u32 s34, s2, {G+NW}
    s_lshl_b32 s34, s34, 2
    s_waitcnt lgkmcnt(0)
    s_add_u32 s34, s34, s33
    s_lshl_b32 s35, s34, 12
    """)
    srd(p, 16, 4, N * 256)
    srd(p, 20, 8, 32768)
    srd(p, 24, 10, 32768)
    srd(p, 28, 12, WS_SIZE)
    p(f"""
    v_lshlrev_b32 v4, 8, v3
    v_lshl_add_u32 v4, v2, 4, v4
    """)
    for ks in range(4):
        p(f"buffer_load_dwordx4 v[{8+4*ks}:{11+4*ks}], v4, s[16:19], s35 offen offset:{64*ks}")
    p(f"""
    v_lshlrev_b32 v5, 2, v2
    v_xor_b32 v5, v5, v3
    v_lshlrev_b32 v5, 4, v5
    v_lshl_add_u32 v5, v2, 8, v5
    s_lshl_b32 s36, s33, 13
    s_mov_b32 m0, s36
    s_add_u32 s37, s36, 4096
    """)
    for j in range(4):
        p(f"buffer_load_dwordx4 v5, s[20:23], s36 offen offset:{1024*j} lds")
    p("s_mov_b32 m0, s37")
    for j in range(4):
        p(f"buffer_load_dwordx4 v5, s[20:23], s37 offen offset:{1024*j} lds")
    p(f"""
    s_lshl_b32 s38, s33, 2
    v_xor_b32 v6, v3, v2
    v_xor_b32 v6, s38, v6
    v_lshlrev_b32 v6, 4, v6
    v_lshl_add_u32 v6, v2, 8, v6
    s_lshl_b32 s38, s33, 11
    """)
    for a in range(4):
        p(f"""
        s_add_u32 s39, s38, {8192*a}
        s_add_u32 s40, s39, 32768
        s_mov_b32 m0, s40
        s_nop 0
        buffer_load_dwordx4 v6, s[24:27], s39 offen lds
        buffer_load_dwordx4 v6, s[24:27], s39 offen offset:1024 lds
        """)
    if STAMPS:
        p("s_waitcnt vmcnt(16)")
        stamp(p, 1)
    F = 24
    for k in range(16):
        p(f"v_lshlrev_b32 v{F+2*k}, 16, v{8+k}")
        p(f"v_and_b32 v{F+2*k+1}, 0xffff0000, v{8+k}")
    for c in range(4):
        p(f"v_add_f32 v{200+c}, v{F+c}, v{F+4+c}")
    for k in range(2, 8):
        for c in range(4):
            p(f"v_add_f32 v{200+c}, v{200+c}, v{F+4*k+c}")
    p("""
    v_add_f32 v200, v200, v201
    v_add_f32 v202, v202, v203
    v_add_f32 v200, v200, v202
    """)
    allreduce_g(p, 200, 201)
    p(f"v_mul_f32 v200, {hexf(1.0/128)}, v200")
    for k in range(32):
        p(f"v_sub_f32 v{F+k}, v{F+k}, v200")
    for c in range(4):
        p(f"v_mul_f32 v{200+c}, v{F+c}, v{F+c}")
    for k in range(1, 8):
        for c in range(4):
            p(f"v_fmac_f32 v{200+c}, v{F+4*k+c}, v{F+4*k+c}")
    p("""
    v_add_f32 v200, v200, v201
    v_add_f32 v202, v202, v203
    v_add_f32 v200, v200, v202
    """)
    allreduce_g(p, 200, 201)
    p(f"v_mul_f32 v200, {hexf(1.0/128)}, v200")
    bf16_round(p, 200, 201)
    p(f"v_add_f32 v200, {hexf(1e-5)}, v200")
    bf16_round(p, 200, 201)
    p("v_sqrt_f32 v200, v200")
    bf16_round(p, 200, 201)
    p("v_rcp_f32 v200, v200")
    for k in range(32):
        p(f"v_mul_f32 v{F+k}, v{F+k}, v200")
    HB = 56
    for k in range(16):
        p(f"v_cvt_pk_bf16_f32 v{HB+k}, v{F+2*k}, v{F+2*k+1}")
    bcast_g3(p, F + 31, 202, 201)
    p(f"v_mul_f32 v202, {hexf(CH)}, v202")
    for k in range(32):
        p(f"v_add_f32 v{F+k}, v{F+k}, v202")
    p(f"""
    v_cmp_eq_u32 s[42:43], 3, v2
    v_mov_b32 v203, 1.0
    v_cndmask_b32 v{F+31}, v{F+31}, v203, s[42:43]
    """)
    HT = 72
    for k in range(16):
        p(f"v_cvt_pk_bf16_f32 v{HT+k}, v{F+2*k}, v{F+2*k+1}")
    p(f"""
    v_and_b32 v204, 1, v2
    v_mul_u32_u24 v204, 12, v204
    v_xor_b32 v204, v204, v3
    v_lshlrev_b32 v204, 4, v204
    v_lshl_add_u32 v204, v2, 8, v204
    s_add_u32 s44, s35, {KIMG_OFF}
    s_add_u32 s45, s35, {HROW_OFF}
    s_add_u32 s46, s35, {QIMG_OFF}
    """)
    for ks in range(4):
        p(f"buffer_store_dwordx4 v[{HT+4*ks}:{HT+4*ks+3}], v204, s[28:31], s44 offen offset:{1024*ks}")
    for ks in range(4):
        p(f"buffer_store_dwordx4 v[{HT+4*ks}:{HT+4*ks+3}], v4, s[28:31], s45 offen offset:{64*ks}")
    p(f"""
    v_bfe_u32 v205, v1, 2, 2
    v_and_b32 v206, 3, v1
    v_lshl_add_u32 v207, v2, 3, v205
    v_lshlrev_b32 v207, 8, v207
    v_lshl_add_u32 v207, v206, 4, v207
    v_lshl_add_u32 v208, v205, 6, v207
    v_xor_b32 v209, 64, v208
    v_xor_b32 v210, 128, v208
    v_xor_b32 v211, 192, v208
    """)
    p(f"""
    v_lshrrev_b32 v212, 2, v3
    v_lshlrev_b32 v212, 3, v212
    v_and_b32 v213, 3, v3
    v_add_u32 v212, v212, v213
    v_lshlrev_b32 v212, 8, v212
    v_xor_b32 v213, v2, v3
    v_lshl_add_u32 v212, v213, 4, v212
    v_add_u32 v212, 32768, v212
    v_xor_b32 v213, 64, v212
    v_xor_b32 v214, 128, v212
    v_xor_b32 v215, 192, v212
    """)
    p("""
    s_waitcnt vmcnt(8)
    s_barrier
    """)
    stamp(p, 2)
    QA = 88
    AF = 168

    def rd1(t):
        b = AF + 16 * (t & 1)
        for ks in range(4):
            for u in range(2):
                p(f"ds_read_b64_tr_b16 v[{b+4*ks+2*u}:{b+4*ks+2*u+1}], v{208+(t>>1)} offset:{8192*ks+1024*u+8*(t&1)}")
    rd1(0)
    for t in range(8):
        if t < 7:
            rd1(t + 1)
        b = AF + 16 * (t & 1)
        for ks in range(4):
            c = '0' if ks == 0 else f'v[{QA+4*t}:{QA+4*t+3}]'
            p(f"v_mfma_f32_16x16x32_bf16 v[{QA+4*t}:{QA+4*t+3}], v[{b+4*ks}:{b+4*ks+3}], v[{HB+4*ks}:{HB+4*ks+3}], {c}")
    UA = 136
    QF = 120

    def rd2(t):
        b = AF + 16 * (t & 1)
        for kk in range(4):
            p(f"ds_read_b128 v[{b+4*kk}:{b+4*kk+3}], v{212+kk} offset:{8192*(t>>1)+1024*(t&1)}")
    rd2(0)
    for k in range(16):
        p(f"v_cvt_pk_bf16_f32 v{QF+k}, v{QA+2*k}, v{QA+2*k+1}")
    for t in range(8):
        if t < 7:
            rd2(t + 1)
        b = AF + 16 * (t & 1)
        for kk in range(4):
            c = '0' if kk == 0 else f'v[{UA+4*t}:{UA+4*t+3}]'
            p(f"v_mfma_f32_16x16x32_bf16 v[{UA+4*t}:{UA+4*t+3}], v[{b+4*kk}:{b+4*kk+3}], v[{QF+4*kk}:{QF+4*kk+3}], {c}")
    for c in range(4):
        p(f"v_add_f32 v{200+c}, v{UA+c}, v{UA+4+c}")
    for k in range(2, 8):
        for c in range(4):
            p(f"v_add_f32 v{200+c}, v{200+c}, v{UA+4*k+c}")
    p("""
    v_add_f32 v200, v200, v201
    v_add_f32 v202, v202, v203
    v_add_f32 v200, v200, v202
    """)
    allreduce_g(p, 200, 201)
    bcast_g3(p, UA + 31, 202, 201)
    k1c = (1.0 + CH) / RT128 * QSCALE
    k2c = -CH / RT128 * QSCALE
    p(f"""
    v_mul_f32 v202, {hexf(k1c)}, v202
    v_mul_f32 v200, {hexf(k2c)}, v200
    v_add_f32 v200, v200, v202
    s_mov_b32 s47, {hexf(QSCALE)}
    """)
    for k in range(32):
        p(f"v_fma_f32 v{UA+k}, v{UA+k}, s47, v200")
    p(f"v_cndmask_b32 v{UA+31}, v{UA+31}, 0, s[42:43]")
    for k in range(16):
        p(f"v_cvt_pk_bf16_f32 v{QF+k}, v{UA+2*k}, v{UA+2*k+1}")
    p("v_lshlrev_b32 v204, 4, v1")
    for ks in range(4):
        p(f"buffer_store_dwordx4 v[{QF+4*ks}:{QF+4*ks+3}], v204, s[28:31], s46 offen offset:{1024*ks}")
    for ks in range(4):
        p(mf("v[200:203]", vr(HT + 4 * ks, 4), vr(QF + 4 * ks, 4), '0' if ks == 0 else "v[200:203]"))
    p(f"""
    s_cmp_eq_u32 s34, {N // 16}
    s_cselect_b32 s48, 0, 4
    v_cmp_lt_u32 vcc, s48, v2
    v_mov_b32 v205, 0xff800000
    s_lshl_b32 s47, s34, 6
    s_add_u32 s47, s47, {MZ_OFF}
    v_lshlrev_b32 v206, 2, v3
    v_max3_f32 v200, v200, v201, v202
    v_max_f32 v200, v200, v203
    v_cndmask_b32 v200, v200, v205, vcc
    """)
    allreduce_g(p, 200, 201, 'v_max_f32')
    p(f"""
    v_sub_f32 v200, {hexf(-MARGIN)}, v200
    buffer_store_dword v200, v206, s[28:31], s47 offen
    """)
    stamp(p, 3)
    if STAMPS:
        p("s_waitcnt vmcnt(0)")
    stamp(p, 4)
    stamp_flush(p, 0, 5)
    p("s_endpgm")


def mf(d, a, b, c):
    return f"v_mfma_f32_16x16x32_bf16 {d}, {a}, {b}, {c}"


def k1_wprep(p):
    p(f"""
    s_load_dwordx2 s[4:5], s[0:1], {A_WMSG}
    s_load_dwordx2 s[6:7], s[0:1], {A_WV}
    s_load_dwordx2 s[8:9], s[0:1], {A_WOUT}
    s_load_dwordx2 s[12:13], s[0:1], {A_WS}
    v_and_b32 v1, 63, v0
    v_lshrrev_b32 v7, 6, v0
    v_lshrrev_b32 v2, 4, v1
    v_and_b32 v3, 15, v1
    v_readfirstlane_b32 s33, v7
    s_sub_u32 s34, s2, {G}
    s_lshl_b32 s34, s34, 2
    s_add_u32 s34, s34, s33
    s_and_b32 s35, s34, 7
    s_waitcnt lgkmcnt(0)
    s_cmp_ge_u32 s34, 8
    s_cselect_b32 s4, s6, s4
    s_cselect_b32 s5, s7, s5
    """)
    srd(p, 16, 4, 32768)
    srd(p, 20, 8, 32768)
    srd(p, 28, 12, WS_SIZE)
    AFR = 16
    BFR = 144
    AC = 160
    p(f"""
    v_lshlrev_b32 v4, 8, v3
    v_lshl_add_u32 v4, v2, 4, v4
    s_mov_b32 s36, 0
    """)
    for t in range(8):
        for kk in range(4):
            b = AFR + (t * 4 + kk) * 4
            p(f"buffer_load_dwordx4 v[{b}:{b+3}], v4, s[16:19], s36 offen offset:{64*kk}")
        p("s_add_u32 s36, s36, 4096")
    p(f"""
    v_lshrrev_b32 v5, 2, v3
    v_lshlrev_b32 v5, 3, v5
    v_and_b32 v6, 3, v3
    v_add_u32 v5, v5, v6
    v_lshlrev_b32 v5, 1, v5
    v_lshl_add_u32 v5, v2, 11, v5
    s_lshr_b32 s36, s35, 1
    s_lshl_b32 s36, s36, 6
    s_and_b32 s37, s35, 1
    s_lshl_b32 s37, s37, 3
    s_add_u32 s36, s36, s37
    """)
    for kk in range(4):
        p(f"s_add_u32 s37, s36, {8192*kk}")
        for x in range(8):
            p(f"buffer_load_ushort v{AC+8*kk+x}, v5, s[20:23], s37 offen offset:{256*x}")
    for k in range(16):
        p(f"v_lshl_or_b32 v{BFR+k}, v{AC+2*k+1}, 16, v{AC+2*k}")
    for t in range(8):
        d = vr(AC + 4 * t, 4)
        for kk in range(4):
            b = AFR + (t * 4 + kk) * 4
            p(mf(d, vr(b, 4), vr(BFR + 4 * kk, 4), '0' if kk == 0 else d))
    for c in range(4):
        p(f"v_add_f32 v{200+c}, v{AC+c}, v{AC+4+c}")
    for k in range(2, 8):
        for c in range(4):
            p(f"v_add_f32 v{200+c}, v{200+c}, v{AC+4*k+c}")
    p("""
    v_add_f32 v200, v200, v201
    v_add_f32 v202, v202, v203
    v_add_f32 v200, v200, v202
    """)
    allreduce_g(p, 200, 201)
    bcast_g3(p, AC + 31, 202, 201)
    p(f"""
    v_mul_f32 v202, {hexf((1.0+CH)/RT128)}, v202
    v_mul_f32 v200, {hexf(-CH/RT128)}, v200
    v_add_f32 v200, v200, v202
    v_cmp_eq_u32 s[42:43], 3, v2
    """)
    for k in range(32):
        p(f"v_add_f32 v{AC+k}, v{AC+k}, v200")
    p(f"v_cndmask_b32 v{AC+31}, v{AC+31}, 0, s[42:43]")
    for k in range(16):
        p(f"v_cvt_pk_bf16_f32 v{16+k}, v{AC+2*k}, v{AC+2*k+1}")
    p(f"""
    v_lshlrev_b32 v4, 4, v1
    s_lshl_b32 s36, s34, 12
    s_add_u32 s36, s36, {WIMG_OFF}
    """)
    for kk in range(4):
        p(f"buffer_store_dwordx4 v[{16+4*kk}:{19+4*kk}], v4, s[28:31], s36 offen offset:{1024*kk}")
    if STAMPS:
        for i in range(5):
            stamp(p, i)
        stamp_flush(p, 0, 5)
    p("s_endpgm")


def k1_bin(p):
    NR = 7
    stamp(p, 0)
    STG = 4096
    TOT = 4096 + 10240 * 4
    NO = 9
    p(f"""
    s_load_dwordx4 s[4:7], s[0:1], {A_SRC}
    s_load_dwordx2 s[12:13], s[0:1], {A_WS}
    v_lshlrev_b32 v1, 4, v0
    v_lshrrev_b32 v7, 6, v0
    v_mov_b32 v8, 0
    v_mov_b32 v9, 0
    v_mov_b32 v10, 0
    v_mov_b32 v11, 0
    v_readfirstlane_b32 s33, v7
    ds_write_b128 v1, v[8:11]
    s_mul_i32 s34, s2, {EPW*4}
    v_mov_b32 v12, 0xffff
    v_mov_b32 v13, 0xffff
    v_mov_b32 v14, 0xffff
    v_mov_b32 v15, 0xffff
    s_waitcnt lgkmcnt(0)
    """)
    srd(p, 16, 4, E * 4)
    srd(p, 20, 6, E * 4)
    srd(p, 28, 12, WS_SIZE)
    p(f"""
    v_and_b32 v2, 0xf0, v1
    s_lshl_b32 s35, s2, 8
    s_add_u32 s35, s35, {CNT_OFF}
    buffer_store_dwordx4 v[8:11], v2, s[28:31], s35 offen
    s_add_u32 s35, s35, {NULLG_OFF - CNT_OFF}
    buffer_store_dwordx4 v[12:15], v2, s[28:31], s35 offen
    """)
    DS = 16
    SR = 44
    RK = 72
    BA = 100
    for r in range(NR):
        p(f"s_add_u32 s35, s34, {4096*r}")
        p(f"buffer_load_dwordx4 v[{DS+4*r}:{DS+4*r+3}], v1, s[20:23], s35 offen")
    for r in range(NR):
        p(f"s_add_u32 s35, s34, {4096*r}")
        p(f"buffer_load_dwordx4 v[{SR+4*r}:{SR+4*r+3}], v1, s[16:19], s35 offen")
    for r in range(NO):
        p(f"ds_write_b128 v1, v[12:15] offset:{STG+4096*r}")
    p("""
    s_waitcnt lgkmcnt(0)
    s_barrier
    v_mov_b32 v2, 1
    v_lshlrev_b32 v3, 2, v0
    """)
    for r in range(NR):
        for k in range(4):
            e = 4 * r + k
            p(f"v_lshrrev_b32 v{BA+e}, 4, v{DS+e}")
            p(f"v_lshlrev_b32 v{BA+e}, 2, v{BA+e}")
            if r == NR - 1:
                p(f"""
                v_cmp_gt_u32 vcc, {EPW - 1024*(NR-1) - k}, v3
                v_mov_b32 v4, {783*4}
                v_cndmask_b32 v{BA+e}, v4, v{BA+e}, vcc
                """)
            p(f"v_min_u32 v{BA+e}, {783*4}, v{BA+e}")
            p(f"ds_add_rtn_u32 v{RK+e}, v{BA+e}, v2")
    stamp(p, 1)
    p("s_mov_b32 s43, 0x10000")
    for e in range(4 * NR):
        p(f"v_and_b32 v{DS+e}, 15, v{DS+e}")
        p(f"v_lshl_or_b32 v{DS+e}, s43, v{DS+e}, v{SR+e}")
    p(f"""
    s_waitcnt lgkmcnt(0)
    s_barrier
    ds_read_b128 v[8:11], v1
    v_add_u32 v8, 3, v8
    v_add_u32 v9, 3, v9
    v_add_u32 v10, 3, v10
    v_add_u32 v11, 3, v11
    v_and_b32 v8, -4, v8
    v_and_b32 v9, -4, v9
    v_and_b32 v10, -4, v10
    v_and_b32 v11, -4, v11
    v_add_u32 v13, v8, v9
    v_add_u32 v14, v13, v10
    v_add_u32 v15, v14, v11
    v_mov_b32 v5, v15
    v_add_u32_dpp v5, v5, v5 row_shr:1 row_mask:0xf bank_mask:0xf
    v_add_u32_dpp v5, v5, v5 row_shr:2 row_mask:0xf bank_mask:0xf
    v_add_u32_dpp v5, v5, v5 row_shr:4 row_mask:0xf bank_mask:0xf
    v_add_u32_dpp v5, v5, v5 row_shr:8 row_mask:0xf bank_mask:0xf
    v_add_u32_dpp v5, v5, v5 row_bcast:15 row_mask:0xa bank_mask:0xf
    v_add_u32_dpp v5, v5, v5 row_bcast:31 row_mask:0xc bank_mask:0xf
    v_readlane_b32 s36, v5, 63
    s_lshl_b32 s37, s33, 2
    s_add_u32 s37, s37, {TOT}
    v_mov_b32 v6, s37
    v_mov_b32 v4, s36
    ds_write_b32 v6, v4
    v_mov_b32 v6, {TOT}
    s_waitcnt lgkmcnt(0)
    s_barrier
    ds_read_b128 v[128:131], v6
    s_cmp_gt_u32 s33, 0
    s_cselect_b32 s38, -1, 0
    s_cmp_gt_u32 s33, 1
    s_cselect_b32 s39, -1, 0
    s_cmp_gt_u32 s33, 2
    s_cselect_b32 s40, -1, 0
    v_sub_u32 v5, v5, v15
    v_and_b32 v128, s38, v128
    v_and_b32 v129, s39, v129
    v_and_b32 v130, s40, v130
    v_add3_u32 v5, v5, v128, v129
    v_add_u32 v132, v5, v130
    v_add_u32 v133, v132, v8
    v_add_u32 v134, v132, v13
    v_add_u32 v135, v132, v14
    ds_write_b128 v1, v[132:135]
    s_lshl_b32 s41, s2, 12
    s_add_u32 s41, s41, {OFFT_OFF}
    buffer_store_dwordx4 v[132:135], v1, s[28:31], s41 offen
    s_waitcnt lgkmcnt(0)
    s_barrier
    """)
    stamp(p, 2)
    for e in range(4 * NR):
        p(f"ds_read_b32 v{BA+e}, v{BA+e}")
    for e in range(4 * NR):
        p(f"v_add_lshl_u32 v{BA+e}, v{BA+e}, v{RK+e}, 2")
        p(f"ds_write_b32 v{BA+e}, v{DS+e} offset:{STG}")
    p(f"""
    s_waitcnt lgkmcnt(0)
    s_barrier
    s_mul_i32 s42, s2, {ENT_STRIDE}
    s_add_u32 s42, s42, {ENT_OFF}
    """)
    for r in range(NO):
        p(f"ds_read_b128 v[{SR+4*r}:{SR+4*r+3}], v1 offset:{STG+4096*r}")
    for r in range(NO):
        p(f"s_add_u32 s35, s42, {4096*r}")
        p(f"buffer_store_dwordx4 v[{SR+4*r}:{SR+4*r+3}], v1, s[28:31], s35 offen")
    stamp(p, 3)
    if STAMPS:
        p("s_waitcnt vmcnt(0)")
    stamp(p, 4)
    stamp_flush(p, 0, 5)
    p("s_endpgm")


def gen_k1():
    h = Prog()
    h(f"""
    s_cmp_ge_u32 s2, {K1_NWG}
    s_cbranch_scc1 Lk1_exit
    s_cmp_ge_u32 s2, {G+NW}
    s_cbranch_scc1 Lk1_ln
    s_cmp_ge_u32 s2, {G}
    s_cbranch_scc1 Lk1_w
    """)
    a = Prog()
    k1_bin(a)
    b = Prog()
    k1_ln(b)
    c = Prog()
    k1_wprep(c)
    body = emit(h.ins) + emit(a.finish()) + "Lk1_w:\n" + emit(c.finish()) + "Lk1_ln:\n" + emit(b.finish()) + "Lk1_exit:\n  s_endpgm\n"
    return body
```

```python
from k2loop import *

MF32 = "v_mfma_f32_32x32x16_bf16"
POLL_LIMIT = 1 << 22


def k2_setup(p):
    stamp(p, 0)
    p(f"""
    s_load_dwordx2 s[12:13], s[0:1], {A_WS}
    s_load_dwordx2 s[14:15], s[0:1], {A_DEG}
    s_load_dwordx2 s[74:75], s[0:1], {A_X}
    s_load_dwordx2 s[76:77], s[0:1], {A_OUT}
    v_and_b32 v{V_LANE}, 63, v0
    v_lshrrev_b32 v{V_T0}, 6, v0
    v_lshlrev_b32 v{V_L16}, 4, v{V_LANE}
    v_readfirstlane_b32 s33, v{V_T0}
    s_mul_i32 s35, s2, 13108
    s_lshr_b32 s35, s35, 16
    s_mul_i32 s3, s35, 5
    s_sub_u32 s34, s2, s3
    s_lshl_b32 s37, s35, 4
    s_lshl_b32 s3, s33, 2
    s_mul_i32 s36, s33, 5
    s_add_u32 s36, s36, s34
    s_cmp_lt_u32 s36, 16
    s_cselect_b32 s4, 0, 0x10000
    s_add_u32 s36, s36, s37
    s_add_u32 s36, s36, s4
    s_add_u32 s37, s37, s3
    s_lshl_b32 s39, s33, 12
    s_add_u32 s39, s39, {KIMG_OFF}
    s_mul_i32 s70, s34, {NSTAT}
    s_lshl_b32 s38, s37, 12
    s_add_u32 s38, s38, {QIMG_OFF}
    s_mov_b32 s45, 0
    s_waitcnt lgkmcnt(0)
    """)
    srd(p, 28, 12, WS_SIZE)
    dma_tiles(p, 0, 1)
    for j in range(4):
        for ks in range(4):
            p(f"buffer_load_dwordx4 {vr(Qf(j,ks),4,'a')}, v{V_L16}, s[28:31], s38 offen offset:{1024*ks}")
        if j < 3:
            p("s_add_u32 s38, s38, 4096")
    p(f"""
    v_and_b32 v{V_I}, 15, v{V_LANE}
    v_lshrrev_b32 v{V_G}, 4, v{V_LANE}
    v_lshlrev_b32 v{V_T0}, 2, v{V_I}
    s_lshl_b32 s46, s37, 6
    s_add_u32 s46, s46, {MZ_OFF}
    """)
    for j in range(4):
        p(f"buffer_load_dword v{NM(j)}, v{V_T0}, s[28:31], s46 offen offset:{64*j}")
    srd(p, 24, 14, N * 2)
    p(f"""
    s_add_u32 s16, s12, {HROW_OFF - 3072}
    s_addc_u32 s17, s13, 0
    """)
    srd(p, 20, 16, 12544 * 256 + 3072)
    p(f"""
    v_and_b32 v{V_T0}, 1, v{V_G}
    v_mul_u32_u24 v{V_T0}, 12, v{V_T0}
    v_xor_b32 v{V_T0}, v{V_T0}, v{V_I}
    v_lshlrev_b32 v{V_T0}, 4, v{V_T0}
    v_lshl_add_u32 v{V_KL}, v{V_G}, 8, v{V_T0}
    v_lshrrev_b32 v{V_T0}, 2, v{V_LANE}
    v_bfe_u32 v{V_T1}, v{V_LANE}, 1, 1
    v_mul_u32_u24 v{V_T2}, 12, v{V_T1}
    v_xor_b32 v{V_T0}, v{V_T0}, v{V_T2}
    v_lshlrev_b32 v{V_T0}, 4, v{V_T0}
    v_lshl_add_u32 v{V_T0}, v{V_T1}, 8, v{V_T0}
    v_and_b32 v{V_T1}, 1, v{V_LANE}
    v_lshl_add_u32 v{V_VL}, v{V_T1}, 3, v{V_T0}
    s_mul_i32 s49, s33, {GW_STRIDE}
    s_add_u32 s49, s49, {GW_OFF}
    s_lshl_b32 s54, s33, 14
    s_add_u32 s54, s54, {STG_OFF}
    s_add_u32 s65, s54, 4096
    s_mov_b32 s55, 256
    s_mov_b32 s57, 0x40004000
    s_mov_b32 s58, 0x07060302
    s_mov_b32 s60, {ENT_OFF}
    s_lshl_b32 s73, s35, 8
    s_add_u32 s73, s73, {CNT_OFF}
    v_lshlrev_b32 v{V_LA}, 5, v{V_G}
    v_add_u32 v{V_LA}, s49, v{V_LA}
    """)


def dma_tiles(p, t0, t1):
    if t0 == 0:
        p(f"""
        s_lshl_b32 s40, s70, 14
        s_add_u32 s40, s40, s39
        s_lshl_b32 s41, s33, 12
        """)
    for t in range(t0, t1):
        p("s_mov_b32 m0, s41")
        p("s_nop 0")
        for i in range(4):
            p(f"buffer_load_dwordx4 v{V_L16}, s[28:31], s40 offen offset:{1024*i} lds")
        p("s_add_u32 s40, s40, 16384")
        p("s_add_u32 s41, s41, 16384")


def gather_consts(p):
    t0, t1, t2 = V_T0, V_T1, V_T2
    p(f"""
    v_and_b32 v{t0}, 1, v{V_G}
    v_lshlrev_b32 v{t0}, 3, v{t0}
    v_xor_b32 v{t1}, v{t0}, v{V_I}
    v_lshlrev_b32 v{t1}, 4, v{t1}
    """)
    for k in range(4):
        p(f"v_xor_b32 v{LO+k}, {32*k}, v{t1}")
        p(f"v_add_u32 v{LO+k}, {3072-1024*k}, v{LO+k}")
    p(f"""
    v_bfe_u32 v{t1}, v{V_LANE}, 2, 2
    v_lshl_add_u32 v{t2}, v{t1}, 2, v{V_G}
    v_lshlrev_b32 v{t2}, 8, v{t2}
    v_lshlrev_b32 v{t1}, 1, v{t1}
    v_xor_b32 v{t0}, v{t0}, v{t1}
    v_bfe_u32 v{t1}, v{V_LANE}, 1, 1
    v_xor_b32 v{t0}, v{t0}, v{t1}
    v_lshl_add_u32 v{t2}, v{t0}, 4, v{t2}
    v_and_b32 v{t1}, 1, v{V_LANE}
    v_lshl_add_u32 v{t2}, v{t1}, 3, v{t2}
    v_add_u32 v{t2}, s54, v{t2}
    """)
    for dt in range(8):
        p(f"v_xor_b32 v{TA+dt}, {32*dt}, v{t2}")
    p(f"v_add_u32 v{V_ROT}, 18, v{V_I}")


def gather_plan(p):
    t0, t1, t2 = V_T0, V_T1, V_T2
    p(f"""
    s_cmp_lt_u32 s36, {NBIN}
    s_cselect_b32 s46, {(EPW + 3) // 4}, 0
    v_sub_u32 v{CN}, v{ST+1}, v{ST}
    v_lshrrev_b32 v{CN}, 2, v{CN}
    v_min_u32 v{CN}, s46, v{CN}
    v_mul_u32_u24 v{t0}, {ENT_STRIDE}, v{V_LANE}
    v_mov_b32 v{PS}, v{CN}
    v_lshl_add_u32 v{ST}, v{ST}, 2, v{t0}
    v_mov_b32 v{OT}, {NULLG_OFF - ENT_OFF}
    v_add_u32_dpp v{PS}, v{PS}, v{PS} row_shr:1 row_mask:0xf bank_mask:0xf
    v_mov_b32 v{OT+1}, v{OT}
    v_mov_b32 v{OT+2}, v{OT}
    v_add_u32_dpp v{PS}, v{PS}, v{PS} row_shr:2 row_mask:0xf bank_mask:0xf
    v_mov_b32 v{OT+3}, v{OT}
    v_add_u32 v{t2}, s49, v{V_L16}
    v_add_u32_dpp v{PS}, v{PS}, v{PS} row_shr:4 row_mask:0xf bank_mask:0xf
    ds_write_b128 v{t2}, v[{OT}:{OT+3}] offset:{IDX}
    v_cmp_lt_u32 vcc, {MAXQ}, v{CN}
    v_add_u32_dpp v{PS}, v{PS}, v{PS} row_shr:8 row_mask:0xf bank_mask:0xf
    v_add_u32 v{AD8+1}, 16, v{ST}
    v_add_u32 v{AD8+2}, 32, v{ST}
    v_add_u32_dpp v{PS}, v{PS}, v{PS} row_bcast:15 row_mask:0xa bank_mask:0xf
    v_add_u32 v{AD8+3}, 48, v{ST}
    v_add_u32 v{AD8+4}, 64, v{ST}
    v_add_u32_dpp v{PS}, v{PS}, v{PS} row_bcast:31 row_mask:0xc bank_mask:0xf
    v_add_u32 v{AD8+5}, 80, v{ST}
    v_mov_b32 v{t1}, {IDX_TRASH - IDX}
    v_readlane_b32 s59, v{PS}, 63
    v_sub_u32 v{PS}, v{PS}, v{CN}
    s_cmp_gt_u32 s59, {MAXTOT}
    s_cselect_b32 s46, 1, 0
    s_cmp_lg_u64 vcc, 0
    s_cselect_b32 s46, 1, s46
    s_cmp_eq_u32 s46, 0
    s_cselect_b32 s61, -1, 0
    s_cselect_b32 s59, s59, 0
    v_and_b32 v{t2}, s61, v{CN}
    v_lshlrev_b32 v{t0}, 2, v{PS}
    v_cmp_eq_u32 vcc, 0, v{t2}
    s_add_u32 s66, s59, 7
    s_lshr_b32 s66, s66, 3
    v_cndmask_b32 v{t0}, v{t0}, v{t1}, vcc
    v_add_u32 v{t0}, s49, v{t0}
    """)
    for q in range(MAXQ - 1, -1, -1):
        p(f"ds_write_b32 v{t0}, v{AD8+q if q else ST} offset:{IDX+4*q}")
    p(f"""
    s_lshl_b32 s46, s59, 2
    v_lshlrev_b32 v{t0}, 2, v{V_LANE}
    v_add_u32 v{t0}, s49, v{t0}
    v_add_u32 v{t2}, s46, v{t0}
    ds_write_b32 v{t2}, v{OT} offset:{IDX}
    s_mov_b32 m0, s49
    """)
    for k in range(4):
        p(f"ds_read_b32 v{AD8+k}, v{t0} offset:{IDX+256*k}")
    for k in range(4):
        p(f"buffer_load_dwordx4 v{AD8+k}, s[28:31], s60 offen lds")
        if k < 3:
            p("s_add_u32 m0, m0, 1024")
    for k in range(6):
        p(f"v_mov_b32 v{AD8+k}, v{AD8+7}")
    for k in range(4):
        p(f"v_mov_b32 v{OT+k}, 0")


def gather_arm(p, extra):
    p(f"""
    s_mov_b32 s63, 0
    s_lshl_b32 s64, s66, 7
    s_add_u32 s72, s66, 1
    s_add_u32 s62, s66, {1 + extra}
    s_cmp_eq_u32 s66, 0
    s_cselect_b32 s72, 0, s72
    s_cselect_b32 s62, 0, s62
    """)


def k2_maxpass(p):
    MX = P_B
    CI = NM1_B
    p(f"""
    s_lshl_b32 s41, s33, 12
    s_mov_b32 s46, 0
    s_add_u32 s47, s68, s67
    s_mov_b32 s48, 0xff800000
    v_mov_b32 v{V_KA}, v{V_KL}
    """)
    for j in range(4):
        p(f"v_mov_b32 v{MX+j}, s48")
    for k in range(16):
        p(f"v_mov_b32 v{CI+k}, 0")
    p(f"""
    Lk2_mx_loop:
    s_max_u32 s40, s46, 5
    s_lshl_b32 s40, s40, 2
    s_add_u32 s40, s40, {LOG_OFF - 20}
    v_mov_b32 v{V_T0}, s40
    ds_read_b32 v{V_T0}, v{V_T0}
    v_readfirstlane_b32 s69, v{V_T0}
    s_add_u32 s40, s70, s46
    s_cmp_lt_u32 s46, 5
    s_cselect_b32 s69, s40, s69
    s_lshl_b32 s40, s69, 14
    s_add_u32 s40, s40, s39
    s_mov_b32 m0, s41
    s_nop 0
    """)
    for i in range(4):
        p(f"buffer_load_dwordx4 v{V_L16}, s[28:31], s40 offen offset:{1024*i} lds")
    p(f"""
    s_cmp_lg_u32 s69, {NTILE}
    s_cbranch_scc1 Lk2_mx_nomask
    v_cmp_eq_u32 vcc, 0, v{V_G}
    v_mov_b32 v{V_T0}, s48
    s_nop 1
    """)
    for k in range(4):
        p(f"v_cndmask_b32 v{CI+4+k}, v{V_T0}, v{CI+4+k}, vcc")
    for k in range(8, 16):
        p(f"v_mov_b32 v{CI+k}, s48")
    p(f"""
    Lk2_mx_nomask:
    s_waitcnt vmcnt(0)
    s_barrier
    """)
    for s in range(4):
        for ks in range(4):
            p.extend([kread(s, ks)])
    p("s_waitcnt lgkmcnt(0)")
    p("s_barrier")
    for j in range(4):
        for s in range(4):
            d = vr(O_B + (j * 4 + s) * 4, 4)
            for ks in range(4):
                p(mf(d, vr(Kf(s, ks), 4, 'a'), vr(Qf(j, ks), 4, 'a'), vr(CI + 4 * s, 4) if ks == 0 else d))
    for j in range(4):
        for k in range(0, 16, 2):
            b = O_B + j * 16 + k
            p(f"v_max3_f32 v{MX+j}, v{MX+j}, v{b}, v{b+1}")
    p(f"""
    s_add_u32 s46, s46, 1
    s_cmp_lt_u32 s46, s47
    s_nop 7
    s_cbranch_scc1 Lk2_mx_loop
    """)
    for j in range(4):
        allreduce_g(p, MX + j, V_T0, 'v_max_f32')
        p(f"v_sub_f32 v{NM(j)}, 0, v{MX+j}")


def k2_prologue(p):
    p("s_branch Lk2_run1")
    p("Lk2_run:")
    dma_tiles(p, 0, 1)
    p("Lk2_run1:")
    dma_tiles(p, 1, 3)
    p(f"""
    v_mov_b32 v{V_T3}, 0x7fff0000
    s_mov_b32 m0, s54
    v_mov_b32 v{OH}, 0
    """)
    for i in range(8):
        if i == 4:
            p("s_mov_b32 m0, s65")
            p("s_nop 0")
        p(f"buffer_load_dwordx4 v{V_T3}, s[20:23], 0 offen offset:{1024*(i&3)} lds")
    for r in range(1, 8):
        p(f"v_mov_b32 v{OH+r}, 0")
    z = vr(OH, 4)
    for b in range(O_B, P_B + 32, 16):
        p(f"{MF32} {vr(b,16)}, {z}, {z}, 0")
    for b in range(V_A, GA_A + 32, 16):
        p(f"{MF32} {vr(b,16,'a')}, {z}, {z}, 0")
    gather_consts(p)
    for r in range(8):
        p(f"v_mov_b32 v{AD8+r}, v{V_T3}")
    p(f"""
    v_mov_b32 v{V_KA}, v{V_KL}
    s_mov_b32 s42, 0
    s_mov_b32 s43, 0
    s_mov_b32 s67, 0
    s_mov_b32 s68, 0
    s_add_u32 s46, s70, 4
    v_mov_b32 v{V_TN}, s46
    v_mov_b32 v{V_TK}, 0
    v_mov_b32 v{V_ONE}, 0
    v_mov_b32 v{V_AOFF}, v{V_T3}
    v_cmp_eq_u32 vcc, 0, v{V_LANE}
    v_mov_b32 v{V_T0}, {LOG_OFF}
    s_mov_b32 s44, 4
    v_cndmask_b32 v{V_LG}, v{V_T3}, v{V_T0}, vcc
    s_cmp_lg_u32 s45, 0
    s_cbranch_scc1 Lk2_second
    s_min_u32 s46, s36, 1000
    s_lshl_b32 s46, s46, 2
    s_add_u32 s46, s46, {OFFT_OFF}
    v_lshlrev_b32 v{V_T0}, 12, v{V_LANE}
    buffer_load_dwordx2 v[{ST}:{ST+1}], v{V_T0}, s[28:31], s46 offen
    s_lshl_b32 s46, s36, 5
    v_lshlrev_b32 v{V_T1}, 1, v{V_I}
    buffer_load_ushort v{DEG}, v{V_T1}, s[24:27], s46 offen
    v_cmp_eq_u32 vcc, 0, v0
    v_mov_b32 v{V_T0}, s73
    s_add_u32 s46, s70, 5
    v_cndmask_b32 v{V_AOFF}, v{V_T3}, v{V_T0}, vcc
    v_cndmask_b32 v{V_ONE}, 0, 1, vcc
    v_mov_b32 v{V_T0}, {5*NSTAT}
    v_mov_b32 v{V_T1}, s46
    v_cndmask_b32 v{V_T0}, v{V_T0}, v{V_T1}, vcc
    v_lshlrev_b32 v{V_T1}, 2, v0
    v_add_u32 v{V_T1}, {LOG_OFF}, v{V_T1}
    ds_write_b32 v{V_T1}, v{V_T0}
    s_mov_b32 s71, 0
    s_mov_b32 s66, 0
    s_waitcnt vmcnt(18)
    s_branch Lk2_go
    Lk2_second:
    s_waitcnt vmcnt(16)
    Lk2_go:
    """)
    gather_arm(p, 0)
    p("""
    s_waitcnt lgkmcnt(0)
    s_barrier
    """)
    stamp(p, 1)
    for s in range(4):
        for ks in range(4):
            p.extend([kread(s, ks)])
    for j in range(4):
        for r in range(1, 4):
            p(f"v_mov_b32 v{NM(j)+r}, v{NM(j)}")
    p(f"""
    s_waitcnt lgkmcnt(4)
    """)
    stamp(p, 2)
    stamp(p, 9, True)


def k2_glue(p):
    p("Lk2_glue:")
    stamp(p, 13, True)
    gather_plan(p)
    gather_arm(p, 1)
    p("""
    s_mov_b32 s71, 1
    s_waitcnt lgkmcnt(0)
    """)
    stamp(p, 14, True)
    stamp(p, 15, True)
    p("s_branch Lk2_glue_back")


def k2_tail_setup(p):
    p(f"""
    v_cmp_eq_u32 vcc, 0, v{V_G}
    v_mov_b32 v{NINF_B}, 0xff800000
    """)
    for k in range(16):
        p(f"v_cndmask_b32 v{NM1_B+k}, v{NINF_B}, v{NM_B+k}, vcc")
    p("s_nop 1")


def k2_slow_gather(p):
    t0, t1, t2 = V_T0, V_T1, V_T2
    B = S_B
    p(f"""
    Lk2_g_rare:
    s_mov_b32 s59, 0
    """)
    for r in range(32):
        p(f"v_accvgpr_write_b32 a{GA_A+r}, 0")
    gather_consts(p)
    p(f"""
    Lk2_g_slow:
    s_waitcnt vmcnt(0) lgkmcnt(0)
    v_cmp_lt_u32 vcc, s59, v{CN}
    s_cbranch_vccz Lk2_g_back
    v_mov_b32 v{B}, 0xffff
    v_mov_b32 v{B+1}, 0xffff
    v_mov_b32 v{B+2}, 0xffff
    v_mov_b32 v{B+3}, 0xffff
    s_lshl_b32 s46, s59, 4
    s_add_u32 s46, s46, s60
    s_mov_b64 exec, vcc
    buffer_load_dwordx4 v[{B}:{B+3}], v{ST}, s[28:31], s46 offen
    s_mov_b64 exec, -1
    v_add_u32 v{t0}, s54, v{V_L16}
    ds_write_b128 v{t0}, v[{B}:{B+3}] offset:8192
    s_add_u32 s59, s59, 1
    s_mov_b32 s47, 8
    v_lshlrev_b32 v{t2}, 5, v{V_G}
    v_add_u32 v{t2}, s54, v{t2}
    s_waitcnt lgkmcnt(0)
    Lk2_g_loop:
    ds_read_b128 v[{E0}:{E0+3}], v{t2} offset:8192
    ds_read_b128 v[{E0+4}:{E0+7}], v{t2} offset:8208
    v_add_u32 v{t2}, 128, v{t2}
    s_mov_b32 m0, s54
    """)
    for i in range(8):
        if i == 4:
            p("s_mov_b32 m0, s65")
        p.extend([gmad8(i), gdma8(i)])
    for k in range(4):
        o = OH + k
        p(f"v_perm_b32 v{o}, v{E0+2*k+1}, v{E0+2*k}, s58")
        p(f"v_alignbit_b32 v{o}, v{o}, v{o}, v{V_ROT}")
        p(f"v_and_b32 v{o}, s57, v{o}")
    p("s_waitcnt vmcnt(0)")
    for dt in range(8):
        for u in range(2):
            p(f"ds_read_b64_tr_b16 {vr(GF_A+4*dt+2*u,2,'a')}, v{TA+dt} offset:{4096*u}")
    for dt in range(8):
        d = vr(GA_A + 4 * dt, 4, 'a')
        p(mf(d, vr(GF_A + 4 * dt, 4, 'a'), vr(OH, 4), d))
    p(f"""
    s_sub_u32 s47, s47, 1
    s_cmp_lg_u32 s47, 0
    s_cbranch_scc1 Lk2_g_loop
    s_branch Lk2_g_slow
    Lk2_g_back:
    s_nop 7
    v_lshlrev_b32 v{V_T0}, 3, v{V_I}
    s_branch Lk2_g_done
    """)


def k2_publish(p):
    XR = 208
    p(f"""
    s_mul_i32 s46, s34, {PART_STRIDE}
    s_lshl_b32 s47, s37, 12
    s_add_u32 s46, s46, s47
    s_add_u32 s46, s46, {PART_OFF}
    s_mul_i32 s47, s34, {STAT_STRIDE}
    s_lshl_b32 s48, s37, 7
    s_add_u32 s47, s47, s48
    s_add_u32 s47, s47, {STAT_OFF}
    v_lshlrev_b32 v{V_T0}, 3, v{V_I}
    s_mov_b32 s48, {hexf(2.0**100)}
    v_cmp_eq_u32 s[50:51], 3, v{V_G}
    s_mov_b64 s[52:53], 0
    """)
    for j in range(4):
        b = P_B + 2 * j
        p(f"""
        v_sub_f32 v{b}, 0, v{NM(j)}
        v_mov_b32 v{b+1}, v{O(j,7)+3}
        v_cmp_nlt_f32 vcc, v{O(j,7)+3}, s48
        s_or_b64 s[52:53], s[52:53], vcc
        """)
        for kk in range(4):
            d = S_B + 4 * kk
            for h in range(2):
                o = O(j, 2 * kk + h)
                p(f"v_cvt_pk_bf16_f32 v{d+2*h}, v{o}, v{o+1}")
                p(f"v_cvt_pk_bf16_f32 v{d+2*h+1}, v{o+2}, v{o+3}")
            p(f"buffer_store_dwordx4 {vr(d,4)}, v{V_L16}, s[28:31], s46 offen offset:{1024*kk}")
        if j < 3:
            p("s_add_u32 s46, s46, 4096")
    p("s_mov_b64 exec, s[50:51]")
    for j in range(4):
        b = P_B + 2 * j
        p(f"buffer_store_dwordx2 {vr(b,2)}, v{V_T0}, s[28:31], s47 offen offset:{128*j}")
    p(f"""
    s_mov_b64 exec, -1
    s_and_b64 s[52:53], s[52:53], s[50:51]
    s_cselect_b32 s46, 1, 0
    s_lshl_b32 s47, s33, 2
    s_add_u32 s47, s47, {FLAG_OFF}
    v_mov_b32 v{V_T1}, s47
    v_mov_b32 v{V_T2}, s46
    ds_write_b32 v{V_T1}, v{V_T2}
    """)
    stamp(p, 4)
    p("""
    s_cmp_gt_i32 s62, 0
    s_cselect_b32 s46, 0, s61
    s_cmp_lg_u32 s46, -1
    s_cbranch_scc1 Lk2_g_rare
    Lk2_g_done:
    """)
    p(f"""
    s_lshl_b32 s46, s33, 14
    s_add_u32 s46, s46, {WIMG_OFF}
    s_mov_b32 m0, s54
    v_lshlrev_b32 v{V_T3}, 8, v{V_I}
    """)
    for a in range(4):
        for i in range(4):
            p(f"buffer_load_dwordx4 v{V_L16}, s[28:31], s46 offen offset:{1024*i} lds")
        if a < 3:
            p("s_add_u32 m0, m0, 4096")
            p("s_add_u32 s46, s46, 4096")
    srd(p, 16, 74, N * 256)
    p(f"""
    v_lshl_add_u32 v{V_T3}, v{V_G}, 4, v{V_T3}
    s_min_u32 s38, s36, 1000
    s_lshl_b32 s38, s38, 12
    """)
    for kk in range(4):
        p(f"buffer_load_dwordx4 v[{XR+4*kk}:{XR+4*kk+3}], v{V_T3}, s[16:19], s38 offen offset:{64*kk}")
    AG = 224
    p(f"""
    v_lshlrev_b32 v{V_T1}, 16, v{DEG}
    v_mul_f32 v{V_T1}, 0.5, v{V_T1}
    """)
    for k in range(16):
        t = P_B + 8 + 2 * (k & 3)
        p(f"v_accvgpr_read_b32 v{t}, a{GA_A+2*k}")
        p(f"v_accvgpr_read_b32 v{t+1}, a{GA_A+2*k+1}")
        p(f"v_mul_f32 v{t}, v{t}, v{V_T1}")
        p(f"v_mul_f32 v{t+1}, v{t+1}, v{V_T1}")
        p(f"v_cvt_pk_bf16_f32 v{P_B+16+k}, v{t}, v{t+1}")
    p(f"""
    v_mov_b32 v{V_T2}, {FLAG_OFF}
    s_waitcnt vmcnt(0) lgkmcnt(0)
    s_barrier
    ds_read_b128 v[{S_B}:{S_B+3}], v{V_T2}
    v_or_b32 v{S_B}, v{S_B}, v{S_B+1}
    v_or3_b32 v{S_B}, v{S_B}, v{S_B+2}, v{S_B+3}
    v_readfirstlane_b32 s46, v{S_B}
    s_nop 1
    s_andn2_b32 s46, s46, s45
    s_cmp_lg_u32 s46, 0
    s_cbranch_scc1 Lk2_redo
    """)


def k2_final(p):
    XR = 208
    AG = P_B + 16
    STT = 192
    PT = O_B
    OA = 96
    OF = 128
    YA = 224
    WF = 144
    L = 202
    p("Lk2_final:")
    stamp(p, 5)
    p(f"""
    v_cmp_eq_u32 vcc, 0, v0
    v_mov_b32 v{V_T1}, 0x7fff0000
    v_mov_b32 v{V_T2}, s73
    v_cndmask_b32 v{V_T1}, v{V_T1}, v{V_T2}, vcc
    v_mov_b32 v{V_T2}, 1
    buffer_atomic_add v{V_T2}, v{V_T1}, s[28:31], 0 offen offset:128
    s_cmp_ge_u32 s36, {NBIN}
    s_cbranch_scc1 {'Lk2_fin' if STAMPS else 'Lk2_exit'}
    v_mov_b32 v{V_T1}, 0
    s_mov_b32 s47, 0
    Lk2_poll:
    buffer_load_dword v{V_T2}, v{V_T1}, s[28:31], s73 offen offset:128 sc1
    s_add_u32 s47, s47, 1
    s_waitcnt vmcnt(0)
    v_readfirstlane_b32 s46, v{V_T2}
    s_cmp_gt_u32 s47, {POLL_LIMIT}
    s_cbranch_scc1 Lk2_polled
    s_cmp_lt_u32 s46, 5
    s_cbranch_scc1 Lk2_poll
    Lk2_polled:
    """)
    stamp(p, 6)
    p(f"""
    s_lshl_b32 s46, s36, 7
    s_add_u32 s46, s46, {STAT_OFF}
    """)
    for s in range(5):
        p(f"buffer_load_dwordx2 v[{STT+2*s}:{STT+2*s+1}], v{V_T0}, s[28:31], s46 offen sc1")
        if s < 4:
            p(f"s_add_u32 s46, s46, {STAT_STRIDE}")
    p(f"s_add_u32 s46, s38, {PART_OFF}")
    for s in range(5):
        for kk in range(4):
            b = PT + 16 * s + 4 * kk
            p(f"buffer_load_dwordx4 v[{b}:{b+3}], v{V_L16}, s[28:31], s46 offen offset:{1024*kk} sc1")
        if s < 4:
            p(f"s_add_u32 s46, s46, {PART_STRIDE}")
    srd(p, 20, 76, N * 256)
    p(f"v_add_u32 v{V_T1}, {STG_OFF}, v{V_L16}")

    def rd(ft, m, buf):
        b = WF + 16 * buf
        for kk in range(4):
            p(f"ds_read_b128 v[{b+4*kk}:{b+4*kk+3}], v{V_T1} offset:{32768*m+4096*ft+1024*kk}")

    def gemm(m, B):
        rd(0, m, 0)
        for ft in range(8):
            if ft < 7:
                rd(ft + 1, m, (ft + 1) & 1)
            b = WF + 16 * (ft & 1)
            d = vr(YA + 4 * ft, 4)
            for kk in range(4):
                p(mf(d, vr(b + 4 * kk, 4), vr(B + 4 * kk, 4), '0' if (m == 0 and kk == 0) else d))
    gemm(0, AG)
    tiny = hexf(2.0 ** -120)
    for s in range(5):
        p(f"v_max_f32 v{STT+2*s+1}, {tiny}, v{STT+2*s+1}")
    for s in range(5):
        p(f"v_log_f32 v{L+s}, v{STT+2*s+1}")
    for s in range(5):
        p(f"v_add_f32 v{L+s}, v{L+s}, v{STT+2*s}")
    T = 207
    p(f"""
    v_max3_f32 v{T}, v{L}, v{L+1}, v{L+2}
    v_max3_f32 v{T}, v{T}, v{L+3}, v{L+4}
    """)
    for s in range(5):
        p(f"v_sub_f32 v{L+s}, v{L+s}, v{T}")
    for s in range(5):
        p(f"v_exp_f32 v{L+s}, v{L+s}")
    for s in range(5):
        p(f"v_rcp_f32 v{STT+2*s}, v{STT+2*s+1}")
    p(f"""
    v_add_f32 v{T}, v{L}, v{L+1}
    v_add_f32 v{V_T2}, v{L+2}, v{L+3}
    v_add_f32 v{T}, v{T}, v{L+4}
    v_add_f32 v{T}, v{T}, v{V_T2}
    v_rcp_f32 v{T}, v{T}
    """)
    for s in range(5):
        p(f"v_mul_f32 v{L+s}, v{L+s}, v{T}")
    for s in range(5):
        p(f"v_mul_f32 v{L+s}, v{L+s}, v{STT+2*s}")
    for s in range(5):
        for k in range(16):
            r = PT + 16 * s + k
            t = STT + 2 * (k & 3)
            p(f"v_lshlrev_b32 v{t}, 16, v{r}")
            p(f"v_and_b32 v{t+1}, 0xffff0000, v{r}")
            if s == 0:
                p(f"v_mul_f32 v{OA+2*k}, v{t}, v{L}")
                p(f"v_mul_f32 v{OA+2*k+1}, v{t+1}, v{L}")
            else:
                p(f"v_fmac_f32 v{OA+2*k}, v{t}, v{L+s}")
                p(f"v_fmac_f32 v{OA+2*k+1}, v{t+1}, v{L+s}")
    for k in range(16):
        p(f"v_cvt_pk_bf16_f32 v{OF+k}, v{OA+2*k}, v{OA+2*k+1}")
    gemm(1, OF)
    for k in range(16):
        t = STT + 2 * (k & 3)
        p(f"v_lshlrev_b32 v{t}, 16, v{XR+k}")
        p(f"v_and_b32 v{t+1}, 0xffff0000, v{XR+k}")
        p(f"v_add_f32 v{t}, v{t}, v{YA+2*k}")
        p(f"v_add_f32 v{t+1}, v{t+1}, v{YA+2*k+1}")
        p(f"v_cvt_pk_bf16_f32 v{PT+k}, v{t}, v{t+1}")
        if k % 4 == 3:
            kk = k // 4
            p(f"buffer_store_dwordx4 v[{PT+4*kk}:{PT+4*kk+3}], v{V_T3}, s[20:23], s38 offen offset:{64*kk}")
    if STAMPS:
        p("s_branch Lk2_fin2")
        p("Lk2_fin:")
        p("s_mov_b32 s86, s85")
        p("Lk2_fin2:")
    stamp(p, 7)
    if STAMPS:
        p("s_waitcnt vmcnt(0)")
    stamp(p, 8)
    if STAMPS:
        p("s_mov_b32 s92, s68")
    stamp_flush(p, 1, 16)
    p("s_endpgm")


def gen_k2():
    mid, tail, drain = gen_loop_variants()
    s = f"""  s_cmp_ge_u32 s2, {K2_NWG}
  s_cbranch_scc1 Lk2_exit
"""
    a = Prog()
    k2_setup(a)
    k2_prologue(a)
    s += emit(a.finish())
    s += ".p2align 6\nLk2_loop:\n" + emit(mid) + "  s_cbranch_scc1 Lk2_loop\n"
    if STAMPS:
        z = Prog()
        stamp(z, 11, True)
        s += emit(z.ins)
    s += "  s_cmp_lg_u32 s67, 0\n  s_cbranch_scc1 Lk2_tail\n"
    s += "Lk2_drain:\n" + emit(drain) + "  s_nop 7\n  s_waitcnt lgkmcnt(0)\n"
    c = Prog()
    stamp(c, 10, True)
    stamp(c, 3)
    k2_publish(c)
    k2_final(c)
    s += emit(c.finish())
    b = Prog()
    k2_tail_setup(b)
    s += "Lk2_tail:\n" + emit(b.finish()) + emit(tail) + "  s_branch Lk2_drain\n"
    g = Prog()
    k2_glue(g)
    s += emit(g.finish())
    d = Prog()
    d("Lk2_redo:")
    d("s_mov_b32 s45, 1")
    k2_maxpass(d)
    d("s_branch Lk2_run")
    s += emit(d.finish())
    e = Prog()
    k2_slow_gather(e)
    s += emit(e.finish())
    s += "Lk2_exit:\n  s_endpgm\n"
    return s
```

```python
from common import *

K2_ATT = 245
K2_NWG = 245
NFULL = 39
LAG = 5
MAPB = bool(int(os.environ.get('MAPB', '0')))
RING = 65536
STG_OFF = 65536
GW_OFF = 131072
GW_STRIDE = 5632
IDX = 4096
IDX_TRASH = IDX + 4 * 330
MAXQ = 6
MAXTOT = 240
FLAG_OFF = GW_OFF + 4 * GW_STRIDE
LOG_OFF = FLAG_OFF + 64
K2_LDS = LOG_OFF + 1024
NSTAT = 6
NTILE = 195

V_LANE, V_G, V_I, V_L16 = 1, 2, 3, 4
V_KL, V_VL, V_KA, V_VA = 5, 6, 7, 8
V_T0, V_T1, V_T2, V_T3 = 9, 10, 11, 12
V_LA, V_LC, V_ROT = 13, 14, 15
O_B = 16
S_B = 144
P_B = 160
NM_B = 192
NM1_B = 208
NINF_B = 224
E0 = 208
LO = 216
TA = 220
OH = 228
OT = 232
AD = 236
ST, CN, PS, DEG = 238, 239, 240, 241
IX = 242
OH2 = 244
V_TK, V_ONE, V_AOFF, V_LG, V_TN = 244, 245, 246, 247, 236
AD8 = 248
Q_A = 0
K_A = 64
V_A = 128
GA_A = 192
GF_A = 224


def O(j, dt): return O_B + (j * 8 + dt) * 4
def Sr(s): return S_B + 4 * s
def Pr(j, k2): return P_B + j * 8 + k2 * 4
def NM(j): return NM_B + 4 * j
def Qf(j, ks): return Q_A + (j * 4 + ks) * 4
def Kf(s, ks): return K_A + (s * 4 + ks) * 4
def Vf(dt, k2): return V_A + (dt * 2 + k2) * 4


def mf(d, a, b, c):
    return f"v_mfma_f32_16x16x32_bf16 {d}, {a}, {b}, {c}"


def kread(s, ks, areg=V_KA):
    return I(f"ds_read_b128 {vr(Kf(s,ks),4,'a')}, v{areg} offset:{4096*s+1024*ks}", 'kread')


def vread(dt, k2, u):
    return I(f"ds_read_b64_tr_b16 {vr(Vf(dt,k2)+2*u,2,'a')}, v{V_VA} offset:{4096*(2*k2+u)+512*dt}", 'vread' if k2 == 0 else 'vread_hi')


def build_iter(variant):
    NG = 128
    mf_l = [None] * NG
    fixed = [[] for _ in range(NG)]
    units = [2] * NG
    for p in range(16):
        j, s = divmod(p, 4)
        for ks in range(4):
            if ks == 0:
                c = vr(NM(j), 4)
                if variant == 'tail':
                    c = [vr(NM(j), 4), vr(NM1_B + 4 * j, 4), vr(NM(j), 4), vr(NM(j), 4)][s]
            else:
                c = vr(Sr(s), 4)
            mf_l[8 * p + ks] = I(mf(vr(Sr(s), 4), vr(Kf(s, ks), 4, 'a'), vr(Qf(j, ks), 4, 'a'), c), 'qk' if s < 2 else 'qk_hi')
        pp = (p - LAG) % 16
        jp, a = divmod(pp, 4)
        prev = p < LAG
        n = 0
        for dt in (2 * a, 2 * a + 1):
            for k2 in (0, 1):
                mf_l[8 * p + 4 + n] = I(mf(vr(O(jp, dt), 4), vr(Vf(dt, k2), 4, 'a'), vr(Pr(jp, k2), 4), vr(O(jp, dt), 4)),
                                        'pv_prev' if prev else ('pv' if k2 == 0 else 'pv_hi'))
                n += 1
        q = (p - 1) % 16
        jq, sq = divmod(q, 4)
        tg = 'sm_prev' if p == 0 else ('sm' if sq < 2 else 'sm_hi')
        for r in range(4):
            fixed[8 * p + 2 * r].append(I(f"v_exp_f32 v{Sr(sq)+r}, v{Sr(sq)+r}", tg))
            units[8 * p + 2 * r] -= 2
        pd = Pr(jq, sq >> 1) + 2 * (sq & 1)
        fixed[8 * p + 3].append(I(f"v_cvt_pk_bf16_f32 v{pd}, v{Sr(sq)}, v{Sr(sq)+1}", tg))
        units[8 * p + 3] -= 1
        fixed[8 * p + 7].append(I(f"v_cvt_pk_bf16_f32 v{pd+1}, v{Sr(sq)+2}, v{Sr(sq)+3}", tg))
        units[8 * p + 7] -= 1
    LATM = 9
    BAR = 95
    placed = [[] for _ in range(NG)]

    def sched(mov, start):
        pend = sorted(mov, key=lambda m: (m[1], m[0]))
        for ga in range(start, start + NG):
            g = ga % NG
            while units[g] > 0:
                cand = [m for m in pend if m[0] <= ga and m[2] <= units[g]]
                if not cand:
                    break
                m = cand[0]
                assert ga <= m[1], ('deadline miss', ga, m)
                pend.remove(m)
                placed[g].append(m[3])
                units[g] -= m[2]
        assert not pend, pend
    units[BLK] = 0
    mov = []
    for i, g in enumerate(KVPOS):
        mov.append((g, g, 1, I(f"buffer_load_dwordx4 v{V_L16}, s[28:31], s40 offen offset:{1024*i} lds", 'dma')))
    for i, g in enumerate(GPOS):
        mov.append((g, g, 1, gdma8(i)))
    sched(mov, 0)
    mov = [(1, 11, 1, I(f"v_add_u32 v{V_VA}, s43, v{V_VL}", 'va'))]
    for a in range(4):
        n = 0
        for dt in (2 * a, 2 * a + 1):
            for k2 in (0, 1):
                last = 8 * ((12 + LAG + a) - 16) + 4 + n
                nxt = 8 * (LAG + a) + 4 + n
                for u in range(2):
                    mov.append((last, nxt - LATM, 1, vread(dt, k2, u)))
                n += 1
    for s in range(4):
        for ks in range(4):
            mov.append((max(8 * (12 + s) + ks, BAR + 1), 127, 1, kread(s, ks)))
    sched(mov, 0)
    mov = []
    mov.append((128 + 4, 128 + 8, 1, I(f"v_add_u32 v{V_LC}, s63, v{V_LA}", 'g')))
    mov.append((57, 60, 1, I(f"ds_read_b128 v[{E0}:{E0+3}], v{V_LC}", 'g')))
    mov.append((57, 60, 1, I(f"ds_read_b128 v[{E0+4}:{E0+7}], v{V_LC} offset:16", 'g')))
    k = 0
    for u in range(2):
        for dt in range(8):
            mov.append((58 if u == 0 else 69, 64 + k, 1, I(f"ds_read_b64_tr_b16 {vr(GF_A+4*dt+2*u,2,'a')}, v{TA+dt} offset:{4096*u}", 'g')))
            k += 1
    tk = I(f"ds_add_u32 v{V_LG}, v{V_TK}", 'tk')
    tk.wr = [('x', 'log')]
    mov.append((80, 81, 1, tk))
    mov.append((82, 83, 1, I(f"v_mov_b32 v{V_TK}, v{V_ONE}", 'tk')))
    mov.append((BAR + 1, 112, 1, I(f"ds_read_b32 v{V_TN}, v{V_LG}", 'tk')))
    mov.append((113, 127, 1, I(f"v_add_u32 v{V_LG}, 4, v{V_LG}", 'tk')))
    mov.append((128 + 2, 128 + 4, 1, I(f"v_readfirstlane_b32 s69, v{V_TN}", 'tk')))
    mov.append((80, 95, 1, I(f"v_add_u32 v{V_KA}, s42, v{V_KL}", 'ka')))
    for k in range(4):
        mov.append((87, 150 + k, 1, I(f"v_and_b32 v{OH+k}, s57, v{OT+k}", 'g')))
    sched(mov, 54)
    needs = {84: set(('v', E0 + k) for k in range(8)) | set(('a', GF_A + k) for k in range(32)),
             94: {('x', 'log')}, 127: {('v', V_TN)}}
    scal = [[] for _ in range(NG)]
    sops = [
        (0, 0, I("s_mov_b32 m0, s41", 'dma')),
        (6, 7, I("s_cmp_lt_u32 s68, 200", 'tk')),
        (8, 12, I("s_cselect_b32 s69, s69, 0xff", 'tk')),
        (14, 15, I("s_lshl_b32 s40, s69, 14", 'dma')),
        (16, 17, I("s_add_u32 s40, s40, s39", 'dma')),
        (28, 30, I(f"s_cmp_lt_u32 s69, {NTILE}", 'tk')),
        (31, 33, I("s_addc_u32 s44, s44, 0", 'tk')),
        (34, 36, I(f"s_cmp_eq_u32 s69, {NTILE}", 'tk')),
        (37, 39, I("s_addc_u32 s67, s67, 0", 'tk')),
        (40, 42, I("s_add_u32 s68, s68, 1", 'tk')),
        (18, 21, I("s_add_u32 s41, s41, 16384", 'dma')),
        (24, 27, I("s_and_b32 s41, s41, 0xffff", 'dma')),
        (50, 53, I("s_add_u32 s42, s42, 16384", 'ka')),
        (54, 56, I("s_and_b32 s42, s42, 0xffff", 'ka')),
        (57, 57, I("s_waitcnt vmcnt(8)", 'bar')),
        (68, 68, I("s_waitcnt vmcnt(4)", 'bar')),
        (58, 61, I("s_add_u32 s63, s63, 128", 'g')),
        (62, 64, I("s_min_u32 s63, s63, s64", 'g')),
        (65, 67, I("s_cmp_eq_u32 s71, 0", 'g')),
        (69, 69, I("s_cbranch_scc1 Lk2_glue", 'g')),
        (69, 69, I("Lk2_glue_back:", 'g')),
        (71, 76, I("s_mov_b32 m0, s54", 'g')),
        (77, 79, I("s_sub_u32 s62, s62, 1", 'g')),
        (80, 83, I("s_cmp_lt_u32 s62, s72", 'g')),
        (BAR, BAR, I("s_barrier", 'bar')),
        (98, 101, I("s_mov_b32 s43, s42", 'va')),
        (GPOS[3] + 1, GPOS[4] - 1, I("s_mov_b32 m0, s65", 'g')),
        (119, 121, I("s_sub_u32 s44, s44, 1", 'loop')),
        (122, 126, I("s_cmp_lg_u32 s44, 0", 'loop')),
    ]
    for lo, hi, ins in sops:
        g = next((g for g in range(lo, hi + 1) if g not in WAITGAPS and not scal[g]), lo)
        scal[g].append(ins)
    gaps = []
    for g in range(NG):
        vec = [x for x in placed[g] if x.kind != 'valu'] + [x for x in placed[g] if x.kind == 'valu'] + fixed[g]
        gaps.append([mf_l[g], scal[g], vec])
    if variant == 'drain':
        keep = lambda i: i.tag in ('pv_prev', 'sm_prev')
        needs = {}
    elif variant == 'tail':
        keep = lambda i: i.tag in ('qk', 'pv', 'pv_prev', 'sm', 'sm_prev', 'vread', 'va')
        needs = {}
    else:
        keep = lambda i: True
    out = []
    for m, sc, ve in gaps:
        out.append([m if keep(m) else None, [x for x in sc if keep(x)], [x for x in ve if keep(x)]])
    if variant in ('mid', 'midskip'):
        out[BLK][2] = gblock(variant == 'mid')
    if variant == 'tail':
        ex = [I(f"v_mov_b32 v{Pr(j,1)+r}, 0") for j in (2, 3) for r in range(4)] + \
             [I(f"v_mov_b32 v{Sr(3)+r}, v{NINF_B}") for r in range(4)]
        for n, x in enumerate(ex):
            out[48 + 4 * n][2].append(x)
    return out, needs


BLK = 85
ATOMFLAGS = os.environ.get('ATOMFLAGS', 'sc0')


def gmad(i):
    return I(f"v_mad_u32_u16 v{AD+(i&1)}, v{E0+i}, s55, v{LO+(i&3)}", 'g')


def gdma(i):
    return I(f"buffer_load_dwordx4 v{AD+(i&1)}, s[20:23], 0 offen offset:{1024*(i&3)} lds", 'g')


KVPOS = (1, 5, 9, 13)
GPOS = (87, 93, 99, 103, 109, 115, 119, 125)


def gmad8(i):
    return I(f"v_mad_u32_u16 v{AD8+i}, v{E0+i}, s55, v{LO+(i&3)}", 'g')


def gdma8(i):
    return I(f"buffer_load_dwordx4 v{AD8+i}, s[20:23], 0 offen offset:{1024*(i&3)} lds", 'g')


def gblock(on):
    r = [I(f"buffer_atomic_add v{V_TK}, v{V_AOFF}, s[28:31], 0 offen {ATOMFLAGS}", 'tk'), I("s_cbranch_scc0 Lk2_gskip", 'g')]
    if on:
        gm = lambda dt: I(mf(vr(GA_A + 4 * dt, 4, 'a'), vr(GF_A + 4 * dt, 4, 'a'), vr(OH, 4), vr(GA_A + 4 * dt, 4, 'a')), 'gm')
        pm = lambda k: I(f"v_perm_b32 v{OT+k}, v{E0+2*k+1}, v{E0+2*k}, s58", 'g')
        al = lambda k: I(f"v_alignbit_b32 v{OT+k}, v{OT+k}, v{OT+k}, v{V_ROT}", 'g')
        r += [gm(0), gmad8(0), gmad8(1), gm(1), gmad8(2), gmad8(3), gm(2), gmad8(4), gmad8(5), gm(3), gmad8(6), gmad8(7),
              gm(4), pm(0), pm(1), gm(5), pm(2), pm(3), gm(6), al(0), al(1), gm(7), al(2), al(3)]
    r += [I("Lk2_gskip:")]
    return r


WAITGAPS = set()


def place_waits(gaps, needs, entry, nextm, AGE=7):
    issued = list(entry)
    done = 0
    flat = []
    n = len(gaps)
    wg = set()

    def need_for(t):
        q = -1
        for k in range(done, len(issued)):
            if issued[k][0] & t:
                q = k
        return q
    touch = lambda i: set(i.rd) | set(i.wr)
    for g in range(n):
        m, sc, ve = gaps[g]
        if m is not None:
            assert need_for(touch(m)) < 0, ('late ds', g, m)
            flat.append(m)
        nx = gaps[g + 1][0] if g + 1 < n else nextm
        t = set(needs.get(g, set()))
        if nx is not None:
            t |= touch(nx)
        q = need_for(t)
        if q >= 0:
            for k in range(q, len(issued)):
                if issued[k][1] <= g - AGE:
                    q = k
            N = min(15, len(issued) - 1 - q)
            flat.append(I(f"s_waitcnt lgkmcnt({N})", 'w'))
            wg.add(g)
            done = len(issued) - N
        flat.extend(sc)
        for x in ve:
            if x.kind not in ('label', 'dir'):
                assert need_for(touch(x)) < 0, ('late ds', g, x)
            if x.kind == 'ds':
                issued.append((set(x.wr), g))
            flat.append(x)
    return flat, [(r, g - n) for r, g in issued[done:]], wg


def iter_code(variant, entry, pre):
    gaps, needs = build_iter(variant)
    nextm = None if variant in ('drain', 'tail') else gaps[0][0]
    flat, ex, wg = place_waits(gaps, needs, entry, nextm)
    fixed, problems = pad_hazards(flat, fix=True, pre=pre)
    return fixed, problems, ex, wg


def gen_loop_variants():
    WAITGAPS.clear()
    _, _, ex, _ = iter_code('mid', [], [])
    _, _, ex2, wg = iter_code('mid', ex, [])
    assert ex == ex2
    WAITGAPS.update(wg)
    mid0, _, _, _ = iter_code('mid', ex, [])
    mid, prob, _, _ = iter_code('mid', ex, mid0[-30:])
    assert not prob, prob
    _, prob, _, _ = iter_code('midskip', ex, mid0[-30:])
    assert not prob, prob
    tail, _, ex3, _ = iter_code('tail', ex, mid[-30:])
    drain, _, _, _ = iter_code('drain', ex, mid[-30:])
    drain2, _, _, _ = iter_code('drain', ex3, tail[-30:])
    assert [x.text for x in drain] == [x.text for x in drain2]
    return mid, tail, drain
```

```python
import sys
from common import *
import k1, k2, k3, diag

NAME = "gather_scatter__hybrid_graph_tf_graphgps__graph"


def main(out):
    ref = open(f"cdna_kernels/{NAME}.s.ref").read().split('\n')
    head = [l for l in ref if l.startswith(';') and '@launch' not in l and 'Override launch' not in l and 'grid=ceil' not in l]
    s = '\n'.join(head) + '\n'
    s += f"; @launch kernel=gps_prep_kernel grid=({k1.K1_NWG},1,1) block=({K1T},1,1) lds={k1.K1_LDS}\n"
    s += f"; @launch kernel=gps_attn_kernel grid=({k2.K2_NWG},1,1) block=(256,1,1) lds={k2.K2_LDS}\n"
    DIAG = os.environ.get("STAMPS") == "2"
    if DIAG:
        s += "; @launch kernel=gps_diag_kernel grid=(1,1,1) block=(64,1,1) lds=0\n"
    s += '.amdgcn_target "amdgcn-amd-amdhsa--gfx950"\n.text\n'
    s += kernel_wrap("gps_prep_kernel", k1.gen_k1(), 0, 0)
    s += kernel_wrap("gps_attn_kernel", k2.gen_k2(), 0, 0)
    if DIAG:
        n1, n2, n3 = k1.K1_NREC, k2.K2_ATT * 4, k3.K3_NREC
        specs = [(0, 0, 0, n1, 0), (0, 0, 0, n1, 1), (0, 1, 0, n1, 1), (0, 4, 0, n1, 1),
                 (1, 0, 0, n2, 0), (1, 0, 0, n2, 1), (1, 1, 0, n2, 1), (1, 2, 0, n2, 1), (1, 3, 0, n2, 0), (1, 3, 0, n2, 1),
                 (1, 4, 0, n2, 1), (1, 5, 0, n2, 1), (1, 6, 0, n2, 1), (1, 7, 0, n2, 1), (1, 8, 0, n2, 1)]
        s += kernel_wrap("gps_diag_kernel", diag.gen_diag(specs, 0, tuple(int(x) for x in os.environ['SPIN'].split(':')) if os.environ.get('SPIN') else None), 0, 0)
    s += '.section .rodata,"a"\n'
    if DIAG:
        s += kernel_desc("gps_diag_kernel", 64, 64)
    s += kernel_desc("gps_prep_kernel", 256, 256)
    s += kernel_desc("gps_attn_kernel", 512, 256)
    fl = os.environ.get("STFLAG", "sc1")
    if fl != "none":
        s = '\n'.join((l + ' ' + fl) if l.strip().startswith('buffer_store') else l for l in s.split('\n'))
    open(out, 'w').write(s)


if __name__ == '__main__':
    main(sys.argv[1] if len(sys.argv) > 1 else f"cdna_kernels/{NAME}.s")
```

```python
import math, os
from asmlib import *

K1T = int(os.environ.get('K1T', '320'))
N = 12500
D = 128
E = 400000
NT16 = 784
NBIN = 782
G = 64
EPW = E // G
ENT_STRIDE = 10240 * 4
OFFT_STRIDE = 8192

KIMG_OFF = 0x0000000
QIMG_OFF = 0x0400000
HROW_OFF = 0x0800000
CELL = 24
BINB = G * CELL * 4
ENT2_OFF = 0x3400000
OVF_OFF = 0x0C00000
OVF_STRIDE = 7168 * 4
OVC_OFF = 0x0F00000
ENT_OFF = 0x0C00000
OFFT_OFF = 0x0F00000
PART_OFF = 0x1000000
PART_STRIDE = 0x400000
BLKB = 17408
STAT_OFF = 0x3000000
STAT_STRIDE = 0x20000
AGG_OFF = 0x3400000
WIMG_OFF = HROW_OFF + 0x320000
FLG_OFF = 0x3920000
NULLG_OFF = 0x3910000
MZ_OFF = 0x3A00000
MARGIN = 32.0
CNT_OFF = 0x3900000
WS_SIZE = 0x4000000

RT128 = math.sqrt(128.0)
CH = 1.0 / (RT128 - 1.0)
QSCALE = math.log2(math.e) / RT128

A_X, A_SRC, A_DST, A_DEG, A_WMSG, A_WQ, A_WK, A_WV, A_WOUT, A_OUT, A_DBG, A_WS = [8 * i for i in range(12)]


def srd(p, d, base, size):
    p(f"""
    s_mov_b32 s{d}, s{base}
    s_and_b32 s{d+1}, s{base+1}, 0xffff
    s_mov_b32 s{d+2}, {size}
    s_mov_b32 s{d+3}, 0x20000
    """)


def allreduce_g(p, v, t, op='v_add_f32'):
    p(f"""
    v_mov_b32 v{t}, v{v}
    v_permlane16_swap_b32 v{v}, v{t}
    {op} v{v}, v{v}, v{t}
    v_mov_b32 v{t}, v{v}
    v_permlane32_swap_b32 v{v}, v{t}
    {op} v{v}, v{v}, v{t}
    """)


def bcast_g3(p, src, dst, t):
    p(f"""
    v_mov_b32 v{t}, v{src}
    v_mov_b32 v{dst}, v{src}
    v_permlane32_swap_b32 v{t}, v{dst}
    v_mov_b32 v{t}, v{dst}
    v_permlane16_swap_b32 v{t}, v{dst}
    """)


def kernel_wrap(name, body, nvgpr, accum, nsgpr=102):
    s = f""".globl {name}
.p2align 8
.type {name},@function
{name}:
"""
    s += body
    return s


def kernel_desc(name, nvgpr, accum, nsgpr=102):
    return f""".p2align 6
.amdhsa_kernel {name}
  .amdhsa_next_free_vgpr {nvgpr}
  .amdhsa_next_free_sgpr {nsgpr}
  .amdhsa_accum_offset {accum}
  .amdhsa_group_segment_fixed_size 0
  .amdhsa_kernarg_size 96
  .amdhsa_user_sgpr_count 2
  .amdhsa_user_sgpr_kernarg_segment_ptr 1
  .amdhsa_system_sgpr_workgroup_id_x 1
.end_amdhsa_kernel
"""


import os
STAMPS = bool(os.environ.get("STAMPS"))
STAMP_OFF = 0x3C00000


def stamp(p, idx, cyc=False):
    if not STAMPS:
        return
    p(f"""
    {'s_memtime' if cyc else 's_memrealtime'} s[98:99]
    s_waitcnt lgkmcnt(0)
    s_mov_b32 s{80+idx}, s98
    """)


def stamp_flush(p, kern, n, wave_sgpr=33, nw=4):
    if not STAMPS:
        return
    p(f"""
    s_mul_i32 s98, s2, {nw}
    s_add_u32 s98, s98, s{wave_sgpr}
    s_lshl_b32 s98, s98, 6
    s_add_u32 s98, s98, {STAMP_OFF + kern * 0x20000}
    s_mov_b64 exec, 1
    v_mov_b32 v200, 0
    """)
    for i in range(n):
        p(f"v_mov_b32 v201, s{80+i}")
        p(f"buffer_store_dword v201, v200, s[28:31], s98 offen offset:{4*i}")
```

```python
from common import *

NW = 16
NWV = K1T // 64
NLN = (784 + NWV - 1) // NWV
K1_NWG = G + NW + NLN
K1_LDS = 65536
K1_NREC = K1_NWG * NWV


def bf16_round(p, v, t):
    p(f"""
    v_cvt_pk_bf16_f32 v{t}, v{v}, v{v}
    v_lshlrev_b32 v{v}, 16, v{t}
    """)


def pk_rowsum(p, B, T):
    P2 = lambda r: f"v[{r}:{r+1}]"
    for c in range(4):
        p(f"v_pk_add_f32 {P2(T+2*c)}, {P2(B+2*c)}, {P2(B+8+2*c)}")
    for k in range(8, 16):
        c = k & 3
        p(f"v_pk_add_f32 {P2(T+2*c)}, {P2(T+2*c)}, {P2(B+2*k)}")
    p(f"""
    v_pk_add_f32 {P2(T)}, {P2(T)}, {P2(T+2)}
    v_pk_add_f32 {P2(T+4)}, {P2(T+4)}, {P2(T+6)}
    v_pk_add_f32 {P2(T)}, {P2(T)}, {P2(T+4)}
    v_add_f32 v{T}, v{T}, v{T+1}
    """)
    allreduce_g(p, T, T + 1)


def k1_ln(p):
    stamp(p, 0)
    p(f"""
    s_load_dwordx2 s[4:5], s[0:1], {A_X}
    s_load_dwordx4 s[8:11], s[0:1], {A_WQ}
    s_load_dwordx2 s[12:13], s[0:1], {A_WS}
    v_and_b32 v1, 63, v0
    v_lshrrev_b32 v7, 6, v0
    v_lshrrev_b32 v2, 4, v1
    v_and_b32 v3, 15, v1
    v_readfirstlane_b32 s33, v7
    s_sub_u32 s34, s2, {G+NW}
    s_mul_i32 s34, s34, {NWV}
    v_lshlrev_b32 v4, 8, v3
    v_lshl_add_u32 v4, v2, 4, v4
    s_add_u32 s34, s34, s33
    s_lshl_b32 s35, s34, 12
    s_waitcnt lgkmcnt(0)
    """)
    srd(p, 16, 4, N * 256)
    for ks in range(4):
        p(f"buffer_load_dwordx4 v[{8+4*ks}:{11+4*ks}], v4, s[16:19], s35 offen offset:{64*ks}")
    srd(p, 20, 8, 32768)
    srd(p, 24, 10, 32768)
    srd(p, 28, 12, WS_SIZE)
    p("""
    s_barrier
    s_cmp_ge_u32 s33, 4
    s_cbranch_scc1 Lk1_nodma
    """)
    p(f"""
    v_lshlrev_b32 v5, 2, v2
    v_xor_b32 v5, v5, v3
    v_lshlrev_b32 v5, 4, v5
    v_lshl_add_u32 v5, v2, 8, v5
    s_lshl_b32 s36, s33, 13
    s_mov_b32 m0, s36
    s_add_u32 s37, s36, 4096
    """)
    for j in range(4):
        p(f"buffer_load_dwordx4 v5, s[20:23], s36 offen offset:{1024*j} lds")
    p("s_mov_b32 m0, s37")
    for j in range(4):
        p(f"buffer_load_dwordx4 v5, s[20:23], s37 offen offset:{1024*j} lds")
    p(f"""
    s_lshl_b32 s38, s33, 2
    v_xor_b32 v6, v3, v2
    v_xor_b32 v6, s38, v6
    v_lshlrev_b32 v6, 4, v6
    v_lshl_add_u32 v6, v2, 8, v6
    s_lshl_b32 s38, s33, 11
    """)
    for a in range(4):
        p(f"""
        s_add_u32 s39, s38, {8192*a}
        s_add_u32 s40, s39, 32768
        s_mov_b32 m0, s40
        s_nop 0
        buffer_load_dwordx4 v6, s[24:27], s39 offen lds
        buffer_load_dwordx4 v6, s[24:27], s39 offen offset:1024 lds
        """)
    p("Lk1_nodma:")
    p(f"""
    v_bfe_u32 v205, v1, 2, 2
    v_and_b32 v206, 3, v1
    v_lshl_add_u32 v207, v2, 3, v205
    v_lshlrev_b32 v207, 8, v207
    v_lshl_add_u32 v207, v206, 4, v207
    v_lshl_add_u32 v208, v205, 6, v207
    v_xor_b32 v209, 64, v208
    v_xor_b32 v210, 128, v208
    v_xor_b32 v211, 192, v208
    """)
    p(f"""
    v_lshrrev_b32 v212, 2, v3
    v_lshlrev_b32 v212, 3, v212
    v_and_b32 v213, 3, v3
    v_add_u32 v212, v212, v213
    v_lshlrev_b32 v212, 8, v212
    v_xor_b32 v213, v2, v3
    v_lshl_add_u32 v212, v213, 4, v212
    v_add_u32 v212, 32768, v212
    v_xor_b32 v213, 64, v212
    v_xor_b32 v214, 128, v212
    v_xor_b32 v215, 192, v212
    """)
    if STAMPS:
        p("s_waitcnt vmcnt(16)")
        stamp(p, 1)
    if NWV > 4:
        p("""
        s_cmp_lt_u32 s33, 4
        s_cbranch_scc1 Lk1_xw
        s_waitcnt vmcnt(0)
        Lk1_xw:
        s_waitcnt vmcnt(16)
        """)
    F = 24
    P2 = lambda r: f"v[{r}:{r+1}]"
    p("s_mov_b32 s41, 0xffff0000")
    for k in range(16):
        p(f"v_lshlrev_b32 v{F+2*k}, 16, v{8+k}")
        p(f"v_and_b32 v{F+2*k+1}, s41, v{8+k}")
    pk_rowsum(p, F, 200)
    p(f"v_mul_f32 v200, {hexf(1.0/128)}, v200")
    for k in range(16):
        p(f"v_pk_add_f32 {P2(F+2*k)}, {P2(F+2*k)}, v[200:201] op_sel_hi:[1,0] neg_lo:[0,1] neg_hi:[0,1]")
    for c in range(4):
        p(f"v_pk_mul_f32 {P2(200+2*c)}, {P2(F+2*c)}, {P2(F+2*c)}")
    for k in range(4, 16):
        c = k & 3
        p(f"v_pk_fma_f32 {P2(200+2*c)}, {P2(F+2*k)}, {P2(F+2*k)}, {P2(200+2*c)}")
    p("""
    v_pk_add_f32 v[200:201], v[200:201], v[202:203]
    v_pk_add_f32 v[204:205], v[204:205], v[206:207]
    v_pk_add_f32 v[200:201], v[200:201], v[204:205]
    v_add_f32 v200, v200, v201
    """)
    allreduce_g(p, 200, 201)
    bcast_g3(p, F + 31, 202, 203)
    p(f"v_mul_f32 v200, {hexf(1.0/128)}, v200")
    bf16_round(p, 200, 201)
    p(f"v_add_f32 v200, {hexf(1e-5)}, v200")
    bf16_round(p, 200, 201)
    p("v_sqrt_f32 v200, v200")
    bf16_round(p, 200, 201)
    p("v_rcp_f32 v200, v200")
    p(f"v_mul_f32 v202, {hexf(CH)}, v202")
    p("v_cmp_eq_u32 s[42:43], 3, v2")
    p("v_mul_f32 v202, v202, v200")
    HB = 56
    HT = 72
    H2 = 88
    for k in range(16):
        p(f"v_pk_fma_f32 {P2(H2+2*k)}, {P2(F+2*k)}, v[200:201], v[202:203] op_sel_hi:[1,0,0]")
    p(f"v_cndmask_b32 v{H2+31}, v{H2+31}, 1.0, s[42:43]")
    p(f"""
    s_add_u32 s45, s35, {HROW_OFF}
    s_add_u32 s46, s35, {QIMG_OFF}
    """)
    for k in range(16):
        p(f"v_cvt_pk_bf16_f32 v{HT+k}, v{H2+2*k}, v{H2+2*k+1}")
        if k % 4 == 3:
            ks = k // 4
            p(f"buffer_store_dwordx4 v[{HT+4*ks}:{HT+4*ks+3}], v4, s[28:31], s45 offen offset:{64*ks}")
    for k in range(16):
        p(f"v_pk_mul_f32 {P2(F+2*k)}, {P2(F+2*k)}, v[200:201] op_sel_hi:[1,0]")
    for k in range(16):
        p(f"v_cvt_pk_bf16_f32 v{HB+k}, v{F+2*k}, v{F+2*k+1}")
    p("""
    s_waitcnt vmcnt(12)
    s_barrier
    """)
    stamp(p, 2)
    QA = 88
    AF = 168

    def rd1(t):
        b = AF + 16 * (t & 1)
        for ks in range(4):
            for u in range(2):
                p(f"ds_read_b64_tr_b16 v[{b+4*ks+2*u}:{b+4*ks+2*u+1}], v{208+(t>>1)} offset:{8192*ks+1024*u+8*(t&1)}")
    rd1(0)
    for t in range(8):
        if t < 7:
            rd1(t + 1)
        b = AF + 16 * (t & 1)
        for ks in range(4):
            c = '0' if ks == 0 else f'v[{QA+4*t}:{QA+4*t+3}]'
            p(f"v_mfma_f32_16x16x32_bf16 v[{QA+4*t}:{QA+4*t+3}], v[{b+4*ks}:{b+4*ks+3}], v[{HB+4*ks}:{HB+4*ks+3}], {c}")
    UA = 136
    QF = 120

    def rd2(t):
        b = AF + 16 * (t & 1)
        for kk in range(4):
            p(f"ds_read_b128 v[{b+4*kk}:{b+4*kk+3}], v{212+kk} offset:{8192*(t>>1)+1024*(t&1)}")
    p("""
    s_waitcnt vmcnt(4)
    s_barrier
    """)
    rd2(0)
    for k in range(16):
        p(f"v_cvt_pk_bf16_f32 v{QF+k}, v{QA+2*k}, v{QA+2*k+1}")
    for t in range(8):
        if t < 7:
            rd2(t + 1)
        b = AF + 16 * (t & 1)
        for kk in range(4):
            c = '0' if kk == 0 else f'v[{UA+4*t}:{UA+4*t+3}]'
            p(f"v_mfma_f32_16x16x32_bf16 v[{UA+4*t}:{UA+4*t+3}], v[{b+4*kk}:{b+4*kk+3}], v[{QF+4*kk}:{QF+4*kk+3}], {c}")
    pk_rowsum(p, UA, 200)
    bcast_g3(p, UA + 31, 202, 201)
    k1c = (1.0 + CH) / RT128 * QSCALE
    k2c = -CH / RT128 * QSCALE
    p(f"""
    v_mul_f32 v202, {hexf(k1c)}, v202
    v_mul_f32 v200, {hexf(k2c)}, v200
    v_add_f32 v200, v200, v202
    v_mov_b32 v202, {hexf(QSCALE)}
    """)
    for k in range(16):
        p(f"v_pk_fma_f32 {P2(UA+2*k)}, {P2(UA+2*k)}, v[202:203], v[200:201] op_sel_hi:[1,0,0]")
    p(f"v_cndmask_b32 v{UA+31}, v{UA+31}, 0, s[42:43]")
    for k in range(16):
        p(f"v_cvt_pk_bf16_f32 v{QF+k}, v{UA+2*k}, v{UA+2*k+1}")
    p("v_lshlrev_b32 v204, 4, v1")
    for ks in range(4):
        p(f"buffer_store_dwordx4 v[{QF+4*ks}:{QF+4*ks+3}], v204, s[28:31], s46 offen offset:{1024*ks}")
    for ks in range(4):
        p(mf("v[200:203]", vr(HT + 4 * ks, 4), vr(QF + 4 * ks, 4), '0' if ks == 0 else "v[200:203]"))
    p(f"""
    s_cmp_eq_u32 s34, {N // 16}
    s_cselect_b32 s48, 0, 4
    v_cmp_lt_u32 vcc, s48, v2
    v_mov_b32 v205, 0xff800000
    s_lshl_b32 s47, s34, 6
    s_add_u32 s47, s47, {MZ_OFF}
    v_lshlrev_b32 v206, 2, v3
    v_max3_f32 v200, v200, v201, v202
    v_max_f32 v200, v200, v203
    v_cndmask_b32 v200, v200, v205, vcc
    """)
    allreduce_g(p, 200, 201, 'v_max_f32')
    p(f"""
    v_sub_f32 v200, {hexf(-MARGIN)}, v200
    buffer_store_dword v200, v206, s[28:31], s47 offen
    """)
    stamp(p, 3)
    if STAMPS:
        p("s_waitcnt vmcnt(0)")
    stamp(p, 4)
    stamp_flush(p, 0, 5, nw=NWV)
    p("s_endpgm")


def mf(d, a, b, c):
    return f"v_mfma_f32_16x16x32_bf16 {d}, {a}, {b}, {c}"


def k1_wprep(p):
    p(f"""
    s_load_dwordx2 s[4:5], s[0:1], {A_WMSG}
    s_load_dwordx2 s[6:7], s[0:1], {A_WV}
    s_load_dwordx2 s[8:9], s[0:1], {A_WOUT}
    s_load_dwordx2 s[12:13], s[0:1], {A_WS}
    v_and_b32 v1, 63, v0
    v_lshrrev_b32 v7, 6, v0
    v_lshrrev_b32 v2, 4, v1
    v_and_b32 v3, 15, v1
    v_readfirstlane_b32 s33, v7
    s_sub_u32 s34, s2, {G}
    s_cmp_lg_u32 s33, 0
    s_cbranch_scc1 {'Lk1_wskip' if STAMPS else 'Lk1_exit'}
    s_and_b32 s35, s34, 7
    s_waitcnt lgkmcnt(0)
    s_cmp_ge_u32 s34, 8
    s_cselect_b32 s4, s6, s4
    s_cselect_b32 s5, s7, s5
    """)
    srd(p, 16, 4, 32768)
    srd(p, 20, 8, 32768)
    srd(p, 28, 12, WS_SIZE)
    AFR = 16
    BFR = 144
    AC = 160
    p(f"""
    v_lshlrev_b32 v4, 8, v3
    v_lshl_add_u32 v4, v2, 4, v4
    s_mov_b32 s36, 0
    """)
    for t in range(8):
        for kk in range(4):
            b = AFR + (t * 4 + kk) * 4
            p(f"buffer_load_dwordx4 v[{b}:{b+3}], v4, s[16:19], s36 offen offset:{64*kk}")
        p("s_add_u32 s36, s36, 4096")
    p(f"""
    v_lshrrev_b32 v5, 2, v3
    v_lshlrev_b32 v5, 3, v5
    v_and_b32 v6, 3, v3
    v_add_u32 v5, v5, v6
    v_lshlrev_b32 v5, 1, v5
    v_lshl_add_u32 v5, v2, 11, v5
    s_lshr_b32 s36, s35, 1
    s_lshl_b32 s36, s36, 6
    s_and_b32 s37, s35, 1
    s_lshl_b32 s37, s37, 3
    s_add_u32 s36, s36, s37
    """)
    for kk in range(4):
        p(f"s_add_u32 s37, s36, {8192*kk}")
        for x in range(8):
            p(f"buffer_load_ushort v{AC+8*kk+x}, v5, s[20:23], s37 offen offset:{256*x}")
    for k in range(16):
        p(f"v_lshl_or_b32 v{BFR+k}, v{AC+2*k+1}, 16, v{AC+2*k}")
    for t in range(8):
        d = vr(AC + 4 * t, 4)
        for kk in range(4):
            b = AFR + (t * 4 + kk) * 4
            p(mf(d, vr(b, 4), vr(BFR + 4 * kk, 4), '0' if kk == 0 else d))
    for c in range(4):
        p(f"v_add_f32 v{200+c}, v{AC+c}, v{AC+4+c}")
    for k in range(2, 8):
        for c in range(4):
            p(f"v_add_f32 v{200+c}, v{200+c}, v{AC+4*k+c}")
    p("""
    v_add_f32 v200, v200, v201
    v_add_f32 v202, v202, v203
    v_add_f32 v200, v200, v202
    """)
    allreduce_g(p, 200, 201)
    bcast_g3(p, AC + 31, 202, 201)
    p(f"""
    v_mul_f32 v202, {hexf((1.0+CH)/RT128)}, v202
    v_mul_f32 v200, {hexf(-CH/RT128)}, v200
    v_add_f32 v200, v200, v202
    v_cmp_eq_u32 s[42:43], 3, v2
    """)
    for k in range(32):
        p(f"v_add_f32 v{AC+k}, v{AC+k}, v200")
    p(f"v_cndmask_b32 v{AC+31}, v{AC+31}, 0, s[42:43]")
    for k in range(16):
        p(f"v_cvt_pk_bf16_f32 v{16+k}, v{AC+2*k}, v{AC+2*k+1}")
    p(f"""
    v_lshlrev_b32 v4, 4, v1
    s_lshl_b32 s36, s34, 12
    s_add_u32 s36, s36, {WIMG_OFF}
    """)
    for kk in range(4):
        p(f"buffer_store_dwordx4 v[{16+4*kk}:{19+4*kk}], v4, s[28:31], s36 offen offset:{1024*kk}")
    if STAMPS:
        p("Lk1_wskip:")
        p("s_waitcnt lgkmcnt(0)")
        srd(p, 28, 12, WS_SIZE)
        for i in range(5):
            stamp(p, i)
        stamp_flush(p, 0, 5, nw=NWV)
    p("s_endpgm")


def k1_bin(p):
    RS = K1T * 16
    NR = (EPW * 4 + RS - 1) // RS
    STG = 8192
    NO = (8608 * 4 + RS - 1) // RS
    NF = (9400 * 4 + RS - 1) // RS
    TOT = STG + max(NF, NO) * RS
    assert TOT + 64 <= K1_LDS and NO * RS <= ENT_STRIDE
    NE = 4 * NR
    stamp(p, 0)
    p(f"""
    s_load_dwordx4 s[4:7], s[0:1], {A_SRC}
    s_load_dwordx2 s[12:13], s[0:1], {A_WS}
    v_lshlrev_b32 v1, 4, v0
    v_lshrrev_b32 v7, 6, v0
    v_mov_b64 v[8:9], 0
    v_mov_b64 v[10:11], 0
    v_readfirstlane_b32 s33, v7
    ds_write_b128 v1, v[8:11]
    s_mul_i32 s34, s2, {EPW*4}
    v_mov_b32 v12, 0xffff
    v_mov_b32 v13, v12
    v_mov_b32 v14, v12
    v_mov_b32 v15, v12
    s_waitcnt lgkmcnt(0)
    """)
    srd(p, 20, 6, E * 4)
    DS = 16
    SR = 44
    RK = 72
    BA = 100
    for r in range(NR):
        p(f"s_add_u32 s35, s34, {RS*r}")
        p(f"buffer_load_dwordx4 v[{DS+4*r}:{DS+4*r+3}], v1, s[20:23], s35 offen")
    srd(p, 16, 4, E * 4)
    for r in range(NR):
        p(f"s_add_u32 s35, s34, {RS*r}")
        p(f"buffer_load_dwordx4 v[{SR+4*r}:{SR+4*r+3}], v1, s[16:19], s35 offen")
    srd(p, 28, 12, WS_SIZE)
    for r in range(NF):
        p(f"ds_write_b128 v1, v[12:15] offset:{STG+RS*r}")
    p(f"""
    v_and_b32 v2, 0xf0, v1
    s_lshl_b32 s35, s2, 8
    s_add_u32 s35, s35, {CNT_OFF}
    s_add_u32 s36, s35, {NULLG_OFF - CNT_OFF}
    v_and_b32 v4, 63, v0
    v_lshlrev_b32 v4, 2, v4
    v_add_u32 v4, {784*4}, v4
    v_lshlrev_b32 v3, 2, v0
    s_mov_b32 s43, 0x10000
    s_movk_i32 s44, {783*4}
    s_mov_b32 s45, -4
    s_cmp_lg_u32 s33, 0
    s_cbranch_scc1 Lk1_b0
    buffer_store_dwordx4 v[8:11], v2, s[28:31], s35 offen
    buffer_store_dwordx4 v[12:15], v2, s[28:31], s36 offen
    s_waitcnt vmcnt({2 + 2*NR - 1} - 1)
    Lk1_b0:
    v_mov_b32 v2, 1
    s_waitcnt lgkmcnt(0)
    s_barrier
    """.replace(f"s_waitcnt vmcnt({2 + 2*NR - 1} - 1)\n", ""))
    return_marker = len(p.ins)
    for r in range(NR):
        p(f"s_waitcnt vmcnt({2*NR - 1 - r})")
        for k in range(4):
            e = 4 * r + k
            p(f"v_lshrrev_b32 v{BA+e}, 2, v{DS+e}")
            p(f"v_and_b32 v{BA+e}, s45, v{BA+e}")
            p(f"v_min_u32 v{BA+e}, s44, v{BA+e}")
            if r == NR - 1:
                p(f"""
                v_cmp_gt_u32 vcc, {EPW - (RS//4)*(NR-1) - k}, v3
                v_cndmask_b32 v{BA+e}, v4, v{BA+e}, vcc
                """)
            p(f"ds_add_rtn_u32 v{RK+e}, v{BA+e}, v2")
    stamp(p, 1)
    p("s_waitcnt vmcnt(0)")
    for e in range(NE):
        p(f"v_and_b32 v{DS+e}, 15, v{DS+e}")
        p(f"v_lshl_or_b32 v{DS+e}, s43, v{DS+e}, v{SR+e}")
    p(f"""
    s_waitcnt lgkmcnt(0)
    s_barrier
    ds_read_b128 v[8:11], v1
    s_lshl_b32 s37, s33, 2
    s_add_u32 s37, s37, {TOT}
    v_mov_b32 v6, s37
    v_add_u32 v8, 3, v8
    v_add_u32 v9, 3, v9
    v_add_u32 v10, 3, v10
    v_add_u32 v11, 3, v11
    v_and_b32 v8, -4, v8
    v_and_b32 v9, -4, v9
    v_and_b32 v10, -4, v10
    v_and_b32 v11, -4, v11
    v_add_u32 v13, v8, v9
    v_add_u32 v14, v13, v10
    v_add_u32 v15, v14, v11
    v_mov_b32 v5, v15
    v_add_u32_dpp v5, v5, v5 row_shr:1 row_mask:0xf bank_mask:0xf
    v_add_u32_dpp v5, v5, v5 row_shr:2 row_mask:0xf bank_mask:0xf
    v_add_u32_dpp v5, v5, v5 row_shr:4 row_mask:0xf bank_mask:0xf
    v_add_u32_dpp v5, v5, v5 row_shr:8 row_mask:0xf bank_mask:0xf
    v_add_u32_dpp v5, v5, v5 row_bcast:15 row_mask:0xa bank_mask:0xf
    v_add_u32_dpp v5, v5, v5 row_bcast:31 row_mask:0xc bank_mask:0xf
    v_readlane_b32 s36, v5, 63
    v_mov_b32 v4, s36
    ds_write_b32 v6, v4
    v_mov_b32 v6, {TOT}
    s_cmp_gt_u32 s33, 0
    s_cselect_b32 s38, -1, 0
    s_cmp_gt_u32 s33, 1
    s_cselect_b32 s39, -1, 0
    s_cmp_gt_u32 s33, 2
    s_cselect_b32 s40, -1, 0
    v_sub_u32 v5, v5, v15
    s_waitcnt lgkmcnt(0)
    s_barrier
    ds_read_b128 v[128:131], v6
    s_lshl_b32 s41, s2, 13
    s_add_u32 s41, s41, {OFFT_OFF}
    v_and_b32 v128, s38, v128
    v_and_b32 v129, s39, v129
    v_and_b32 v130, s40, v130
    v_add3_u32 v5, v5, v128, v129
    v_add_u32 v132, v5, v130
    v_add_u32 v133, v132, v8
    v_add_u32 v134, v132, v13
    v_add_u32 v135, v132, v14
    ds_write_b128 v1, v[132:135]
    buffer_store_dwordx4 v[132:135], v1, s[28:31], s41 offen
    s_waitcnt lgkmcnt(0)
    s_barrier
    """)
    stamp(p, 2)
    for e in range(NE):
        p(f"ds_read_b32 v{BA+e}, v{BA+e}")
    for e in range(NE):
        p(f"v_add_lshl_u32 v{BA+e}, v{BA+e}, v{RK+e}, 2")
        p(f"ds_write_b32 v{BA+e}, v{DS+e} offset:{STG}")
    p(f"""
    s_mul_i32 s42, s2, {ENT_STRIDE}
    s_add_u32 s42, s42, {ENT_OFF}
    s_waitcnt lgkmcnt(0)
    s_barrier
    """)
    for r in range(NO):
        p(f"ds_read_b128 v[{SR+4*r}:{SR+4*r+3}], v1 offset:{STG+RS*r}")
    for r in range(NO):
        p(f"s_add_u32 s35, s42, {RS*r}")
        p(f"buffer_store_dwordx4 v[{SR+4*r}:{SR+4*r+3}], v1, s[28:31], s35 offen")
    stamp(p, 3)
    if STAMPS:
        p("s_waitcnt vmcnt(0)")
    stamp(p, 4)
    stamp_flush(p, 0, 5, nw=NWV)
    p("s_endpgm")


def gen_k1():
    h = Prog()
    h(f"""
    s_cmp_ge_u32 s2, {K1_NWG}
    s_cbranch_scc1 Lk1_exit
    s_cmp_ge_u32 s2, {G+NW}
    s_cbranch_scc1 Lk1_ln
    s_cmp_ge_u32 s2, {G}
    s_cbranch_scc1 Lk1_w
    """)
    a = Prog()
    k1_bin(a)
    b = Prog()
    k1_ln(b)
    c = Prog()
    k1_wprep(c)
    body = emit(h.ins) + emit(a.finish()) + "Lk1_w:\n" + emit(c.finish()) + "Lk1_ln:\n" + emit(b.finish()) + "Lk1_exit:\n  s_endpgm\n"
    return body
```

```python
from k2loop import *

MF32 = "v_mfma_f32_32x32x16_bf16"
POLL_LIMIT = 1 << 22


def k2_setup(p):
    stamp(p, 0)
    p(f"""
    s_load_dwordx2 s[12:13], s[0:1], {A_WS}
    s_load_dwordx2 s[14:15], s[0:1], {A_DEG}
    s_load_dwordx2 s[74:75], s[0:1], {A_X}
    s_load_dwordx2 s[76:77], s[0:1], {A_OUT}
    v_and_b32 v{V_LANE}, 63, v0
    v_lshrrev_b32 v{V_T0}, 6, v0
    v_lshlrev_b32 v{V_L16}, 4, v{V_LANE}
    v_readfirstlane_b32 s33, v{V_T0}
    v_and_b32 v{V_I}, 15, v{V_LANE}
    v_lshrrev_b32 v{V_G}, 4, v{V_LANE}
    v_and_b32 v{V_T0}, 1, v{V_G}
    v_mul_u32_u24 v{V_T0}, 12, v{V_T0}
    v_xor_b32 v{V_T0}, v{V_T0}, v{V_I}
    v_lshlrev_b32 v{V_T1}, 4, v{V_G}
    v_lshl_add_u32 v{V_KS}, v{V_T0}, 8, v{V_T1}
    v_lshlrev_b32 v{V_T0}, 4, v{V_T0}
    v_lshl_add_u32 v{V_KL}, v{V_G}, 8, v{V_T0}
    s_mul_i32 s35, s2, 13108
    s_lshr_b32 s35, s35, 16
    s_mul_i32 s3, s35, 5
    s_sub_u32 s34, s2, s3
    s_lshl_b32 s37, s35, 4
    s_lshl_b32 s3, s33, 2
    s_mul_i32 s36, s33, 5
    s_add_u32 s36, s36, s34
    s_cmp_lt_u32 s36, 16
    s_cselect_b32 s4, 0, 0x10000
    s_add_u32 s36, s36, s37
    s_add_u32 s36, s36, s4
    s_add_u32 s37, s37, s3
    s_lshl_b32 s39, s33, 12
    s_add_u32 s39, s39, {HROW_OFF}
    s_mul_i32 s70, s34, {NSTAT}
    s_lshl_b32 s38, s37, 12
    s_add_u32 s38, s38, {QIMG_OFF}
    s_mov_b32 s45, 0
    s_waitcnt lgkmcnt(0)
    """)
    srd(p, 28, 12, WS_SIZE)
    dma_tiles(p, 0, 1)
    for j in range(4):
        for ks in range(4):
            p(f"buffer_load_dwordx4 {vr(Qf(j,ks),4,'a')}, v{V_L16}, s[28:31], s38 offen offset:{1024*ks}")
        if j < 3:
            p("s_add_u32 s38, s38, 4096")
    p(f"""
    v_lshlrev_b32 v{V_T0}, 2, v{V_I}
    s_lshl_b32 s46, s37, 6
    s_add_u32 s46, s46, {MZ_OFF}
    """)
    for j in range(4):
        p(f"buffer_load_dword v{NM(j)}, v{V_T0}, s[28:31], s46 offen offset:{64*j}")
    srd(p, 24, 14, N * 2)
    p(f"""
    s_add_u32 s16, s12, {HROW_OFF - 3072}
    s_addc_u32 s17, s13, 0
    """)
    srd(p, 20, 16, 12544 * 256 + 3072)
    p(f"""
    v_lshrrev_b32 v{V_T0}, 2, v{V_LANE}
    v_bfe_u32 v{V_T1}, v{V_LANE}, 1, 1
    v_mul_u32_u24 v{V_T2}, 12, v{V_T1}
    v_xor_b32 v{V_T0}, v{V_T0}, v{V_T2}
    v_lshlrev_b32 v{V_T0}, 4, v{V_T0}
    v_lshl_add_u32 v{V_T0}, v{V_T1}, 8, v{V_T0}
    v_and_b32 v{V_T1}, 1, v{V_LANE}
    v_lshl_add_u32 v{V_VL}, v{V_T1}, 3, v{V_T0}
    s_mul_i32 s49, s33, {GW_STRIDE}
    s_add_u32 s49, s49, {GW_OFF}
    s_lshl_b32 s54, s33, 14
    s_add_u32 s54, s54, {STG_OFF}
    s_add_u32 s65, s54, 4096
    s_mov_b32 s55, 256
    s_mov_b32 s57, 0x40004000
    s_mov_b32 s58, 0x07060302
    s_mov_b32 s60, {ENT_OFF}
    s_lshl_b32 s73, s35, 8
    s_add_u32 s73, s73, {CNT_OFF}
    v_lshlrev_b32 v{V_LA}, 5, v{V_G}
    v_add_u32 v{V_LA}, s49, v{V_LA}
    """)


def kv_dma(p):
    p("s_mov_b32 m0, s41")
    for i in range(4):
        p(f"buffer_load_dwordx4 v{V_KS}, s[28:31], s40 offen offset:{64*i} lds")
        if i < 3:
            p("s_add_u32 m0, m0, 960")


def dma_tiles(p, t0, t1):
    if t0 == 0:
        p(f"""
        s_lshl_b32 s40, s70, 14
        s_add_u32 s40, s40, s39
        s_lshl_b32 s41, s33, 12
        """)
    for t in range(t0, t1):
        kv_dma(p)
        p("s_add_u32 s40, s40, 16384")
        p("s_add_u32 s41, s41, 16384")


def gather_consts(p):
    t0, t1, t2 = V_T0, V_T1, V_T2
    p(f"""
    v_and_b32 v{t0}, 1, v{V_G}
    v_lshlrev_b32 v{t0}, 3, v{t0}
    v_xor_b32 v{t1}, v{t0}, v{V_I}
    v_lshlrev_b32 v{t1}, 4, v{t1}
    """)
    for k in range(4):
        p(f"v_xor_b32 v{LO+k}, {32*k}, v{t1}")
        p(f"v_add_u32 v{LO+k}, {3072-1024*k}, v{LO+k}")
    p(f"""
    v_bfe_u32 v{t1}, v{V_LANE}, 2, 2
    v_lshl_add_u32 v{t2}, v{t1}, 2, v{V_G}
    v_lshlrev_b32 v{t2}, 8, v{t2}
    v_lshlrev_b32 v{t1}, 1, v{t1}
    v_xor_b32 v{t0}, v{t0}, v{t1}
    v_bfe_u32 v{t1}, v{V_LANE}, 1, 1
    v_xor_b32 v{t0}, v{t0}, v{t1}
    v_lshl_add_u32 v{t2}, v{t0}, 4, v{t2}
    v_and_b32 v{t1}, 1, v{V_LANE}
    v_lshl_add_u32 v{t2}, v{t1}, 3, v{t2}
    v_add_u32 v{t2}, s54, v{t2}
    """)
    for dt in range(8):
        p(f"v_xor_b32 v{TA+dt}, {32*dt}, v{t2}")
    p(f"v_add_u32 v{V_ROT}, 18, v{V_I}")


def gather_plan(p):
    t0, t1, t2 = V_T0, V_T1, V_T2
    p(f"""
    s_cmp_lt_u32 s36, {NBIN}
    s_cselect_b32 s46, {(EPW + 3) // 4}, 0
    v_sub_u32 v{CN}, v{ST+1}, v{ST}
    v_lshrrev_b32 v{CN}, 2, v{CN}
    v_min_u32 v{CN}, s46, v{CN}
    v_mul_u32_u24 v{t0}, {ENT_STRIDE}, v{V_LANE}
    v_mov_b32 v{PS}, v{CN}
    v_lshl_add_u32 v{ST}, v{ST}, 2, v{t0}
    v_mov_b32 v{OT}, {NULLG_OFF - ENT_OFF}
    v_add_u32_dpp v{PS}, v{PS}, v{PS} row_shr:1 row_mask:0xf bank_mask:0xf
    v_mov_b32 v{OT+1}, v{OT}
    v_mov_b32 v{OT+2}, v{OT}
    v_add_u32_dpp v{PS}, v{PS}, v{PS} row_shr:2 row_mask:0xf bank_mask:0xf
    v_mov_b32 v{OT+3}, v{OT}
    v_add_u32 v{t2}, s49, v{V_L16}
    v_add_u32_dpp v{PS}, v{PS}, v{PS} row_shr:4 row_mask:0xf bank_mask:0xf
    ds_write_b128 v{t2}, v[{OT}:{OT+3}] offset:{IDX}
    v_cmp_lt_u32 vcc, {MAXQ}, v{CN}
    v_add_u32_dpp v{PS}, v{PS}, v{PS} row_shr:8 row_mask:0xf bank_mask:0xf
    v_add_u32 v{AD8+1}, 16, v{ST}
    v_add_u32 v{AD8+2}, 32, v{ST}
    v_add_u32_dpp v{PS}, v{PS}, v{PS} row_bcast:15 row_mask:0xa bank_mask:0xf
    v_add_u32 v{AD8+3}, 48, v{ST}
    v_add_u32 v{AD8+4}, 64, v{ST}
    v_add_u32_dpp v{PS}, v{PS}, v{PS} row_bcast:31 row_mask:0xc bank_mask:0xf
    v_add_u32 v{AD8+5}, 80, v{ST}
    v_mov_b32 v{t1}, {IDX_TRASH - IDX}
    v_readlane_b32 s59, v{PS}, 63
    v_sub_u32 v{PS}, v{PS}, v{CN}
    s_cmp_gt_u32 s59, {MAXTOT}
    s_cselect_b32 s46, 1, 0
    s_cmp_lg_u64 vcc, 0
    s_cselect_b32 s46, 1, s46
    s_cmp_eq_u32 s46, 0
    s_cselect_b32 s61, -1, 0
    s_cselect_b32 s59, s59, 0
    v_and_b32 v{t2}, s61, v{CN}
    v_lshlrev_b32 v{t0}, 2, v{PS}
    v_cmp_eq_u32 vcc, 0, v{t2}
    s_add_u32 s66, s59, 7
    s_lshr_b32 s66, s66, 3
    v_cndmask_b32 v{t0}, v{t0}, v{t1}, vcc
    v_add_u32 v{t0}, s49, v{t0}
    """)
    for q in range(MAXQ - 1, -1, -1):
        p(f"ds_write_b32 v{t0}, v{AD8+q if q else ST} offset:{IDX+4*q}")
    p(f"""
    s_lshl_b32 s46, s59, 2
    v_lshlrev_b32 v{t0}, 2, v{V_LANE}
    v_add_u32 v{t0}, s49, v{t0}
    v_add_u32 v{t2}, s46, v{t0}
    ds_write_b32 v{t2}, v{OT} offset:{IDX}
    s_mov_b32 m0, s49
    """)
    for k in range(4):
        p(f"ds_read_b32 v{AD8+k}, v{t0} offset:{IDX+256*k}")
    for k in range(4):
        p(f"buffer_load_dwordx4 v{AD8+k}, s[28:31], s60 offen lds")
        if k < 3:
            p("s_add_u32 m0, m0, 1024")
    for k in range(6):
        p(f"v_mov_b32 v{AD8+k}, v{AD8+7}")
    for k in range(4):
        p(f"v_mov_b32 v{OT+k}, 0")


def gather_arm(p, extra):
    p(f"""
    s_mov_b32 s63, 0
    s_lshl_b32 s64, s66, 7
    s_add_u32 s72, s66, 1
    s_add_u32 s62, s66, {1 + extra}
    s_cmp_eq_u32 s66, 0
    s_cselect_b32 s72, 0, s72
    s_cselect_b32 s62, 0, s62
    """)


def k2_maxpass(p):
    MX = P_B
    CI = NM1_B
    p(f"""
    s_lshl_b32 s41, s33, 12
    s_mov_b32 s46, 0
    s_add_u32 s47, s68, s67
    s_mov_b32 s48, 0xff800000
    v_mov_b32 v{V_KA}, v{V_KL}
    """)
    for j in range(4):
        p(f"v_mov_b32 v{MX+j}, s48")
    for k in range(16):
        p(f"v_mov_b32 v{CI+k}, 0")
    p(f"""
    Lk2_mx_loop:
    s_max_u32 s40, s46, 5
    s_lshl_b32 s40, s40, 2
    s_add_u32 s40, s40, {LOG_OFF - 20}
    v_mov_b32 v{V_T0}, s40
    ds_read_b32 v{V_T0}, v{V_T0}
    v_readfirstlane_b32 s69, v{V_T0}
    s_add_u32 s40, s70, s46
    s_cmp_lt_u32 s46, 5
    s_cselect_b32 s69, s40, s69
    s_lshl_b32 s40, s69, 14
    s_add_u32 s40, s40, s39
    """)
    kv_dma(p)
    p(f"""
    s_cmp_lg_u32 s69, {NTILE}
    s_cbranch_scc1 Lk2_mx_nomask
    v_cmp_eq_u32 vcc, 0, v{V_G}
    v_mov_b32 v{V_T0}, s48
    s_nop 1
    """)
    for k in range(4):
        p(f"v_cndmask_b32 v{CI+4+k}, v{V_T0}, v{CI+4+k}, vcc")
    for k in range(8, 16):
        p(f"v_mov_b32 v{CI+k}, s48")
    p(f"""
    Lk2_mx_nomask:
    s_waitcnt vmcnt(0)
    s_barrier
    """)
    for s in range(4):
        for ks in range(4):
            p.extend([kread(s, ks)])
    p("s_waitcnt lgkmcnt(0)")
    p("s_barrier")
    for j in range(4):
        for s in range(4):
            d = vr(O_B + (j * 4 + s) * 4, 4)
            for ks in range(4):
                p(mf(d, vr(Kf(s, ks), 4, 'a'), vr(Qf(j, ks), 4, 'a'), vr(CI + 4 * s, 4) if ks == 0 else d))
    for j in range(4):
        for k in range(0, 16, 2):
            b = O_B + j * 16 + k
            p(f"v_max3_f32 v{MX+j}, v{MX+j}, v{b}, v{b+1}")
    p(f"""
    s_add_u32 s46, s46, 1
    s_cmp_lt_u32 s46, s47
    s_nop 7
    s_cbranch_scc1 Lk2_mx_loop
    """)
    for j in range(4):
        allreduce_g(p, MX + j, V_T0, 'v_max_f32')
        p(f"v_sub_f32 v{NM(j)}, 0, v{MX+j}")


def k2_prologue(p):
    p("s_branch Lk2_run1")
    p("Lk2_run:")
    dma_tiles(p, 0, 1)
    p("Lk2_run1:")
    dma_tiles(p, 1, 3)
    p(f"""
    v_mov_b32 v{V_T3}, 0x7fff0000
    s_mov_b32 m0, s54
    v_mov_b32 v{OH}, 0
    """)
    for i in range(8):
        if i == 4:
            p("s_mov_b32 m0, s65")
            p("s_nop 0")
        p(f"buffer_load_dwordx4 v{V_T3}, s[20:23], 0 offen offset:{1024*(i&3)} lds")
    for r in range(1, 8):
        p(f"v_mov_b32 v{OH+r}, 0")
    z = vr(OH, 4)
    for b in range(O_B, P_B + 32, 16):
        p(f"{MF32} {vr(b,16)}, {z}, {z}, 0")
    for b in range(V_A, GA_A + 32, 16):
        p(f"{MF32} {vr(b,16,'a')}, {z}, {z}, 0")
    gather_consts(p)
    for r in range(8):
        p(f"v_mov_b32 v{AD8+r}, v{V_T3}")
    p(f"""
    v_mov_b32 v{V_KA}, v{V_KL}
    s_mov_b32 s42, 0
    s_mov_b32 s43, 0
    s_mov_b32 s67, 0
    s_mov_b32 s68, 0
    s_add_u32 s46, s70, 4
    v_mov_b32 v{V_TN}, s46
    v_mov_b32 v{V_TK}, 0
    v_mov_b32 v{V_ONE}, 0
    v_mov_b32 v{V_AOFF}, v{V_T3}
    v_cmp_eq_u32 vcc, 0, v{V_LANE}
    v_mov_b32 v{V_T0}, {LOG_OFF}
    s_mov_b32 s44, 4
    v_cndmask_b32 v{V_LG}, v{V_T3}, v{V_T0}, vcc
    s_cmp_lg_u32 s45, 0
    s_cbranch_scc1 Lk2_second
    s_min_u32 s46, s36, 1000
    s_lshl_b32 s46, s46, 2
    s_add_u32 s46, s46, {OFFT_OFF}
    v_lshlrev_b32 v{V_T0}, 13, v{V_LANE}
    buffer_load_dwordx2 v[{ST}:{ST+1}], v{V_T0}, s[28:31], s46 offen
    s_lshl_b32 s46, s36, 5
    v_lshlrev_b32 v{V_T1}, 1, v{V_I}
    buffer_load_ushort v{DEG}, v{V_T1}, s[24:27], s46 offen
    v_cmp_eq_u32 vcc, 0, v0
    v_mov_b32 v{V_T0}, s73
    s_add_u32 s46, s70, 5
    v_cndmask_b32 v{V_AOFF}, v{V_T3}, v{V_T0}, vcc
    v_cndmask_b32 v{V_ONE}, 0, 1, vcc
    v_mov_b32 v{V_T0}, {5*NSTAT}
    v_mov_b32 v{V_T1}, s46
    v_cndmask_b32 v{V_T0}, v{V_T0}, v{V_T1}, vcc
    v_lshlrev_b32 v{V_T1}, 2, v0
    v_add_u32 v{V_T1}, {LOG_OFF}, v{V_T1}
    ds_write_b32 v{V_T1}, v{V_T0}
    s_mov_b32 s71, 0
    s_mov_b32 s66, 0
    s_waitcnt vmcnt(18)
    s_branch Lk2_go
    Lk2_second:
    s_waitcnt vmcnt(16)
    Lk2_go:
    """)
    gather_arm(p, 0)
    p("""
    s_waitcnt lgkmcnt(0)
    s_barrier
    """)
    stamp(p, 1)
    for s in range(4):
        for ks in range(4):
            p.extend([kread(s, ks)])
    for j in range(4):
        for r in range(1, 4):
            p(f"v_mov_b32 v{NM(j)+r}, v{NM(j)}")
    p(f"""
    s_waitcnt lgkmcnt(4)
    """)
    stamp(p, 2)
    stamp(p, 9, True)


def k2_glue(p):
    p("Lk2_glue:")
    stamp(p, 13, True)
    gather_plan(p)
    gather_arm(p, 1)
    p("""
    s_mov_b32 s71, 1
    s_waitcnt lgkmcnt(0)
    """)
    stamp(p, 14, True)
    stamp(p, 15, True)
    p("s_branch Lk2_glue_back")


def k2_tail_setup(p):
    p(f"""
    v_cmp_eq_u32 vcc, 0, v{V_G}
    v_mov_b32 v{NINF_B}, 0xff800000
    """)
    for k in range(16):
        p(f"v_cndmask_b32 v{NM1_B+k}, v{NINF_B}, v{NM_B+k}, vcc")
    p("s_nop 1")


def k2_slow_gather(p):
    t0, t1, t2 = V_T0, V_T1, V_T2
    B = S_B
    p(f"""
    Lk2_g_rare:
    s_mov_b32 s59, 0
    """)
    for r in range(32):
        p(f"v_accvgpr_write_b32 a{GA_A+r}, 0")
    gather_consts(p)
    p(f"""
    Lk2_g_slow:
    s_waitcnt vmcnt(0) lgkmcnt(0)
    v_cmp_lt_u32 vcc, s59, v{CN}
    s_cbranch_vccz Lk2_g_back
    v_mov_b32 v{B}, 0xffff
    v_mov_b32 v{B+1}, 0xffff
    v_mov_b32 v{B+2}, 0xffff
    v_mov_b32 v{B+3}, 0xffff
    s_lshl_b32 s46, s59, 4
    s_add_u32 s46, s46, s60
    s_mov_b64 exec, vcc
    buffer_load_dwordx4 v[{B}:{B+3}], v{ST}, s[28:31], s46 offen
    s_mov_b64 exec, -1
    v_add_u32 v{t0}, s54, v{V_L16}
    ds_write_b128 v{t0}, v[{B}:{B+3}] offset:8192
    s_add_u32 s59, s59, 1
    s_mov_b32 s47, 8
    v_lshlrev_b32 v{t2}, 5, v{V_G}
    v_add_u32 v{t2}, s54, v{t2}
    s_waitcnt lgkmcnt(0)
    Lk2_g_loop:
    ds_read_b128 v[{E0}:{E0+3}], v{t2} offset:8192
    ds_read_b128 v[{E0+4}:{E0+7}], v{t2} offset:8208
    v_add_u32 v{t2}, 128, v{t2}
    s_mov_b32 m0, s54
    """)
    for i in range(8):
        if i == 4:
            p("s_mov_b32 m0, s65")
        p.extend([gmad8(i), gdma8(i)])
    for k in range(4):
        o = OH + k
        p(f"v_perm_b32 v{o}, v{E0+2*k+1}, v{E0+2*k}, s58")
        p(f"v_alignbit_b32 v{o}, v{o}, v{o}, v{V_ROT}")
        p(f"v_and_b32 v{o}, s57, v{o}")
    p("s_waitcnt vmcnt(0)")
    for dt in range(8):
        for u in range(2):
            p(f"ds_read_b64_tr_b16 {vr(GF_A+4*dt+2*u,2,'a')}, v{TA+dt} offset:{4096*u}")
    for dt in range(8):
        d = vr(GA_A + 4 * dt, 4, 'a')
        p(mf(d, vr(GF_A + 4 * dt, 4, 'a'), vr(OH, 4), d))
    p(f"""
    s_sub_u32 s47, s47, 1
    s_cmp_lg_u32 s47, 0
    s_cbranch_scc1 Lk2_g_loop
    s_branch Lk2_g_slow
    Lk2_g_back:
    s_nop 7
    v_lshlrev_b32 v{V_T0}, 3, v{V_I}
    s_branch Lk2_g_done
    """)


def k2_publish(p):
    XR = 208
    p(f"""
    s_mul_i32 s46, s34, {PART_STRIDE}
    s_lshl_b32 s47, s37, 12
    s_add_u32 s46, s46, s47
    s_add_u32 s46, s46, {PART_OFF}
    s_mul_i32 s47, s34, {STAT_STRIDE}
    s_lshl_b32 s48, s37, 7
    s_add_u32 s47, s47, s48
    s_add_u32 s47, s47, {STAT_OFF}
    v_lshlrev_b32 v{V_T0}, 3, v{V_I}
    s_mov_b32 s48, {hexf(2.0**100)}
    v_cmp_eq_u32 s[50:51], 3, v{V_G}
    s_mov_b64 s[52:53], 0
    """)
    for j in range(4):
        b = P_B + 2 * j
        p(f"""
        v_sub_f32 v{b}, 0, v{NM(j)}
        v_mov_b32 v{b+1}, v{O(j,7)+3}
        v_cmp_nlt_f32 vcc, v{O(j,7)+3}, s48
        s_or_b64 s[52:53], s[52:53], vcc
        """)
        for kk in range(4):
            d = S_B + 4 * kk
            for h in range(2):
                o = O(j, 2 * kk + h)
                p(f"v_cvt_pk_bf16_f32 v{d+2*h}, v{o}, v{o+1}")
                p(f"v_cvt_pk_bf16_f32 v{d+2*h+1}, v{o+2}, v{o+3}")
            p(f"buffer_store_dwordx4 {vr(d,4)}, v{V_L16}, s[28:31], s46 offen offset:{1024*kk}")
        if j < 3:
            p("s_add_u32 s46, s46, 4096")
    p("s_mov_b64 exec, s[50:51]")
    for j in range(4):
        b = P_B + 2 * j
        p(f"buffer_store_dwordx2 {vr(b,2)}, v{V_T0}, s[28:31], s47 offen offset:{128*j}")
    p(f"""
    s_mov_b64 exec, -1
    s_and_b64 s[52:53], s[52:53], s[50:51]
    s_cselect_b32 s46, 1, 0
    s_lshl_b32 s47, s33, 2
    s_add_u32 s47, s47, {FLAG_OFF}
    v_mov_b32 v{V_T1}, s47
    v_mov_b32 v{V_T2}, s46
    ds_write_b32 v{V_T1}, v{V_T2}
    """)
    stamp(p, 4)
    p("""
    s_cmp_gt_i32 s62, 0
    s_cselect_b32 s46, 0, s61
    s_cmp_lg_u32 s46, -1
    s_cbranch_scc1 Lk2_g_rare
    Lk2_g_done:
    """)
    p(f"""
    s_lshl_b32 s46, s33, 14
    s_add_u32 s46, s46, {WIMG_OFF}
    s_mov_b32 m0, s54
    v_lshlrev_b32 v{V_T3}, 8, v{V_I}
    """)
    for a in range(4):
        for i in range(4):
            p(f"buffer_load_dwordx4 v{V_L16}, s[28:31], s46 offen offset:{1024*i} lds")
        if a < 3:
            p("s_add_u32 m0, m0, 4096")
            p("s_add_u32 s46, s46, 4096")
    srd(p, 16, 74, N * 256)
    p(f"""
    v_lshl_add_u32 v{V_T3}, v{V_G}, 4, v{V_T3}
    s_min_u32 s38, s36, 1000
    s_lshl_b32 s38, s38, 12
    """)
    for kk in range(4):
        p(f"buffer_load_dwordx4 v[{XR+4*kk}:{XR+4*kk+3}], v{V_T3}, s[16:19], s38 offen offset:{64*kk}")
    AG = 224
    p(f"""
    v_lshlrev_b32 v{V_T1}, 16, v{DEG}
    v_mul_f32 v{V_T1}, 0.5, v{V_T1}
    """)
    for k in range(16):
        t = P_B + 8 + 2 * (k & 3)
        p(f"v_accvgpr_read_b32 v{t}, a{GA_A+2*k}")
        p(f"v_accvgpr_read_b32 v{t+1}, a{GA_A+2*k+1}")
        p(f"v_mul_f32 v{t}, v{t}, v{V_T1}")
        p(f"v_mul_f32 v{t+1}, v{t+1}, v{V_T1}")
        p(f"v_cvt_pk_bf16_f32 v{P_B+16+k}, v{t}, v{t+1}")
    p(f"""
    v_mov_b32 v{V_T2}, {FLAG_OFF}
    s_waitcnt vmcnt(0) lgkmcnt(0)
    s_barrier
    ds_read_b128 v[{S_B}:{S_B+3}], v{V_T2}
    v_or_b32 v{S_B}, v{S_B}, v{S_B+1}
    v_or3_b32 v{S_B}, v{S_B}, v{S_B+2}, v{S_B+3}
    v_readfirstlane_b32 s46, v{S_B}
    s_nop 1
    s_andn2_b32 s46, s46, s45
    s_cmp_lg_u32 s46, 0
    s_cbranch_scc1 Lk2_redo
    """)


def k2_final(p):
    XR = 208
    AG = P_B + 16
    STT = 192
    PT = O_B
    OA = 96
    OF = 128
    YA = 224
    WF = 144
    L = 202
    p("Lk2_final:")
    stamp(p, 5)
    p(f"""
    v_cmp_eq_u32 vcc, 0, v0
    v_mov_b32 v{V_T1}, 0x7fff0000
    v_mov_b32 v{V_T2}, s73
    v_cndmask_b32 v{V_T1}, v{V_T1}, v{V_T2}, vcc
    v_mov_b32 v{V_T2}, 1
    buffer_atomic_add v{V_T2}, v{V_T1}, s[28:31], 0 offen offset:128
    s_cmp_ge_u32 s36, {NBIN}
    s_cbranch_scc1 {'Lk2_fin' if STAMPS else 'Lk2_exit'}
    v_mov_b32 v{V_T1}, 0
    s_mov_b32 s47, 0
    Lk2_poll:
    buffer_load_dword v{V_T2}, v{V_T1}, s[28:31], s73 offen offset:128 sc1
    s_add_u32 s47, s47, 1
    s_waitcnt vmcnt(0)
    v_readfirstlane_b32 s46, v{V_T2}
    s_cmp_gt_u32 s47, {POLL_LIMIT}
    s_cbranch_scc1 Lk2_polled
    s_cmp_lt_u32 s46, 5
    s_cbranch_scc1 Lk2_poll
    Lk2_polled:
    """)
    stamp(p, 6)
    p(f"""
    s_lshl_b32 s46, s36, 7
    s_add_u32 s46, s46, {STAT_OFF}
    """)
    for s in range(5):
        p(f"buffer_load_dwordx2 v[{STT+2*s}:{STT+2*s+1}], v{V_T0}, s[28:31], s46 offen sc1")
        if s < 4:
            p(f"s_add_u32 s46, s46, {STAT_STRIDE}")
    p(f"s_add_u32 s46, s38, {PART_OFF}")
    for s in range(5):
        for kk in range(4):
            b = PT + 16 * s + 4 * kk
            p(f"buffer_load_dwordx4 v[{b}:{b+3}], v{V_L16}, s[28:31], s46 offen offset:{1024*kk} sc1")
        if s < 4:
            p(f"s_add_u32 s46, s46, {PART_STRIDE}")
    srd(p, 20, 76, N * 256)
    p(f"v_add_u32 v{V_T1}, {STG_OFF}, v{V_L16}")

    def rd(ft, m, buf):
        b = WF + 16 * buf
        for kk in range(4):
            p(f"ds_read_b128 v[{b+4*kk}:{b+4*kk+3}], v{V_T1} offset:{32768*m+4096*ft+1024*kk}")

    def gemm(m, B):
        rd(0, m, 0)
        for ft in range(8):
            if ft < 7:
                rd(ft + 1, m, (ft + 1) & 1)
            b = WF + 16 * (ft & 1)
            d = vr(YA + 4 * ft, 4)
            for kk in range(4):
                p(mf(d, vr(b + 4 * kk, 4), vr(B + 4 * kk, 4), '0' if (m == 0 and kk == 0) else d))
    gemm(0, AG)
    tiny = hexf(2.0 ** -120)
    for s in range(5):
        p(f"v_max_f32 v{STT+2*s+1}, {tiny}, v{STT+2*s+1}")
    for s in range(5):
        p(f"v_log_f32 v{L+s}, v{STT+2*s+1}")
    for s in range(5):
        p(f"v_add_f32 v{L+s}, v{L+s}, v{STT+2*s}")
    T = 207
    p(f"""
    v_max3_f32 v{T}, v{L}, v{L+1}, v{L+2}
    v_max3_f32 v{T}, v{T}, v{L+3}, v{L+4}
    """)
    for s in range(5):
        p(f"v_sub_f32 v{L+s}, v{L+s}, v{T}")
    for s in range(5):
        p(f"v_exp_f32 v{L+s}, v{L+s}")
    for s in range(5):
        p(f"v_rcp_f32 v{STT+2*s}, v{STT+2*s+1}")
    p(f"""
    v_add_f32 v{T}, v{L}, v{L+1}
    v_add_f32 v{V_T2}, v{L+2}, v{L+3}
    v_add_f32 v{T}, v{T}, v{L+4}
    v_add_f32 v{T}, v{T}, v{V_T2}
    v_rcp_f32 v{T}, v{T}
    """)
    for s in range(5):
        p(f"v_mul_f32 v{L+s}, v{L+s}, v{T}")
    for s in range(5):
        p(f"v_mul_f32 v{L+s}, v{L+s}, v{STT+2*s}")
    for s in range(5):
        for k in range(16):
            r = PT + 16 * s + k
            t = STT + 2 * (k & 3)
            p(f"v_lshlrev_b32 v{t}, 16, v{r}")
            p(f"v_and_b32 v{t+1}, 0xffff0000, v{r}")
            if s == 0:
                p(f"v_mul_f32 v{OA+2*k}, v{t}, v{L}")
                p(f"v_mul_f32 v{OA+2*k+1}, v{t+1}, v{L}")
            else:
                p(f"v_fmac_f32 v{OA+2*k}, v{t}, v{L+s}")
                p(f"v_fmac_f32 v{OA+2*k+1}, v{t+1}, v{L+s}")
    for k in range(16):
        p(f"v_cvt_pk_bf16_f32 v{OF+k}, v{OA+2*k}, v{OA+2*k+1}")
    gemm(1, OF)
    for k in range(16):
        t = STT + 2 * (k & 3)
        p(f"v_lshlrev_b32 v{t}, 16, v{XR+k}")
        p(f"v_and_b32 v{t+1}, 0xffff0000, v{XR+k}")
        p(f"v_add_f32 v{t}, v{t}, v{YA+2*k}")
        p(f"v_add_f32 v{t+1}, v{t+1}, v{YA+2*k+1}")
        p(f"v_cvt_pk_bf16_f32 v{PT+k}, v{t}, v{t+1}")
        if k % 4 == 3:
            kk = k // 4
            p(f"buffer_store_dwordx4 v[{PT+4*kk}:{PT+4*kk+3}], v{V_T3}, s[20:23], s38 offen offset:{64*kk}")
    if STAMPS:
        p("s_branch Lk2_fin2")
        p("Lk2_fin:")
        p("s_mov_b32 s86, s85")
        p("Lk2_fin2:")
    stamp(p, 7)
    if STAMPS:
        p("s_waitcnt vmcnt(0)")
    stamp(p, 8)
    if STAMPS:
        p("s_mov_b32 s92, s68")
    stamp_flush(p, 1, 16)
    p("s_endpgm")


def gen_k2():
    mid, tail, drain = gen_loop_variants()
    s = f"""  s_cmp_ge_u32 s2, {K2_NWG}
  s_cbranch_scc1 Lk2_exit
"""
    a = Prog()
    k2_setup(a)
    k2_prologue(a)
    s += emit(a.finish())
    s += ".p2align 6\nLk2_loop:\n" + emit(mid) + "  s_cbranch_scc1 Lk2_loop\n"
    if STAMPS:
        z = Prog()
        stamp(z, 11, True)
        s += emit(z.ins)
    s += "  s_cmp_lg_u32 s67, 0\n  s_cbranch_scc1 Lk2_tail\n"
    s += "Lk2_drain:\n" + emit(drain) + "  s_nop 7\n  s_waitcnt lgkmcnt(0)\n"
    c = Prog()
    stamp(c, 10, True)
    stamp(c, 3)
    k2_publish(c)
    k2_final(c)
    s += emit(c.finish())
    b = Prog()
    k2_tail_setup(b)
    s += "Lk2_tail:\n" + emit(b.finish()) + emit(tail) + "  s_branch Lk2_drain\n"
    g = Prog()
    k2_glue(g)
    s += emit(g.finish())
    d = Prog()
    d("Lk2_redo:")
    d("s_mov_b32 s45, 1")
    k2_maxpass(d)
    d("s_branch Lk2_run")
    s += emit(d.finish())
    e = Prog()
    k2_slow_gather(e)
    s += emit(e.finish())
    s += "Lk2_exit:\n  s_endpgm\n"
    return s
```

```python
from common import *

K2_ATT = 245
K2_NWG = 245
NFULL = 39
LAG = 5
MAPB = bool(int(os.environ.get('MAPB', '0')))
RING = 65536
STG_OFF = 65536
GW_OFF = 131072
GW_STRIDE = 5632
IDX = 4096
IDX_TRASH = IDX + 4 * 330
MAXQ = 6
MAXTOT = 240
FLAG_OFF = GW_OFF + 4 * GW_STRIDE
LOG_OFF = FLAG_OFF + 64
K2_LDS = LOG_OFF + 1024
NSTAT = 6
NTILE = 195

V_LANE, V_G, V_I, V_L16 = 1, 2, 3, 4
V_KL, V_VL, V_KA, V_VA = 5, 6, 7, 8
V_T0, V_T1, V_T2, V_T3 = 9, 10, 11, 12
V_LA, V_LC, V_ROT = 13, 14, 15
O_B = 16
S_B = 144
P_B = 160
NM_B = 192
NM1_B = 208
NINF_B = 224
E0 = 208
LO = 216
TA = 220
OH = 228
OT = 232
AD = 236
ST, CN, PS, DEG = 238, 239, 240, 241
V_KS = 242
OH2 = 244
V_TK, V_ONE, V_AOFF, V_LG, V_TN = 244, 245, 246, 247, 236
AD8 = 248
Q_A = 0
K_A = 64
V_A = 128
GA_A = 192
GF_A = 224


def O(j, dt): return O_B + (j * 8 + dt) * 4
def Sr(s): return S_B + 4 * s
def Pr(j, k2): return P_B + j * 8 + k2 * 4
def NM(j): return NM_B + 4 * j
def Qf(j, ks): return Q_A + (j * 4 + ks) * 4
def Kf(s, ks): return K_A + (s * 4 + ks) * 4
def Vf(dt, k2): return V_A + (dt * 2 + k2) * 4


def mf(d, a, b, c):
    return f"v_mfma_f32_16x16x32_bf16 {d}, {a}, {b}, {c}"


def kread(s, ks, areg=V_KA):
    return I(f"ds_read_b128 {vr(Kf(s,ks),4,'a')}, v{areg} offset:{4096*s+1024*ks}", 'kread')


def vread(dt, k2, u):
    return I(f"ds_read_b64_tr_b16 {vr(Vf(dt,k2)+2*u,2,'a')}, v{V_VA} offset:{4096*(2*k2+u)+512*dt}", 'vread' if k2 == 0 else 'vread_hi')


def build_iter(variant):
    NG = 128
    mf_l = [None] * NG
    fixed = [[] for _ in range(NG)]
    units = [2] * NG
    for p in range(16):
        j, s = divmod(p, 4)
        for ks in range(4):
            if ks == 0:
                c = vr(NM(j), 4)
                if variant == 'tail':
                    c = [vr(NM(j), 4), vr(NM1_B + 4 * j, 4), vr(NM(j), 4), vr(NM(j), 4)][s]
            else:
                c = vr(Sr(s), 4)
            mf_l[8 * p + ks] = I(mf(vr(Sr(s), 4), vr(Kf(s, ks), 4, 'a'), vr(Qf(j, ks), 4, 'a'), c), 'qk' if s < 2 else 'qk_hi')
        pp = (p - LAG) % 16
        jp, a = divmod(pp, 4)
        prev = p < LAG
        n = 0
        for dt in (2 * a, 2 * a + 1):
            for k2 in (0, 1):
                mf_l[8 * p + 4 + n] = I(mf(vr(O(jp, dt), 4), vr(Vf(dt, k2), 4, 'a'), vr(Pr(jp, k2), 4), vr(O(jp, dt), 4)),
                                        'pv_prev' if prev else ('pv' if k2 == 0 else 'pv_hi'))
                n += 1
        q = (p - 1) % 16
        jq, sq = divmod(q, 4)
        tg = 'sm_prev' if p == 0 else ('sm' if sq < 2 else 'sm_hi')
        for r in range(4):
            fixed[8 * p + 2 * r].append(I(f"v_exp_f32 v{Sr(sq)+r}, v{Sr(sq)+r}", tg))
            units[8 * p + 2 * r] -= 2
        pd = Pr(jq, sq >> 1) + 2 * (sq & 1)
        fixed[8 * p + 3].append(I(f"v_cvt_pk_bf16_f32 v{pd}, v{Sr(sq)}, v{Sr(sq)+1}", tg))
        units[8 * p + 3] -= 1
        fixed[8 * p + 7].append(I(f"v_cvt_pk_bf16_f32 v{pd+1}, v{Sr(sq)+2}, v{Sr(sq)+3}", tg))
        units[8 * p + 7] -= 1
    LATM = 9
    BAR = 95
    placed = [[] for _ in range(NG)]

    def sched(mov, start):
        pend = sorted(mov, key=lambda m: (m[1], m[0]))
        for ga in range(start, start + NG):
            g = ga % NG
            while units[g] > 0:
                cand = [m for m in pend if m[0] <= ga and m[2] <= units[g]]
                if not cand:
                    break
                m = cand[0]
                assert ga <= m[1], ('deadline miss', ga, m)
                pend.remove(m)
                placed[g].append(m[3])
                units[g] -= m[2]
        assert not pend, pend
    units[BLK] = 0
    mov = []
    for i, g in enumerate(KVPOS):
        mov.append((g, g, 1, I(f"buffer_load_dwordx4 v{V_KS}, s[28:31], s40 offen offset:{64*i} lds", 'dma')))
    for i, g in enumerate(GPOS):
        mov.append((g, g, 1, gdma8(i)))
    sched(mov, 0)
    mov = [(1, 11, 1, I(f"v_add_u32 v{V_VA}, s43, v{V_VL}", 'va'))]
    for a in range(4):
        n = 0
        for dt in (2 * a, 2 * a + 1):
            for k2 in (0, 1):
                last = 8 * ((12 + LAG + a) - 16) + 4 + n
                nxt = 8 * (LAG + a) + 4 + n
                for u in range(2):
                    mov.append((last, nxt - LATM, 1, vread(dt, k2, u)))
                n += 1
    for s in range(4):
        for ks in range(4):
            mov.append((max(8 * (12 + s) + ks, BAR + 1), 127, 1, kread(s, ks)))
    sched(mov, 0)
    mov = []
    mov.append((128 + 4, 128 + 8, 1, I(f"v_add_u32 v{V_LC}, s63, v{V_LA}", 'g')))
    mov.append((57, 60, 1, I(f"ds_read_b128 v[{E0}:{E0+3}], v{V_LC}", 'g')))
    mov.append((57, 60, 1, I(f"ds_read_b128 v[{E0+4}:{E0+7}], v{V_LC} offset:16", 'g')))
    k = 0
    for u in range(2):
        for dt in range(8):
            mov.append((58 if u == 0 else 69, 64 + k, 1, I(f"ds_read_b64_tr_b16 {vr(GF_A+4*dt+2*u,2,'a')}, v{TA+dt} offset:{4096*u}", 'g')))
            k += 1
    tk = I(f"ds_add_u32 v{V_LG}, v{V_TK}", 'tk')
    tk.wr = [('x', 'log')]
    mov.append((80, 81, 1, tk))
    mov.append((82, 83, 1, I(f"v_mov_b32 v{V_TK}, v{V_ONE}", 'tk')))
    mov.append((BAR + 1, 112, 1, I(f"ds_read_b32 v{V_TN}, v{V_LG}", 'tk')))
    mov.append((113, 127, 1, I(f"v_add_u32 v{V_LG}, 4, v{V_LG}", 'tk')))
    mov.append((128 + 2, 128 + 4, 1, I(f"v_readfirstlane_b32 s69, v{V_TN}", 'tk')))
    mov.append((80, 95, 1, I(f"v_add_u32 v{V_KA}, s42, v{V_KL}", 'ka')))
    for k in range(4):
        mov.append((87, 150 + k, 1, I(f"v_and_b32 v{OH+k}, s57, v{OT+k}", 'g')))
    sched(mov, 54)
    needs = {84: set(('v', E0 + k) for k in range(8)) | set(('a', GF_A + k) for k in range(32)),
             94: {('x', 'log')}, 127: {('v', V_TN)}}
    scal = [[] for _ in range(NG)]
    sops = [
        (0, 0, I("s_mov_b32 m0, s41", 'dma')),
        (2, 4, I("s_add_u32 m0, m0, 960", 'dma')),
        (6, 8, I("s_add_u32 m0, m0, 960", 'dma')),
        (10, 12, I("s_add_u32 m0, m0, 960", 'dma')),
        (11, 12, I("s_cmp_lt_u32 s68, 200", 'tk')),
        (13, 13, I("s_cselect_b32 s69, s69, 0xff", 'tk')),
        (14, 15, I("s_lshl_b32 s40, s69, 14", 'dma')),
        (16, 17, I("s_add_u32 s40, s40, s39", 'dma')),
        (31, 31, I("s_waitcnt vmcnt(26)", 'bar')),
        (28, 30, I(f"s_cmp_lt_u32 s69, {NTILE}", 'tk')),
        (32, 33, I("s_addc_u32 s44, s44, 0", 'tk')),
        (34, 36, I(f"s_cmp_eq_u32 s69, {NTILE}", 'tk')),
        (37, 39, I("s_addc_u32 s67, s67, 0", 'tk')),
        (40, 42, I("s_add_u32 s68, s68, 1", 'tk')),
        (18, 21, I("s_add_u32 s41, s41, 16384", 'dma')),
        (24, 27, I("s_and_b32 s41, s41, 0xffff", 'dma')),
        (50, 53, I("s_add_u32 s42, s42, 16384", 'ka')),
        (54, 56, I("s_and_b32 s42, s42, 0xffff", 'ka')),
        (57, 57, I("s_waitcnt vmcnt(8)", 'bar')),
        (68, 68, I("s_waitcnt vmcnt(4)", 'bar')),
        (58, 61, I("s_add_u32 s63, s63, 128", 'g')),
        (62, 64, I("s_min_u32 s63, s63, s64", 'g')),
        (65, 67, I("s_cmp_eq_u32 s71, 0", 'g')),
        (69, 69, I("s_cbranch_scc1 Lk2_glue", 'g')),
        (69, 69, I("Lk2_glue_back:", 'g')),
        (71, 76, I("s_mov_b32 m0, s54", 'g')),
        (77, 79, I("s_sub_u32 s62, s62, 1", 'g')),
        (80, 83, I("s_cmp_lt_u32 s62, s72", 'g')),
        (BAR, BAR, I("s_barrier", 'bar')),
        (98, 101, I("s_mov_b32 s43, s42", 'va')),
        (GPOS[3] + 1, GPOS[4] - 1, I("s_mov_b32 m0, s65", 'g')),
        (119, 121, I("s_sub_u32 s44, s44, 1", 'loop')),
        (122, 126, I("s_cmp_lg_u32 s44, 0", 'loop')),
    ]
    for lo, hi, ins in sops:
        g = next((g for g in range(lo, hi + 1) if g not in WAITGAPS and not scal[g]), lo)
        scal[g].append(ins)
    gaps = []
    for g in range(NG):
        vec = [x for x in placed[g] if x.kind != 'valu'] + [x for x in placed[g] if x.kind == 'valu'] + fixed[g]
        gaps.append([mf_l[g], scal[g], vec])
    if variant == 'drain':
        keep = lambda i: i.tag in ('pv_prev', 'sm_prev')
        needs = {}
    elif variant == 'tail':
        keep = lambda i: i.tag in ('qk', 'pv', 'pv_prev', 'sm', 'sm_prev', 'vread', 'va')
        needs = {}
    else:
        keep = lambda i: True
    out = []
    for m, sc, ve in gaps:
        out.append([m if keep(m) else None, [x for x in sc if keep(x)], [x for x in ve if keep(x)]])
    if variant in ('mid', 'midskip'):
        out[BLK][2] = gblock(variant == 'mid')
    if variant == 'tail':
        ex = [I(f"v_mov_b32 v{Pr(j,1)+r}, 0") for j in (2, 3) for r in range(4)] + \
             [I(f"v_mov_b32 v{Sr(3)+r}, v{NINF_B}") for r in range(4)]
        for n, x in enumerate(ex):
            out[48 + 4 * n][2].append(x)
    return out, needs


BLK = 85
ATOMFLAGS = os.environ.get('ATOMFLAGS', 'sc0')


def gmad(i):
    return I(f"v_mad_u32_u16 v{AD+(i&1)}, v{E0+i}, s55, v{LO+(i&3)}", 'g')


def gdma(i):
    return I(f"buffer_load_dwordx4 v{AD+(i&1)}, s[20:23], 0 offen offset:{1024*(i&3)} lds", 'g')


KVPOS = (1, 5, 9, 13)
GPOS = (87, 93, 99, 103, 109, 115, 119, 125)


def gmad8(i):
    return I(f"v_mad_u32_u16 v{AD8+i}, v{E0+i}, s55, v{LO+(i&3)}", 'g')


def gdma8(i):
    return I(f"buffer_load_dwordx4 v{AD8+i}, s[20:23], 0 offen offset:{1024*(i&3)} lds", 'g')


def gblock(on):
    r = [I(f"buffer_atomic_add v{V_TK}, v{V_AOFF}, s[28:31], 0 offen {ATOMFLAGS}", 'tk'), I("s_cbranch_scc0 Lk2_gskip", 'g')]
    if on:
        gm = lambda dt: I(mf(vr(GA_A + 4 * dt, 4, 'a'), vr(GF_A + 4 * dt, 4, 'a'), vr(OH, 4), vr(GA_A + 4 * dt, 4, 'a')), 'gm')
        pm = lambda k: I(f"v_perm_b32 v{OT+k}, v{E0+2*k+1}, v{E0+2*k}, s58", 'g')
        al = lambda k: I(f"v_alignbit_b32 v{OT+k}, v{OT+k}, v{OT+k}, v{V_ROT}", 'g')
        r += [gm(0), gmad8(0), gmad8(1), gm(1), gmad8(2), gmad8(3), gm(2), gmad8(4), gmad8(5), gm(3), gmad8(6), gmad8(7),
              gm(4), pm(0), pm(1), gm(5), pm(2), pm(3), gm(6), al(0), al(1), gm(7), al(2), al(3)]
    r += [I("Lk2_gskip:")]
    return r


WAITGAPS = set()


def place_waits(gaps, needs, entry, nextm, AGE=7):
    issued = list(entry)
    done = 0
    flat = []
    n = len(gaps)
    wg = set()

    def need_for(t):
        q = -1
        for k in range(done, len(issued)):
            if issued[k][0] & t:
                q = k
        return q
    touch = lambda i: set(i.rd) | set(i.wr)
    for g in range(n):
        m, sc, ve = gaps[g]
        if m is not None:
            assert need_for(touch(m)) < 0, ('late ds', g, m)
            flat.append(m)
        nx = gaps[g + 1][0] if g + 1 < n else nextm
        t = set(needs.get(g, set()))
        if nx is not None:
            t |= touch(nx)
        q = need_for(t)
        if q >= 0:
            for k in range(q, len(issued)):
                if issued[k][1] <= g - AGE:
                    q = k
            N = min(15, len(issued) - 1 - q)
            flat.append(I(f"s_waitcnt lgkmcnt({N})", 'w'))
            wg.add(g)
            done = len(issued) - N
        flat.extend(sc)
        for x in ve:
            if x.kind not in ('label', 'dir'):
                assert need_for(touch(x)) < 0, ('late ds', g, x)
            if x.kind == 'ds':
                issued.append((set(x.wr), g))
            flat.append(x)
    return flat, [(r, g - n) for r, g in issued[done:]], wg


def iter_code(variant, entry, pre):
    gaps, needs = build_iter(variant)
    nextm = None if variant in ('drain', 'tail') else gaps[0][0]
    flat, ex, wg = place_waits(gaps, needs, entry, nextm)
    fixed, problems = pad_hazards(flat, fix=True, pre=pre)
    return fixed, problems, ex, wg


def gen_loop_variants():
    WAITGAPS.clear()
    _, _, ex, _ = iter_code('mid', [], [])
    _, _, ex2, wg = iter_code('mid', ex, [])
    assert ex == ex2
    WAITGAPS.update(wg)
    mid0, _, _, _ = iter_code('mid', ex, [])
    mid, prob, _, _ = iter_code('mid', ex, mid0[-30:])
    assert not prob, prob
    _, prob, _, _ = iter_code('midskip', ex, mid0[-30:])
    assert not prob, prob
    tail, _, ex3, _ = iter_code('tail', ex, mid[-30:])
    drain, _, _, _ = iter_code('drain', ex, mid[-30:])
    drain2, _, _, _ = iter_code('drain', ex3, tail[-30:])
    assert [x.text for x in drain] == [x.text for x in drain2]
    return mid, tail, drain
```

```python
from k2loop import *

MF32 = "v_mfma_f32_32x32x16_bf16"
POLL_LIMIT = 1 << 22


MAP = os.environ.get('MAP', '5')
if MAP == '5':
    MAPCODE = """s_mul_i32 s35, s2, 13108
    s_lshr_b32 s35, s35, 16
    s_mul_i32 s3, s35, 5
    s_sub_u32 s34, s2, s3"""
elif MAP == '1':
    MAPCODE = """s_and_b32 s3, s2, 7
    s_lshr_b32 s4, s2, 3
    s_mul_i32 s5, s3, 31
    s_add_u32 s5, s5, s4
    s_max_u32 s3, s3, 5
    s_sub_u32 s3, s3, 5
    s_sub_u32 s5, s5, s3
    s_mul_i32 s35, s5, 13108
    s_lshr_b32 s35, s35, 16
    s_mul_i32 s3, s35, 5
    s_sub_u32 s34, s5, s3"""
else:
    sh = {'2': (0, 0, 0, 1, 1), '3': (0, 0, 3, 3, 6), '2b': (0, 0, 0, 4, 4)}[MAP]
    tab = sum(v << (4 * i) for i, v in enumerate(sh))
    MAPCODE = f"""s_mul_i32 s3, s2, 1639
    s_lshr_b32 s3, s3, 16
    s_mul_i32 s4, s3, 40
    s_sub_u32 s4, s2, s4
    s_lshr_b32 s34, s4, 3
    s_lshl_b32 s5, s34, 2
    s_lshr_b32 s5, {tab}, s5
    s_add_u32 s5, s5, s4
    s_and_b32 s5, s5, 7
    s_lshl_b32 s35, s3, 3
    s_add_u32 s35, s35, s5
    s_cmp_ge_u32 s2, 240
    s_cselect_b32 s34, s4, s34
    s_cselect_b32 s35, 48, s35"""


def k2_setup(p):
    stamp(p, 0)
    p(f"""
    s_load_dwordx2 s[12:13], s[0:1], {A_WS}
    s_load_dwordx2 s[14:15], s[0:1], {A_DEG}
    s_load_dwordx2 s[74:75], s[0:1], {A_X}
    s_load_dwordx2 s[76:77], s[0:1], {A_OUT}
    v_and_b32 v{V_LANE}, 63, v0
    v_lshrrev_b32 v{V_T0}, 6, v0
    v_lshlrev_b32 v{V_L16}, 4, v{V_LANE}
    v_readfirstlane_b32 s33, v{V_T0}
    v_and_b32 v{V_I}, 15, v{V_LANE}
    v_lshrrev_b32 v{V_G}, 4, v{V_LANE}
    v_and_b32 v{V_T0}, 1, v{V_G}
    v_mul_u32_u24 v{V_T0}, 12, v{V_T0}
    v_xor_b32 v{V_T0}, v{V_T0}, v{V_I}
    v_lshlrev_b32 v{V_T1}, 4, v{V_G}
    v_lshl_add_u32 v{V_KS}, v{V_T0}, 8, v{V_T1}
    v_lshlrev_b32 v{V_T0}, 4, v{V_T0}
    v_lshl_add_u32 v{V_KL}, v{V_G}, 8, v{V_T0}
    {MAPCODE}
    s_lshl_b32 s37, s35, 4
    s_lshl_b32 s3, s33, 2
    s_mul_i32 s36, s33, 5
    s_add_u32 s36, s36, s34
    s_cmp_lt_u32 s36, 16
    s_cselect_b32 s4, 0, 0x10000
    s_add_u32 s36, s36, s37
    s_add_u32 s36, s36, s4
    s_add_u32 s37, s37, s3
    s_lshl_b32 s39, s33, 12
    s_add_u32 s39, s39, {HROW_OFF}
    s_mul_i32 s70, s34, {NSTAT}
    s_lshl_b32 s38, s37, 12
    s_add_u32 s38, s38, {QIMG_OFF}
    s_mov_b32 s45, 0
    s_waitcnt lgkmcnt(0)
    """)
    srd(p, 28, 12, WS_SIZE)
    dma_tiles(p, 0, 1)
    p(f"""
    v_lshlrev_b32 v{V_T0}, 2, v{V_I}
    s_lshl_b32 s46, s37, 6
    s_add_u32 s46, s46, {MZ_OFF}
    """)
    for j in range(4):
        for ks in range(4):
            p(f"buffer_load_dwordx4 {vr(Qf(j,ks),4,'a')}, v{V_L16}, s[28:31], s38 offen offset:{1024*ks}")
        if j < 3:
            p("s_add_u32 s38, s38, 4096")
        if j == 0:
            for jj in range(4):
                p(f"buffer_load_dword v{NM(jj)}, v{V_T0}, s[28:31], s46 offen offset:{64*jj}")
    srd(p, 24, 14, N * 2)
    p(f"""
    s_add_u32 s16, s12, {HROW_OFF - 3072}
    s_addc_u32 s17, s13, 0
    """)
    srd(p, 20, 16, 12544 * 256 + 3072)
    p(f"""
    v_lshrrev_b32 v{V_T0}, 2, v{V_LANE}
    v_bfe_u32 v{V_T1}, v{V_LANE}, 1, 1
    v_mul_u32_u24 v{V_T2}, 12, v{V_T1}
    v_xor_b32 v{V_T0}, v{V_T0}, v{V_T2}
    v_lshlrev_b32 v{V_T0}, 4, v{V_T0}
    v_lshl_add_u32 v{V_T0}, v{V_T1}, 8, v{V_T0}
    v_and_b32 v{V_T1}, 1, v{V_LANE}
    v_lshl_add_u32 v{V_VL}, v{V_T1}, 3, v{V_T0}
    s_mul_i32 s49, s33, {GW_STRIDE}
    s_add_u32 s49, s49, {GW_OFF}
    s_lshl_b32 s54, s33, 14
    s_add_u32 s54, s54, {STG_OFF}
    s_add_u32 s65, s54, 4096
    s_mov_b32 s55, 256
    s_mov_b32 s57, 0x40004000
    s_mov_b32 s58, 0x07060302
    s_mov_b32 s60, {ENT_OFF}
    s_lshl_b32 s73, s35, 8
    s_add_u32 s73, s73, {CNT_OFF}
    v_lshlrev_b32 v{V_LA}, 5, v{V_G}
    v_add_u32 v{V_LA}, s49, v{V_LA}
    """)


def kv_dma(p):
    p("s_mov_b32 m0, s41")
    for i in range(4):
        p(f"buffer_load_dwordx4 v{V_KS}, s[28:31], s40 offen offset:{64*i} lds")
        if i < 3:
            p("s_add_u32 m0, m0, 960")


def kv2_dma(p):
    p(f"""
    s_add_u32 s46, s70, 2
    s_lshl_b32 s46, s46, 14
    s_add_u32 s46, s46, s39
    s_lshl_b32 s47, s33, 12
    s_add_u32 m0, s47, 32768
    """)
    for i in range(4):
        p(f"buffer_load_dwordx4 v{V_KS}, s[28:31], s46 offen offset:{64*i} lds")
        if i < 3:
            p("s_add_u32 m0, m0, 960")


def dma_tiles(p, t0, t1):
    if t0 == 0:
        p(f"""
        s_lshl_b32 s40, s70, 14
        s_add_u32 s40, s40, s39
        s_lshl_b32 s41, s33, 12
        """)
    for t in range(t0, t1):
        kv_dma(p)
        p("s_add_u32 s40, s40, 16384")
        p("s_add_u32 s41, s41, 16384")


def gather_consts(p):
    t0, t1, t2 = V_T0, V_T1, V_T2
    p(f"""
    v_and_b32 v{t0}, 1, v{V_G}
    v_lshlrev_b32 v{t0}, 3, v{t0}
    v_xor_b32 v{t1}, v{t0}, v{V_I}
    v_lshlrev_b32 v{t1}, 4, v{t1}
    """)
    for k in range(4):
        p(f"v_xor_b32 v{LO+k}, {32*k}, v{t1}")
        p(f"v_add_u32 v{LO+k}, {3072-1024*k}, v{LO+k}")
    p(f"""
    v_bfe_u32 v{t1}, v{V_LANE}, 2, 2
    v_lshl_add_u32 v{t2}, v{t1}, 2, v{V_G}
    v_lshlrev_b32 v{t2}, 8, v{t2}
    v_lshlrev_b32 v{t1}, 1, v{t1}
    v_xor_b32 v{t0}, v{t0}, v{t1}
    v_bfe_u32 v{t1}, v{V_LANE}, 1, 1
    v_xor_b32 v{t0}, v{t0}, v{t1}
    v_lshl_add_u32 v{t2}, v{t0}, 4, v{t2}
    v_and_b32 v{t1}, 1, v{V_LANE}
    v_lshl_add_u32 v{t2}, v{t1}, 3, v{t2}
    v_add_u32 v{t2}, s54, v{t2}
    """)
    for dt in range(8):
        p(f"v_xor_b32 v{TA+dt}, {32*dt}, v{t2}")
    p(f"v_add_u32 v{V_ROT}, 18, v{V_I}")


def gather_plan(p):
    t0, t1, t2 = V_T0, V_T1, V_T2
    p(f"""
    s_cmp_lt_u32 s36, {NBIN}
    s_cselect_b32 s46, {(EPW + 3) // 4}, 0
    v_sub_u32 v{CN}, v{ST+1}, v{ST}
    v_lshrrev_b32 v{CN}, 2, v{CN}
    v_min_u32 v{CN}, s46, v{CN}
    v_mul_u32_u24 v{t0}, {ENT_STRIDE}, v{V_LANE}
    v_mov_b32 v{PS}, v{CN}
    v_lshl_add_u32 v{ST}, v{ST}, 2, v{t0}
    v_mov_b32 v{OT}, {NULLG_OFF - ENT_OFF}
    v_add_u32_dpp v{PS}, v{PS}, v{PS} row_shr:1 row_mask:0xf bank_mask:0xf
    v_mov_b32 v{OT+1}, v{OT}
    v_mov_b32 v{OT+2}, v{OT}
    v_add_u32_dpp v{PS}, v{PS}, v{PS} row_shr:2 row_mask:0xf bank_mask:0xf
    v_mov_b32 v{OT+3}, v{OT}
    v_add_u32 v{t2}, s49, v{V_L16}
    v_add_u32_dpp v{PS}, v{PS}, v{PS} row_shr:4 row_mask:0xf bank_mask:0xf
    ds_write_b128 v{t2}, v[{OT}:{OT+3}] offset:{IDX}
    v_cmp_lt_u32 vcc, {MAXQ}, v{CN}
    v_add_u32_dpp v{PS}, v{PS}, v{PS} row_shr:8 row_mask:0xf bank_mask:0xf
    v_add_u32 v{AD8+1}, 16, v{ST}
    v_add_u32 v{AD8+2}, 32, v{ST}
    v_add_u32_dpp v{PS}, v{PS}, v{PS} row_bcast:15 row_mask:0xa bank_mask:0xf
    v_add_u32 v{AD8+3}, 48, v{ST}
    v_add_u32 v{AD8+4}, 64, v{ST}
    v_add_u32_dpp v{PS}, v{PS}, v{PS} row_bcast:31 row_mask:0xc bank_mask:0xf
    v_add_u32 v{AD8+5}, 80, v{ST}
    v_mov_b32 v{t1}, {IDX_TRASH - IDX}
    v_readlane_b32 s59, v{PS}, 63
    v_sub_u32 v{PS}, v{PS}, v{CN}
    s_cmp_gt_u32 s59, {MAXTOT}
    s_cselect_b32 s46, 1, 0
    s_cmp_lg_u64 vcc, 0
    s_cselect_b32 s46, 1, s46
    s_cmp_eq_u32 s46, 0
    s_cselect_b32 s61, -1, 0
    s_cselect_b32 s59, s59, 0
    v_and_b32 v{t2}, s61, v{CN}
    v_lshlrev_b32 v{t0}, 2, v{PS}
    v_cmp_eq_u32 vcc, 0, v{t2}
    s_add_u32 s66, s59, 7
    s_lshr_b32 s66, s66, 3
    v_cndmask_b32 v{t0}, v{t0}, v{t1}, vcc
    v_add_u32 v{t0}, s49, v{t0}
    """)
    for q in range(MAXQ - 1, -1, -1):
        p(f"ds_write_b32 v{t0}, v{AD8+q if q else ST} offset:{IDX+4*q}")
    p(f"""
    s_lshl_b32 s46, s59, 2
    v_lshlrev_b32 v{t0}, 2, v{V_LANE}
    v_add_u32 v{t0}, s49, v{t0}
    v_add_u32 v{t2}, s46, v{t0}
    ds_write_b32 v{t2}, v{OT} offset:{IDX}
    s_mov_b32 m0, s49
    """)
    for k in range(4):
        p(f"ds_read_b32 v{AD8+k}, v{t0} offset:{IDX+256*k}")
    for k in range(4):
        p(f"buffer_load_dwordx4 v{AD8+k}, s[28:31], s60 offen lds")
        if k < 3:
            p("s_add_u32 m0, m0, 1024")
    for k in range(6):
        p(f"v_mov_b32 v{AD8+k}, v{AD8+7}")
    for k in range(4):
        p(f"v_mov_b32 v{OT+k}, 0")


def gather_arm(p, extra):
    p(f"""
    s_mov_b32 s63, 0
    s_lshl_b32 s64, s66, 7
    s_add_u32 s72, s66, 1
    s_add_u32 s62, s66, {1 + extra}
    s_cmp_eq_u32 s66, 0
    s_cselect_b32 s72, 0, s72
    s_cselect_b32 s62, 0, s62
    """)


def k2_maxpass(p):
    MX = P_B
    CI = NM1_B
    p(f"""
    s_lshl_b32 s41, s33, 12
    s_mov_b32 s46, 0
    s_add_u32 s47, s68, s67
    s_mov_b32 s48, 0xff800000
    v_mov_b32 v{V_KA}, v{V_KL}
    """)
    for j in range(4):
        p(f"v_mov_b32 v{MX+j}, s48")
    for k in range(16):
        p(f"v_mov_b32 v{CI+k}, 0")
    p(f"""
    Lk2_mx_loop:
    s_max_u32 s40, s46, 5
    s_lshl_b32 s40, s40, 2
    s_add_u32 s40, s40, {LOG_OFF - 20}
    v_mov_b32 v{V_T0}, s40
    ds_read_b32 v{V_T0}, v{V_T0}
    v_readfirstlane_b32 s69, v{V_T0}
    s_add_u32 s40, s70, s46
    s_cmp_lt_u32 s46, 5
    s_cselect_b32 s69, s40, s69
    s_lshl_b32 s40, s69, 14
    s_add_u32 s40, s40, s39
    """)
    kv_dma(p)
    p(f"""
    s_cmp_lg_u32 s69, {NTILE}
    s_cbranch_scc1 Lk2_mx_nomask
    v_cmp_eq_u32 vcc, 0, v{V_G}
    v_mov_b32 v{V_T0}, s48
    s_nop 1
    """)
    for k in range(4):
        p(f"v_cndmask_b32 v{CI+4+k}, v{V_T0}, v{CI+4+k}, vcc")
    for k in range(8, 16):
        p(f"v_mov_b32 v{CI+k}, s48")
    p(f"""
    Lk2_mx_nomask:
    s_waitcnt vmcnt(0)
    s_barrier
    """)
    for s in range(4):
        for ks in range(4):
            p.extend([kread(s, ks)])
    p("s_waitcnt lgkmcnt(0)")
    p("s_barrier")
    for j in range(4):
        for s in range(4):
            d = vr(O_B + (j * 4 + s) * 4, 4)
            for ks in range(4):
                p(mf(d, vr(Kf(s, ks), 4, 'a'), vr(Qf(j, ks), 4, 'a'), vr(CI + 4 * s, 4) if ks == 0 else d))
    for j in range(4):
        for k in range(0, 16, 2):
            b = O_B + j * 16 + k
            p(f"v_max3_f32 v{MX+j}, v{MX+j}, v{b}, v{b+1}")
    p(f"""
    s_add_u32 s46, s46, 1
    s_cmp_lt_u32 s46, s47
    s_nop 7
    s_cbranch_scc1 Lk2_mx_loop
    """)
    for j in range(4):
        allreduce_g(p, MX + j, V_T0, 'v_max_f32')
        p(f"v_sub_f32 v{NM(j)}, 0, v{MX+j}")


def k2_prologue(p):
    p("s_branch Lk2_run1")
    p("Lk2_run:")
    dma_tiles(p, 0, 1)
    kv2_dma(p)
    p("Lk2_run1:")
    dma_tiles(p, 1, 2)
    p("s_add_u32 s40, s40, 16384")
    p("s_add_u32 s41, s41, 16384")
    p(f"""
    v_mov_b32 v{V_T3}, 0x7fff0000
    s_mov_b32 m0, s54
    v_mov_b32 v{OH}, 0
    """)
    for i in range(8):
        if i == 4:
            p("s_mov_b32 m0, s65")
            p("s_nop 0")
        p(f"buffer_load_dwordx4 v{V_T3}, s[20:23], 0 offen offset:{1024*(i&3)} lds")
    for r in range(1, 8):
        p(f"v_mov_b32 v{OH+r}, 0")
    z = vr(OH, 4)
    for b in range(O_B, P_B + 32, 16):
        p(f"{MF32} {vr(b,16)}, {z}, {z}, 0")
    for b in range(V_A, GA_A + 32, 16):
        p(f"{MF32} {vr(b,16,'a')}, {z}, {z}, 0")
    gather_consts(p)
    for r in range(8):
        p(f"v_mov_b32 v{AD8+r}, v{V_T3}")
    p(f"""
    v_mov_b32 v{V_KA}, v{V_KL}
    s_mov_b32 s42, 0
    s_mov_b32 s43, 0
    s_mov_b32 s67, 0
    s_mov_b32 s68, 0
    s_add_u32 s46, s70, 4
    v_mov_b32 v{V_TN}, s46
    v_mov_b32 v{V_TK}, 0
    v_mov_b32 v{V_ONE}, 0
    v_mov_b32 v{V_AOFF}, v{V_T3}
    v_cmp_eq_u32 vcc, 0, v{V_LANE}
    v_mov_b32 v{V_T0}, {LOG_OFF}
    s_mov_b32 s44, 4
    v_cndmask_b32 v{V_LG}, v{V_T3}, v{V_T0}, vcc
    s_cmp_lg_u32 s45, 0
    s_cbranch_scc1 Lk2_second
    s_min_u32 s46, s36, 1000
    s_lshl_b32 s46, s46, 2
    s_add_u32 s46, s46, {OFFT_OFF}
    v_lshlrev_b32 v{V_T0}, 13, v{V_LANE}
    buffer_load_dwordx2 v[{ST}:{ST+1}], v{V_T0}, s[28:31], s46 offen
    s_lshl_b32 s46, s36, 5
    v_lshlrev_b32 v{V_T1}, 1, v{V_I}
    buffer_load_ushort v{DEG}, v{V_T1}, s[24:27], s46 offen
    v_cmp_eq_u32 vcc, 0, v0
    v_mov_b32 v{V_T0}, s73
    s_add_u32 s46, s70, 5
    v_cndmask_b32 v{V_AOFF}, v{V_T3}, v{V_T0}, vcc
    v_cndmask_b32 v{V_ONE}, 0, 1, vcc
    v_mov_b32 v{V_T0}, {5*NSTAT}
    v_mov_b32 v{V_T1}, s46
    v_cndmask_b32 v{V_T0}, v{V_T0}, v{V_T1}, vcc
    v_lshlrev_b32 v{V_T1}, 2, v0
    v_add_u32 v{V_T1}, {LOG_OFF}, v{V_T1}
    ds_write_b32 v{V_T1}, v{V_T0}
    s_mov_b32 s71, 0
    s_mov_b32 s66, 0
    s_waitcnt vmcnt(26)
    s_branch Lk2_go
    Lk2_second:
    s_waitcnt vmcnt(16)
    Lk2_go:
    """)
    gather_arm(p, 0)
    p("""
    s_waitcnt lgkmcnt(0)
    s_barrier
    """)
    stamp(p, 1)
    for s in range(4):
        for ks in range(4):
            p.extend([kread(s, ks)])
    for j in range(4):
        for r in range(1, 4):
            p(f"v_mov_b32 v{NM(j)+r}, v{NM(j)}")
    p(f"""
    s_waitcnt lgkmcnt(4)
    """)
    stamp(p, 2)
    stamp(p, 9, True)


def k2_glue(p):
    p("Lk2_glue:")
    stamp(p, 13, True)
    kv2_dma(p)
    gather_plan(p)
    gather_arm(p, 1)
    p("""
    s_mov_b32 s71, 1
    s_waitcnt lgkmcnt(0)
    """)
    stamp(p, 14, True)
    stamp(p, 15, True)
    p("s_branch Lk2_glue_back")


def k2_tail_setup(p):
    p(f"""
    v_cmp_eq_u32 vcc, 0, v{V_G}
    v_mov_b32 v{NINF_B}, 0xff800000
    """)
    for k in range(16):
        p(f"v_cndmask_b32 v{NM1_B+k}, v{NINF_B}, v{NM_B+k}, vcc")
    p("s_nop 1")


def k2_slow_gather(p):
    t0, t1, t2 = V_T0, V_T1, V_T2
    B = S_B
    p(f"""
    Lk2_g_rare:
    s_mov_b32 s59, 0
    """)
    for r in range(32):
        p(f"v_accvgpr_write_b32 a{GA_A+r}, 0")
    gather_consts(p)
    p(f"""
    Lk2_g_slow:
    s_waitcnt vmcnt(0) lgkmcnt(0)
    v_cmp_lt_u32 vcc, s59, v{CN}
    s_cbranch_vccz Lk2_g_back
    v_mov_b32 v{B}, 0xffff
    v_mov_b32 v{B+1}, 0xffff
    v_mov_b32 v{B+2}, 0xffff
    v_mov_b32 v{B+3}, 0xffff
    s_lshl_b32 s46, s59, 4
    s_add_u32 s46, s46, s60
    s_mov_b64 exec, vcc
    buffer_load_dwordx4 v[{B}:{B+3}], v{ST}, s[28:31], s46 offen
    s_mov_b64 exec, -1
    v_add_u32 v{t0}, s54, v{V_L16}
    ds_write_b128 v{t0}, v[{B}:{B+3}] offset:8192
    s_add_u32 s59, s59, 1
    s_mov_b32 s47, 8
    v_lshlrev_b32 v{t2}, 5, v{V_G}
    v_add_u32 v{t2}, s54, v{t2}
    s_waitcnt lgkmcnt(0)
    Lk2_g_loop:
    ds_read_b128 v[{E0}:{E0+3}], v{t2} offset:8192
    ds_read_b128 v[{E0+4}:{E0+7}], v{t2} offset:8208
    v_add_u32 v{t2}, 128, v{t2}
    s_mov_b32 m0, s54
    """)
    for i in range(8):
        if i == 4:
            p("s_mov_b32 m0, s65")
        p.extend([gmad8(i), gdma8(i)])
    for k in range(4):
        o = OH + k
        p(f"v_perm_b32 v{o}, v{E0+2*k+1}, v{E0+2*k}, s58")
        p(f"v_alignbit_b32 v{o}, v{o}, v{o}, v{V_ROT}")
        p(f"v_and_b32 v{o}, s57, v{o}")
    p("s_waitcnt vmcnt(0)")
    for dt in range(8):
        for u in range(2):
            p(f"ds_read_b64_tr_b16 {vr(GF_A+4*dt+2*u,2,'a')}, v{TA+dt} offset:{4096*u}")
    for dt in range(8):
        d = vr(GA_A + 4 * dt, 4, 'a')
        p(mf(d, vr(GF_A + 4 * dt, 4, 'a'), vr(OH, 4), d))
    p(f"""
    s_sub_u32 s47, s47, 1
    s_cmp_lg_u32 s47, 0
    s_cbranch_scc1 Lk2_g_loop
    s_branch Lk2_g_slow
    Lk2_g_back:
    s_nop 7
    v_lshlrev_b32 v{V_T0}, 3, v{V_I}
    s_branch Lk2_g_done
    """)


def k2_publish(p):
    XR = 208
    p(f"""
    s_mul_i32 s46, s34, {PART_STRIDE}
    s_lshl_b32 s47, s37, 12
    s_add_u32 s46, s46, s47
    s_add_u32 s46, s46, {PART_OFF}
    s_mul_i32 s47, s34, {STAT_STRIDE}
    s_lshl_b32 s48, s37, 7
    s_add_u32 s47, s47, s48
    s_add_u32 s47, s47, {STAT_OFF}
    v_lshlrev_b32 v{V_T0}, 3, v{V_I}
    s_mov_b32 s48, {hexf(2.0**100)}
    v_cmp_eq_u32 s[50:51], 3, v{V_G}
    s_mov_b64 s[52:53], 0
    """)
    for j in range(4):
        b = P_B + 2 * j
        p(f"""
        v_sub_f32 v{b}, 0, v{NM(j)}
        v_mov_b32 v{b+1}, v{O(j,7)+3}
        v_cmp_nlt_f32 vcc, v{O(j,7)+3}, s48
        s_or_b64 s[52:53], s[52:53], vcc
        """)
        for kk in range(4):
            d = S_B + 4 * kk
            for h in range(2):
                o = O(j, 2 * kk + h)
                p(f"v_cvt_pk_bf16_f32 v{d+2*h}, v{o}, v{o+1}")
                p(f"v_cvt_pk_bf16_f32 v{d+2*h+1}, v{o+2}, v{o+3}")
            p(f"buffer_store_dwordx4 {vr(d,4)}, v{V_L16}, s[28:31], s46 offen offset:{1024*kk}")
        if j < 3:
            p("s_add_u32 s46, s46, 4096")
    p("s_mov_b64 exec, s[50:51]")
    for j in range(4):
        b = P_B + 2 * j
        p(f"buffer_store_dwordx2 {vr(b,2)}, v{V_T0}, s[28:31], s47 offen offset:{128*j}")
    p(f"""
    s_mov_b64 exec, -1
    s_and_b64 s[52:53], s[52:53], s[50:51]
    s_cselect_b32 s46, 1, 0
    s_lshl_b32 s47, s33, 2
    s_add_u32 s47, s47, {FLAG_OFF}
    v_mov_b32 v{V_T1}, s47
    v_mov_b32 v{V_T2}, s46
    ds_write_b32 v{V_T1}, v{V_T2}
    """)
    stamp(p, 4)
    p("""
    s_cmp_gt_i32 s62, 0
    s_cselect_b32 s46, 0, s61
    s_cmp_lg_u32 s46, -1
    s_cbranch_scc1 Lk2_g_rare
    Lk2_g_done:
    """)
    p(f"""
    s_lshl_b32 s46, s33, 14
    s_add_u32 s46, s46, {WIMG_OFF}
    s_mov_b32 m0, s54
    v_lshlrev_b32 v{V_T3}, 8, v{V_I}
    """)
    for a in range(4):
        for i in range(4):
            p(f"buffer_load_dwordx4 v{V_L16}, s[28:31], s46 offen offset:{1024*i} lds")
        if a < 3:
            p("s_add_u32 m0, m0, 4096")
            p("s_add_u32 s46, s46, 4096")
    srd(p, 16, 74, N * 256)
    p(f"""
    v_lshl_add_u32 v{V_T3}, v{V_G}, 4, v{V_T3}
    s_min_u32 s38, s36, 1000
    s_lshl_b32 s38, s38, 12
    """)
    for kk in range(4):
        p(f"buffer_load_dwordx4 v[{XR+4*kk}:{XR+4*kk+3}], v{V_T3}, s[16:19], s38 offen offset:{64*kk}")
    AG = 224
    p(f"""
    v_lshlrev_b32 v{V_T1}, 16, v{DEG}
    v_mul_f32 v{V_T1}, 0.5, v{V_T1}
    """)
    for k in range(16):
        t = P_B + 8 + 2 * (k & 3)
        p(f"v_accvgpr_read_b32 v{t}, a{GA_A+2*k}")
        p(f"v_accvgpr_read_b32 v{t+1}, a{GA_A+2*k+1}")
        p(f"v_mul_f32 v{t}, v{t}, v{V_T1}")
        p(f"v_mul_f32 v{t+1}, v{t+1}, v{V_T1}")
        p(f"v_cvt_pk_bf16_f32 v{P_B+16+k}, v{t}, v{t+1}")
    p(f"""
    v_mov_b32 v{V_T2}, {FLAG_OFF}
    s_waitcnt vmcnt(0) lgkmcnt(0)
    s_barrier
    ds_read_b128 v[{S_B}:{S_B+3}], v{V_T2}
    v_or_b32 v{S_B}, v{S_B}, v{S_B+1}
    v_or3_b32 v{S_B}, v{S_B}, v{S_B+2}, v{S_B+3}
    v_readfirstlane_b32 s46, v{S_B}
    s_nop 1
    s_andn2_b32 s46, s46, s45
    s_cmp_lg_u32 s46, 0
    s_cbranch_scc1 Lk2_redo
    """)


def k2_final(p):
    XR = 208
    AG = P_B + 16
    STT = 192
    PT = O_B
    OA = 96
    OF = 128
    YA = 224
    WF = 144
    L = 202
    p("Lk2_final:")
    stamp(p, 5)
    p(f"""
    v_cmp_eq_u32 vcc, 0, v0
    v_mov_b32 v{V_T1}, 0x7fff0000
    v_mov_b32 v{V_T2}, s73
    v_cndmask_b32 v{V_T1}, v{V_T1}, v{V_T2}, vcc
    v_mov_b32 v{V_T2}, 1
    buffer_atomic_add v{V_T2}, v{V_T1}, s[28:31], 0 offen offset:128
    s_cmp_ge_u32 s36, {NBIN}
    s_cbranch_scc1 {'Lk2_fin' if STAMPS else 'Lk2_exit'}
    v_mov_b32 v{V_T1}, 0
    s_mov_b32 s47, 0
    Lk2_poll:
    buffer_load_dword v{V_T2}, v{V_T1}, s[28:31], s73 offen offset:128 sc1
    s_add_u32 s47, s47, 1
    s_waitcnt vmcnt(0)
    v_readfirstlane_b32 s46, v{V_T2}
    s_cmp_gt_u32 s47, {POLL_LIMIT}
    s_cbranch_scc1 Lk2_polled
    s_cmp_lt_u32 s46, 5
    s_cbranch_scc1 Lk2_poll
    Lk2_polled:
    """)
    stamp(p, 6)
    p(f"""
    s_lshl_b32 s46, s36, 7
    s_add_u32 s46, s46, {STAT_OFF}
    """)
    for s in range(5):
        p(f"buffer_load_dwordx2 v[{STT+2*s}:{STT+2*s+1}], v{V_T0}, s[28:31], s46 offen sc1")
        if s < 4:
            p(f"s_add_u32 s46, s46, {STAT_STRIDE}")
    p(f"s_add_u32 s46, s38, {PART_OFF}")
    for s in range(5):
        for kk in range(4):
            b = PT + 16 * s + 4 * kk
            p(f"buffer_load_dwordx4 v[{b}:{b+3}], v{V_L16}, s[28:31], s46 offen offset:{1024*kk} sc1")
        if s < 4:
            p(f"s_add_u32 s46, s46, {PART_STRIDE}")
    srd(p, 20, 76, N * 256)
    p(f"v_add_u32 v{V_T1}, {STG_OFF}, v{V_L16}")

    def rd(ft, m, buf):
        b = WF + 16 * buf
        for kk in range(4):
            p(f"ds_read_b128 v[{b+4*kk}:{b+4*kk+3}], v{V_T1} offset:{32768*m+4096*ft+1024*kk}")

    def gemm(m, B):
        rd(0, m, 0)
        for ft in range(8):
            if ft < 7:
                rd(ft + 1, m, (ft + 1) & 1)
            b = WF + 16 * (ft & 1)
            d = vr(YA + 4 * ft, 4)
            for kk in range(4):
                p(mf(d, vr(b + 4 * kk, 4), vr(B + 4 * kk, 4), '0' if (m == 0 and kk == 0) else d))
    gemm(0, AG)
    tiny = hexf(2.0 ** -120)
    for s in range(5):
        p(f"v_max_f32 v{STT+2*s+1}, {tiny}, v{STT+2*s+1}")
    for s in range(5):
        p(f"v_log_f32 v{L+s}, v{STT+2*s+1}")
    for s in range(5):
        p(f"v_add_f32 v{L+s}, v{L+s}, v{STT+2*s}")
    T = 207
    p(f"""
    v_max3_f32 v{T}, v{L}, v{L+1}, v{L+2}
    v_max3_f32 v{T}, v{T}, v{L+3}, v{L+4}
    """)
    for s in range(5):
        p(f"v_sub_f32 v{L+s}, v{L+s}, v{T}")
    for s in range(5):
        p(f"v_exp_f32 v{L+s}, v{L+s}")
    for s in range(5):
        p(f"v_rcp_f32 v{STT+2*s}, v{STT+2*s+1}")
    p(f"""
    v_add_f32 v{T}, v{L}, v{L+1}
    v_add_f32 v{V_T2}, v{L+2}, v{L+3}
    v_add_f32 v{T}, v{T}, v{L+4}
    v_add_f32 v{T}, v{T}, v{V_T2}
    v_rcp_f32 v{T}, v{T}
    """)
    for s in range(5):
        p(f"v_mul_f32 v{L+s}, v{L+s}, v{T}")
    for s in range(5):
        p(f"v_mul_f32 v{L+s}, v{L+s}, v{STT+2*s}")
    for s in range(5):
        for k in range(16):
            r = PT + 16 * s + k
            t = STT + 2 * (k & 3)
            p(f"v_lshlrev_b32 v{t}, 16, v{r}")
            p(f"v_and_b32 v{t+1}, 0xffff0000, v{r}")
            if s == 0:
                p(f"v_mul_f32 v{OA+2*k}, v{t}, v{L}")
                p(f"v_mul_f32 v{OA+2*k+1}, v{t+1}, v{L}")
            else:
                p(f"v_fmac_f32 v{OA+2*k}, v{t}, v{L+s}")
                p(f"v_fmac_f32 v{OA+2*k+1}, v{t+1}, v{L+s}")
    for k in range(16):
        p(f"v_cvt_pk_bf16_f32 v{OF+k}, v{OA+2*k}, v{OA+2*k+1}")
    gemm(1, OF)
    for k in range(16):
        t = STT + 2 * (k & 3)
        p(f"v_lshlrev_b32 v{t}, 16, v{XR+k}")
        p(f"v_and_b32 v{t+1}, 0xffff0000, v{XR+k}")
        p(f"v_add_f32 v{t}, v{t}, v{YA+2*k}")
        p(f"v_add_f32 v{t+1}, v{t+1}, v{YA+2*k+1}")
        p(f"v_cvt_pk_bf16_f32 v{PT+k}, v{t}, v{t+1}")
        if k % 4 == 3:
            kk = k // 4
            p(f"buffer_store_dwordx4 v[{PT+4*kk}:{PT+4*kk+3}], v{V_T3}, s[20:23], s38 offen offset:{64*kk}")
    if STAMPS:
        p("s_branch Lk2_fin2")
        p("Lk2_fin:")
        p("s_mov_b32 s86, s85")
        p("Lk2_fin2:")
    stamp(p, 7)
    if STAMPS:
        p("s_waitcnt vmcnt(0)")
    stamp(p, 8)
    if STAMPS:
        p("s_mov_b32 s92, s68")
    stamp_flush(p, 1, 16)
    p("s_endpgm")


def gen_k2():
    mid, tail, drain = gen_loop_variants()
    s = f"""  s_cmp_ge_u32 s2, {K2_NWG}
  s_cbranch_scc1 Lk2_exit
"""
    a = Prog()
    k2_setup(a)
    k2_prologue(a)
    s += emit(a.finish())
    s += ".p2align 6\nLk2_loop:\n" + emit(mid) + "  s_cbranch_scc1 Lk2_loop\n"
    if STAMPS:
        z = Prog()
        stamp(z, 11, True)
        s += emit(z.ins)
    s += "  s_cmp_lg_u32 s67, 0\n  s_cbranch_scc1 Lk2_tail\n"
    s += "Lk2_drain:\n" + emit(drain) + "  s_nop 7\n  s_waitcnt lgkmcnt(0)\n"
    c = Prog()
    stamp(c, 10, True)
    stamp(c, 3)
    k2_publish(c)
    k2_final(c)
    s += emit(c.finish())
    b = Prog()
    k2_tail_setup(b)
    s += "Lk2_tail:\n" + emit(b.finish()) + emit(tail) + "  s_branch Lk2_drain\n"
    g = Prog()
    k2_glue(g)
    s += emit(g.finish())
    d = Prog()
    d("Lk2_redo:")
    d("s_mov_b32 s45, 1")
    k2_maxpass(d)
    d("s_branch Lk2_run")
    s += emit(d.finish())
    e = Prog()
    k2_slow_gather(e)
    s += emit(e.finish())
    s += "Lk2_exit:\n  s_endpgm\n"
    return s
```

```python
import re

REG_RE = re.compile(r'\b([vas])(\d+)\b|\b([vas])\[(\d+):(\d+)\]')


def regs_of(tok):
    out = []
    for m in REG_RE.finditer(tok):
        if m.group(1):
            out.append((m.group(1), int(m.group(2))))
        else:
            for i in range(int(m.group(4)), int(m.group(5)) + 1):
                out.append((m.group(3), i))
    t = tok.strip()
    if t in ('vcc', 'vcc_lo', 'vcc_hi'):
        out.append(('x', 'vcc'))
    if t in ('exec', 'exec_lo', 'exec_hi'):
        out.append(('x', 'exec'))
    if t == 'm0':
        out.append(('x', 'm0'))
    return out


TRANS = ('v_exp_f32', 'v_log_f32', 'v_rcp_f32', 'v_rsq_f32', 'v_sqrt_f32', 'v_sin_f32', 'v_cos_f32')


class I:
    __slots__ = ('text', 'op', 'kind', 'rd', 'wr', 'srcc', 'srcab', 'tag', 'passes', 'cnt', 'dpp')

    def __init__(self, text, tag=None):
        self.text = text.strip()
        self.tag = tag
        self.rd = []
        self.wr = []
        self.srcc = []
        self.srcab = []
        self.passes = 0
        self.cnt = None
        self.dpp = False
        t = self.text.split(';')[0].strip()
        if t.endswith(':') or t.startswith('.') or not t:
            self.op = t
            self.kind = 'label' if t.endswith(':') else 'dir'
            return
        parts = t.split(None, 1)
        op = parts[0]
        self.op = op
        rest = parts[1] if len(parts) > 1 else ''
        rest = re.sub(r'\s+(op_sel|op_sel_hi|neg_lo|neg_hi):\[[^\]]*\]', '', rest)
        ops = [o.strip() for o in rest.split(',')] if rest else []
        mods = ''
        if ops:
            sp = ops[-1].split(None, 1)
            if len(sp) > 1 and not ops[-1].startswith('hwreg'):
                ops[-1] = sp[0]
                mods = sp[1]
        R = [regs_of(o) for o in ops]
        if op.startswith('v_mfma'):
            self.kind = 'mfma'
            self.wr = R[0]
            self.srcab = R[1] + R[2]
            self.srcc = R[3]
            self.rd = self.srcab + self.srcc
            self.passes = 4 if '16x16x32' in op else 8
        elif op.startswith('ds_'):
            self.kind = 'ds'
            self.cnt = 'lgkm'
            if op.startswith('ds_read') or 'rtn' in op or 'permute' in op or 'swizzle' in op:
                self.wr = R[0]
                self.rd = sum(R[1:], [])
            else:
                self.rd = sum(R, [])
        elif op.startswith('buffer_') or op.startswith('global_'):
            self.kind = 'vmem'
            self.cnt = 'vm'
            islds = ' lds' in (' ' + mods) or 'load_lds' in op
            if op in ('buffer_wbl2', 'buffer_inv'):
                pass
            elif islds:
                self.rd = sum(R, []) + [('x', 'm0')]
            elif 'load' in op:
                self.wr = R[0]
                self.rd = sum(R[1:], [])
            elif 'atomic' in op and 'sc0' in mods:
                self.wr = R[0]
                self.rd = sum(R, [])
            else:
                self.rd = sum(R, [])
        elif op.startswith('s_load') or op.startswith('s_buffer_load') or op in ('s_memtime', 's_memrealtime'):
            self.kind = 'smem'
            self.cnt = 'smem'
            self.wr = R[0]
            self.rd = sum(R[1:], [])
        elif op.startswith('s_'):
            if op in ('s_waitcnt', 's_nop', 's_barrier', 's_endpgm', 's_setprio', 's_sleep'):
                self.kind = op[2:]
            elif op.startswith('s_cbranch') or op == 's_branch':
                self.kind = 'branch'
            elif op.startswith('s_cmp') or op.startswith('s_bitcmp'):
                self.kind = 'salu'
                self.rd = sum(R, [])
            else:
                self.kind = 'salu'
                self.wr = R[0]
                self.rd = sum(R[1:], [])
                if 'saveexec' in op:
                    self.wr = self.wr + [('x', 'exec')]
                    self.rd = self.rd + [('x', 'exec')]
                if op in ('s_addk_i32', 's_mulk_i32'):
                    self.rd = self.rd + R[0]
        elif op.startswith('v_'):
            self.kind = 'valu'
            self.dpp = '_dpp' in op
            if op.startswith('v_cmpx'):
                self.wr = R[0] + [('x', 'exec')]
                self.rd = sum(R[1:], [])
            elif 'permlane' in op and 'swap' in op:
                self.wr = R[0] + R[1]
                self.rd = R[0] + R[1]
            elif op.startswith('v_add_co') or op.startswith('v_addc_co') or op.startswith('v_sub_co') or op.startswith('v_subb_co') or op.startswith('v_mad_u64'):
                self.wr = R[0] + R[1]
                self.rd = sum(R[2:], [])
            else:
                self.wr = R[0]
                self.rd = sum(R[1:], [])
                if op.startswith('v_fmac') or op.startswith('v_writelane') or self.dpp or 'UNUSED_PRESERVE' in mods:
                    self.rd = self.rd + R[0]
                if op.startswith('v_cndmask') and len(ops) == 3:
                    self.rd = self.rd + [('x', 'vcc')]
        else:
            raise ValueError('unknown instr ' + text)

    def states(self):
        if self.kind in ('label', 'dir'):
            return 0
        if self.kind == 'nop':
            return int(self.text.split()[1], 0) + 1
        return 1

    def __repr__(self):
        return self.text


def need_states(p, c):
    n = 0
    pw = set(p.wr)
    cr = set(c.rd)
    cw = set(c.wr)
    if p.kind == 'mfma':
        ps = p.passes
        big = {4: 8, 8: 12}[ps]
        if c.kind == 'mfma':
            if pw & set(c.srcab):
                n = max(n, big)
            if pw & set(c.srcc):
                if list(p.wr) == list(c.srcc) and p.passes == c.passes:
                    pass
                else:
                    n = max(n, {4: 6, 8: 10}[ps])
            elif pw & cw:
                n = max(n, {4: 6, 8: 10}[ps])
        elif c.kind in ('valu', 'ds', 'vmem'):
            if pw & (cr | cw):
                n = max(n, big)
        if c.kind == 'valu' and set(p.srcc) & cw:
            n = max(n, {4: 3, 8: 7}[ps])
    if p.kind == 'valu':
        vw = {r for r in pw if r[0] in 'va'}
        sw = {r for r in pw if r[0] == 's' or r == ('x', 'vcc')}
        if c.kind == 'mfma' and vw & cr:
            n = max(n, 2)
        if c.kind == 'mfma' and ('x', 'exec') in pw:
            n = max(n, 4)
        if c.kind == 'valu':
            if c.dpp and vw & cr:
                n = max(n, 2)
            if c.dpp and ('x', 'exec') in pw:
                n = max(n, 5)
            if 'permlane' in c.op and vw & cr:
                n = max(n, 2)
            if 'permlane' in c.op and ('x', 'exec') in pw:
                n = max(n, 4)
            if ('readlane' in c.op or 'readfirstlane' in c.op) and vw & cr:
                n = max(n, 1)
            if ('readlane' in c.op or 'readfirstlane' in c.op or 'writelane' in c.op) and ('x', 'exec') in pw:
                n = max(n, 4)
            if sw & cr:
                n = max(n, 4 if ('readlane' in c.op or 'writelane' in c.op) else 2)
            if p.op.replace('_e32', '').replace('_e64', '') in TRANS and vw & cr:
                n = max(n, 1)
            if 'sdwa' in p.op and vw & (cr | cw):
                n = max(n, 1)
        if c.kind == 'vmem' and sw & cr:
            n = max(n, 5)
        if c.kind in ('salu', 'branch') and (sw & cr):
            n = max(n, 1)
    if p.kind == 'salu':
        if ('x', 'm0') in pw and c.kind in ('vmem', 'ds') and ('x', 'm0') in cr:
            n = max(n, 1)
    if p.kind == 'vmem' and 'store' in p.op and ('x4' in p.op or 'x3' in p.op):
        data = set(regs_of(p.text.split(None, 1)[1].split(',')[0])) if p.op.startswith('buffer') else \
            set(regs_of(p.text.split(None, 1)[1].split(',')[1]))
        if data & cw:
            n = max(n, 2 if c.kind == 'valu' else 1)
    return n


MAXLOOK = 24


def pad_hazards(ins, fix=True, pre=None):
    out = list(pre) if pre else []
    npre = len(out)
    problems = []
    for c in ins:
        if c.kind in ('label', 'dir'):
            out.append(c)
            continue
        dist = 0
        short = 0
        k = len(out) - 1
        while k >= 0 and dist < MAXLOOK:
            p = out[k]
            if p.kind not in ('label', 'dir'):
                n = need_states(p, c)
                if n > dist:
                    short = max(short, n - dist)
                    problems.append((p.text, c.text, n, dist))
                dist += p.states()
            k -= 1
        if short and fix:
            while short > 0:
                s = min(short, 16)
                out.append(I(f's_nop {s - 1}'))
                short -= s
        out.append(c)
    return out[npre:], problems


def _parse_wait(i):
    vm = lg = None
    m = re.search(r'vmcnt\((\d+)\)', i.text)
    if m:
        vm = int(m.group(1))
    m = re.search(r'lgkmcnt\((\d+)\)', i.text)
    if m:
        lg = int(m.group(1))
    return vm, lg


class WaitState:
    def __init__(self):
        self.vm = []
        self.lg = []

    def copy(self):
        w = WaitState()
        w.vm = list(self.vm)
        w.lg = list(self.lg)
        return w


def auto_wait(ins, st=None):
    st = st or WaitState()
    out = []
    for c in ins:
        if c.kind in ('label', 'dir'):
            out.append(c)
            continue
        if c.kind == 'waitcnt':
            vm, lg = _parse_wait(c)
            if vm is not None:
                st.vm = st.vm[len(st.vm) - vm:] if vm < len(st.vm) else st.vm
                if vm == 0:
                    st.vm = []
            if lg is not None:
                if lg == 0:
                    st.lg = []
                elif not any(e[1] for e in st.lg):
                    st.lg = st.lg[len(st.lg) - lg:] if lg < len(st.lg) else st.lg
            out.append(c)
            continue
        touch = set(c.rd) | set(c.wr)
        nvm = nlg = None
        for k, regs in enumerate(st.vm):
            if regs & touch:
                nvm = len(st.vm) - 1 - k
        for k, (regs, sm) in enumerate(st.lg):
            if regs & touch:
                nlg = len(st.lg) - 1 - k
        if nlg is not None and any(e[1] for e in st.lg):
            nlg = 0
        if nvm is not None or nlg is not None:
            t = 's_waitcnt'
            if nvm is not None:
                nvm = min(nvm, 63)
                t += f' vmcnt({nvm})'
                st.vm = st.vm[len(st.vm) - nvm:] if nvm else []
            if nlg is not None:
                nlg = min(nlg, 15)
                t += f' lgkmcnt({nlg})'
                st.lg = st.lg[len(st.lg) - nlg:] if nlg else []
            out.append(I(t))
        if c.cnt == 'vm':
            st.vm.append(set(c.wr))
        elif c.cnt == 'lgkm':
            st.lg.append((set(c.wr), False))
        elif c.cnt == 'smem':
            st.lg.append((set(c.wr), True))
        out.append(c)
    return out


class Prog:
    def __init__(self):
        self.ins = []

    def __call__(self, text, tag=None):
        for line in text.strip().split('\n'):
            line = line.strip()
            if not line or line.startswith(';'):
                continue
            self.ins.append(I(line, tag))

    def extend(self, ins):
        self.ins.extend(ins)

    def finish(self):
        a = auto_wait(self.ins)
        b, _ = pad_hazards(a)
        return b


def emit(ins):
    s = ''
    for i in ins:
        if i.kind == 'label' or i.kind == 'dir':
            s += i.text + '\n'
        else:
            s += '  ' + i.text + '\n'
    return s


def vr(b, n=1, k='v'):
    return f'{k}{b}' if n == 1 else f'{k}[{b}:{b + n - 1}]'


def f2u(x):
    import struct
    return struct.unpack('<I', struct.pack('<f', x))[0]


def hexf(x):
    return '0x%08x' % f2u(x)


_size_cache = {}


def isizes(ins):
    import subprocess, tempfile, os
    need = []
    for i in ins:
        if i.kind in ('label', 'dir') or i.kind == 'branch':
            continue
        if i.text not in _size_cache and i.text not in need:
            need.append(i.text)
    if need:
        d = tempfile.mkdtemp()
        open(d + '/a.s', 'w').write('.amdgcn_target "amdgcn-amd-amdhsa--gfx950"\n.text\n' + '\n'.join(need) + '\n')
        subprocess.run(['clang', '-x', 'assembler', '-target', 'amdgcn-amd-amdhsa', '-mcpu=gfx950', '-c', d + '/a.s', '-o', d + '/a.o'], check=True)
        out = subprocess.run(['llvm-objdump', '-d', '--mcpu=gfx950', d + '/a.o'], capture_output=True, text=True).stdout
        enc = [l.split('//')[1].split(':')[1].split() for l in out.split('\n') if '//' in l]
        assert len(enc) == len(need)
        for t, e in zip(need, enc):
            _size_cache[t] = 4 * len(e)
    return [0 if i.kind in ('label', 'dir') else 4 if i.kind == 'branch' else _size_cache[i.text] for i in ins]


def align8(ins, verbose=False):
    out = list(ins)
    nn = 0
    k = 0
    off = 0
    sz = isizes(out)
    last4 = None
    while k < len(out):
        i = out[k]
        s = sz[k]
        if s == 8 and off % 8 == 4 or (i.kind == 'label' and off % 8 == 4):
            if last4 is not None:
                j = out[last4]
                parts = j.text.split(None, 1)
                n = I(parts[0] + '_e64 ' + parts[1], j.tag)
                out[last4] = n
                sz[last4] = 8
                off += 4
            else:
                out.insert(k, I('s_nop 0', 'align'))
                sz.insert(k, 4)
                nn += 1
                off += 4
                k += 1
            last4 = None
        if s == 4 and i.kind == 'valu' and not i.op.endswith('_e64') and 'readfirstlane' not in i.op and off % 8 == 0:
            last4 = k
        elif s == 4 and off % 8 == 4:
            last4 = None
        elif s == 8:
            last4 = None
        off += s
        k += 1
    if verbose:
        print('align8: nops', nn, 'bytes', off)
    return out
```

```python
from common import *

NW = 16
NWV = K1T // 64
NLN = (784 + NWV - 1) // NWV
K1_NWG = G + NW + NLN
K1_LDS = 65536
K1_NREC = K1_NWG * NWV


def bf16_round(p, v, t):
    p(f"""
    v_cvt_pk_bf16_f32 v{t}, v{v}, v{v}
    v_lshlrev_b32 v{v}, 16, v{t}
    """)


def pk_rowsum(p, B, T):
    P2 = lambda r: f"v[{r}:{r+1}]"
    for c in range(4):
        p(f"v_pk_add_f32 {P2(T+2*c)}, {P2(B+2*c)}, {P2(B+8+2*c)}")
    for k in range(8, 16):
        c = k & 3
        p(f"v_pk_add_f32 {P2(T+2*c)}, {P2(T+2*c)}, {P2(B+2*k)}")
    p(f"""
    v_pk_add_f32 {P2(T)}, {P2(T)}, {P2(T+2)}
    v_pk_add_f32 {P2(T+4)}, {P2(T+4)}, {P2(T+6)}
    v_pk_add_f32 {P2(T)}, {P2(T)}, {P2(T+4)}
    v_add_f32 v{T}, v{T}, v{T+1}
    """)
    allreduce_g(p, T, T + 1)


def k1_ln(p):
    stamp(p, 0)
    p(f"""
    s_load_dwordx2 s[4:5], s[0:1], {A_X}
    s_load_dwordx4 s[8:11], s[0:1], {A_WQ}
    s_load_dwordx2 s[12:13], s[0:1], {A_WS}
    v_and_b32 v1, 63, v0
    v_lshrrev_b32 v7, 6, v0
    v_lshrrev_b32 v2, 4, v1
    v_and_b32 v3, 15, v1
    v_readfirstlane_b32 s33, v7
    s_sub_u32 s34, s2, {G+NW}
    s_mul_i32 s34, s34, {NWV}
    v_lshlrev_b32 v4, 8, v3
    v_lshl_add_u32 v4, v2, 4, v4
    s_add_u32 s34, s34, s33
    s_lshl_b32 s35, s34, 12
    s_waitcnt lgkmcnt(0)
    """)
    srd(p, 16, 4, N * 256)
    for ks in range(4):
        p(f"buffer_load_dwordx4 v[{8+4*ks}:{11+4*ks}], v4, s[16:19], s35 offen offset:{64*ks}")
    srd(p, 20, 8, 32768)
    srd(p, 24, 10, 32768)
    srd(p, 28, 12, WS_SIZE)
    p("""
    s_barrier
    s_cmp_ge_u32 s33, 4
    s_cbranch_scc1 Lk1_nodma
    """)
    p(f"""
    v_lshlrev_b32 v5, 2, v2
    v_xor_b32 v5, v5, v3
    v_lshlrev_b32 v5, 4, v5
    v_lshl_add_u32 v5, v2, 8, v5
    s_lshl_b32 s36, s33, 13
    s_mov_b32 m0, s36
    s_add_u32 s37, s36, 4096
    """)
    for j in range(4):
        p(f"buffer_load_dwordx4 v5, s[20:23], s36 offen offset:{1024*j} lds")
    p("s_mov_b32 m0, s37")
    for j in range(4):
        p(f"buffer_load_dwordx4 v5, s[20:23], s37 offen offset:{1024*j} lds")
    p(f"""
    s_lshl_b32 s38, s33, 2
    v_xor_b32 v6, v3, v2
    v_xor_b32 v6, s38, v6
    v_lshlrev_b32 v6, 4, v6
    v_lshl_add_u32 v6, v2, 8, v6
    s_lshl_b32 s38, s33, 11
    """)
    for a in range(4):
        p(f"""
        s_add_u32 s39, s38, {8192*a}
        s_add_u32 s40, s39, 32768
        s_mov_b32 m0, s40
        s_nop 0
        buffer_load_dwordx4 v6, s[24:27], s39 offen lds
        buffer_load_dwordx4 v6, s[24:27], s39 offen offset:1024 lds
        """)
    p("Lk1_nodma:")
    p(f"""
    v_bfe_u32 v205, v1, 2, 2
    v_and_b32 v206, 3, v1
    v_lshl_add_u32 v207, v2, 3, v205
    v_lshlrev_b32 v207, 8, v207
    v_lshl_add_u32 v207, v206, 4, v207
    v_lshl_add_u32 v208, v205, 6, v207
    v_xor_b32 v209, 64, v208
    v_xor_b32 v210, 128, v208
    v_xor_b32 v211, 192, v208
    """)
    p(f"""
    v_lshrrev_b32 v212, 2, v3
    v_lshlrev_b32 v212, 3, v212
    v_and_b32 v213, 3, v3
    v_add_u32 v212, v212, v213
    v_lshlrev_b32 v212, 8, v212
    v_xor_b32 v213, v2, v3
    v_lshl_add_u32 v212, v213, 4, v212
    v_add_u32 v212, 32768, v212
    v_xor_b32 v213, 64, v212
    v_xor_b32 v214, 128, v212
    v_xor_b32 v215, 192, v212
    """)
    if STAMPS:
        p("s_waitcnt vmcnt(16)")
        stamp(p, 1)
    if NWV > 4:
        p("""
        s_cmp_lt_u32 s33, 4
        s_cbranch_scc1 Lk1_xw
        s_waitcnt vmcnt(0)
        Lk1_xw:
        s_waitcnt vmcnt(16)
        """)
    F = 24
    P2 = lambda r: f"v[{r}:{r+1}]"
    p("s_mov_b32 s41, 0xffff0000")
    for k in range(16):
        p(f"v_lshlrev_b32 v{F+2*k}, 16, v{8+k}")
        p(f"v_and_b32 v{F+2*k+1}, s41, v{8+k}")
    pk_rowsum(p, F, 200)
    p(f"v_mul_f32 v200, {hexf(1.0/128)}, v200")
    for k in range(16):
        p(f"v_pk_add_f32 {P2(F+2*k)}, {P2(F+2*k)}, v[200:201] op_sel_hi:[1,0] neg_lo:[0,1] neg_hi:[0,1]")
    for c in range(4):
        p(f"v_pk_mul_f32 {P2(200+2*c)}, {P2(F+2*c)}, {P2(F+2*c)}")
    for k in range(4, 16):
        c = k & 3
        p(f"v_pk_fma_f32 {P2(200+2*c)}, {P2(F+2*k)}, {P2(F+2*k)}, {P2(200+2*c)}")
    p("""
    v_pk_add_f32 v[200:201], v[200:201], v[202:203]
    v_pk_add_f32 v[204:205], v[204:205], v[206:207]
    v_pk_add_f32 v[200:201], v[200:201], v[204:205]
    v_add_f32 v200, v200, v201
    """)
    allreduce_g(p, 200, 201)
    bcast_g3(p, F + 31, 202, 203)
    p(f"v_mul_f32 v200, {hexf(1.0/128)}, v200")
    bf16_round(p, 200, 201)
    p(f"v_add_f32 v200, {hexf(1e-5)}, v200")
    bf16_round(p, 200, 201)
    p("v_sqrt_f32 v200, v200")
    bf16_round(p, 200, 201)
    p("v_rcp_f32 v200, v200")
    p(f"v_mul_f32 v202, {hexf(CH)}, v202")
    p("v_cmp_eq_u32 s[42:43], 3, v2")
    p("v_mul_f32 v202, v202, v200")
    HB = 56
    HT = 72
    H2 = 88
    for k in range(16):
        p(f"v_pk_fma_f32 {P2(H2+2*k)}, {P2(F+2*k)}, v[200:201], v[202:203] op_sel_hi:[1,0,0]")
    p(f"v_cndmask_b32 v{H2+31}, v{H2+31}, 1.0, s[42:43]")
    p(f"""
    s_add_u32 s45, s35, {HROW_OFF}
    s_add_u32 s46, s35, {QIMG_OFF}
    """)
    for k in range(16):
        p(f"v_cvt_pk_bf16_f32 v{HT+k}, v{H2+2*k}, v{H2+2*k+1}")
        if k % 4 == 3:
            ks = k // 4
            p(f"buffer_store_dwordx4 v[{HT+4*ks}:{HT+4*ks+3}], v4, s[28:31], s45 offen offset:{64*ks}")
    for k in range(16):
        p(f"v_pk_mul_f32 {P2(F+2*k)}, {P2(F+2*k)}, v[200:201] op_sel_hi:[1,0]")
    for k in range(16):
        p(f"v_cvt_pk_bf16_f32 v{HB+k}, v{F+2*k}, v{F+2*k+1}")
    p("""
    s_waitcnt vmcnt(12)
    s_barrier
    """)
    stamp(p, 2)
    QA = 88
    AF = 168

    def rd1(t):
        b = AF + 16 * (t & 1)
        for ks in range(4):
            for u in range(2):
                p(f"ds_read_b64_tr_b16 v[{b+4*ks+2*u}:{b+4*ks+2*u+1}], v{208+(t>>1)} offset:{8192*ks+1024*u+8*(t&1)}")
    rd1(0)
    for t in range(8):
        if t < 7:
            rd1(t + 1)
        b = AF + 16 * (t & 1)
        for ks in range(4):
            c = '0' if ks == 0 else f'v[{QA+4*t}:{QA+4*t+3}]'
            p(f"v_mfma_f32_16x16x32_bf16 v[{QA+4*t}:{QA+4*t+3}], v[{b+4*ks}:{b+4*ks+3}], v[{HB+4*ks}:{HB+4*ks+3}], {c}")
    UA = 136
    QF = 120

    def rd2(t):
        b = AF + 16 * (t & 1)
        for kk in range(4):
            p(f"ds_read_b128 v[{b+4*kk}:{b+4*kk+3}], v{212+kk} offset:{8192*(t>>1)+1024*(t&1)}")
    p("""
    s_waitcnt vmcnt(4)
    s_barrier
    """)
    rd2(0)
    for k in range(16):
        p(f"v_cvt_pk_bf16_f32 v{QF+k}, v{QA+2*k}, v{QA+2*k+1}")
    for t in range(8):
        if t < 7:
            rd2(t + 1)
        b = AF + 16 * (t & 1)
        for kk in range(4):
            c = '0' if kk == 0 else f'v[{UA+4*t}:{UA+4*t+3}]'
            p(f"v_mfma_f32_16x16x32_bf16 v[{UA+4*t}:{UA+4*t+3}], v[{b+4*kk}:{b+4*kk+3}], v[{QF+4*kk}:{QF+4*kk+3}], {c}")
    pk_rowsum(p, UA, 200)
    bcast_g3(p, UA + 31, 202, 201)
    k1c = (1.0 + CH) / RT128 * QSCALE
    k2c = -CH / RT128 * QSCALE
    p(f"""
    v_mul_f32 v202, {hexf(k1c)}, v202
    v_mul_f32 v200, {hexf(k2c)}, v200
    v_add_f32 v200, v200, v202
    v_mov_b32 v202, {hexf(QSCALE)}
    """)
    for k in range(16):
        p(f"v_pk_fma_f32 {P2(UA+2*k)}, {P2(UA+2*k)}, v[202:203], v[200:201] op_sel_hi:[1,0,0]")
    p(f"v_cndmask_b32 v{UA+31}, v{UA+31}, 0, s[42:43]")
    for k in range(16):
        p(f"v_cvt_pk_bf16_f32 v{QF+k}, v{UA+2*k}, v{UA+2*k+1}")
    p("v_lshlrev_b32 v204, 4, v1")
    for ks in range(4):
        p(f"buffer_store_dwordx4 v[{QF+4*ks}:{QF+4*ks+3}], v204, s[28:31], s46 offen offset:{1024*ks}")
    for ks in range(4):
        p(mf("v[200:203]", vr(HT + 4 * ks, 4), vr(QF + 4 * ks, 4), '0' if ks == 0 else "v[200:203]"))
    p(f"""
    s_cmp_eq_u32 s34, {N // 16}
    s_cselect_b32 s48, 0, 4
    v_cmp_lt_u32 vcc, s48, v2
    v_mov_b32 v205, 0xff800000
    s_lshl_b32 s47, s34, 6
    s_add_u32 s47, s47, {MZ_OFF}
    v_lshlrev_b32 v206, 2, v3
    v_max3_f32 v200, v200, v201, v202
    v_max_f32 v200, v200, v203
    v_cndmask_b32 v200, v200, v205, vcc
    """)
    allreduce_g(p, 200, 201, 'v_max_f32')
    p(f"""
    v_sub_f32 v200, {hexf(-MARGIN)}, v200
    buffer_store_dword v200, v206, s[28:31], s47 offen
    """)
    stamp(p, 3)
    if STAMPS:
        p("s_waitcnt vmcnt(0)")
    stamp(p, 4)
    stamp_flush(p, 0, 5, nw=NWV)
    p("s_endpgm")


def mf(d, a, b, c):
    return f"v_mfma_f32_16x16x32_bf16 {d}, {a}, {b}, {c}"


def k1_wprep(p):
    p(f"""
    s_load_dwordx2 s[4:5], s[0:1], {A_WMSG}
    s_load_dwordx2 s[6:7], s[0:1], {A_WV}
    s_load_dwordx2 s[8:9], s[0:1], {A_WOUT}
    s_load_dwordx2 s[12:13], s[0:1], {A_WS}
    v_and_b32 v1, 63, v0
    v_lshrrev_b32 v7, 6, v0
    v_lshrrev_b32 v2, 4, v1
    v_and_b32 v3, 15, v1
    v_readfirstlane_b32 s33, v7
    s_sub_u32 s34, s2, {G}
    s_cmp_lg_u32 s33, 0
    s_cbranch_scc1 {'Lk1_wskip' if STAMPS else 'Lk1_exit'}
    s_and_b32 s35, s34, 7
    s_waitcnt lgkmcnt(0)
    s_cmp_ge_u32 s34, 8
    s_cselect_b32 s4, s6, s4
    s_cselect_b32 s5, s7, s5
    """)
    srd(p, 16, 4, 32768)
    srd(p, 20, 8, 32768)
    srd(p, 28, 12, WS_SIZE)
    AFR = 16
    BFR = 144
    AC = 160
    p(f"""
    v_lshlrev_b32 v4, 8, v3
    v_lshl_add_u32 v4, v2, 4, v4
    s_mov_b32 s36, 0
    """)
    for t in range(8):
        for kk in range(4):
            b = AFR + (t * 4 + kk) * 4
            p(f"buffer_load_dwordx4 v[{b}:{b+3}], v4, s[16:19], s36 offen offset:{64*kk}")
        p("s_add_u32 s36, s36, 4096")
    p(f"""
    v_lshrrev_b32 v5, 2, v3
    v_lshlrev_b32 v5, 3, v5
    v_and_b32 v6, 3, v3
    v_add_u32 v5, v5, v6
    v_lshlrev_b32 v5, 1, v5
    v_lshl_add_u32 v5, v2, 11, v5
    s_lshr_b32 s36, s35, 1
    s_lshl_b32 s36, s36, 6
    s_and_b32 s37, s35, 1
    s_lshl_b32 s37, s37, 3
    s_add_u32 s36, s36, s37
    """)
    for kk in range(4):
        p(f"s_add_u32 s37, s36, {8192*kk}")
        for x in range(8):
            p(f"buffer_load_ushort v{AC+8*kk+x}, v5, s[20:23], s37 offen offset:{256*x}")
    for k in range(16):
        p(f"v_lshl_or_b32 v{BFR+k}, v{AC+2*k+1}, 16, v{AC+2*k}")
    for t in range(8):
        d = vr(AC + 4 * t, 4)
        for kk in range(4):
            b = AFR + (t * 4 + kk) * 4
            p(mf(d, vr(b, 4), vr(BFR + 4 * kk, 4), '0' if kk == 0 else d))
    for c in range(4):
        p(f"v_add_f32 v{200+c}, v{AC+c}, v{AC+4+c}")
    for k in range(2, 8):
        for c in range(4):
            p(f"v_add_f32 v{200+c}, v{200+c}, v{AC+4*k+c}")
    p("""
    v_add_f32 v200, v200, v201
    v_add_f32 v202, v202, v203
    v_add_f32 v200, v200, v202
    """)
    allreduce_g(p, 200, 201)
    bcast_g3(p, AC + 31, 202, 201)
    p(f"""
    v_mul_f32 v202, {hexf((1.0+CH)/RT128)}, v202
    v_mul_f32 v200, {hexf(-CH/RT128)}, v200
    v_add_f32 v200, v200, v202
    v_cmp_eq_u32 s[42:43], 3, v2
    """)
    for k in range(32):
        p(f"v_add_f32 v{AC+k}, v{AC+k}, v200")
    p(f"v_cndmask_b32 v{AC+31}, v{AC+31}, 0, s[42:43]")
    for k in range(16):
        p(f"v_cvt_pk_bf16_f32 v{16+k}, v{AC+2*k}, v{AC+2*k+1}")
    p(f"""
    v_lshlrev_b32 v4, 4, v1
    s_lshl_b32 s36, s34, 12
    s_add_u32 s36, s36, {WIMG_OFF}
    """)
    for kk in range(4):
        p(f"buffer_store_dwordx4 v[{16+4*kk}:{19+4*kk}], v4, s[28:31], s36 offen offset:{1024*kk}")
    if STAMPS:
        p("Lk1_wskip:")
        p("s_waitcnt lgkmcnt(0)")
        srd(p, 28, 12, WS_SIZE)
        for i in range(5):
            stamp(p, i)
        stamp_flush(p, 0, 5, nw=NWV)
    p("s_endpgm")


def k1_bin(p):
    RS = K1T * 16
    NR = (EPW * 4 + RS - 1) // RS
    STG = 8192
    NO = (8608 * 4 + RS - 1) // RS
    NF = (9400 * 4 + RS - 1) // RS
    TOT = STG + max(NF, NO) * RS
    assert TOT + 64 <= K1_LDS and NO * RS <= ENT_STRIDE
    NE = 4 * NR
    stamp(p, 0)
    p(f"""
    s_load_dwordx4 s[4:7], s[0:1], {A_SRC}
    s_load_dwordx2 s[12:13], s[0:1], {A_WS}
    v_lshlrev_b32 v1, 4, v0
    v_lshrrev_b32 v7, 6, v0
    v_mov_b64 v[8:9], 0
    v_mov_b64 v[10:11], 0
    v_readfirstlane_b32 s33, v7
    ds_write_b128 v1, v[8:11]
    s_mul_i32 s34, s2, {EPW*4}
    v_mov_b32 v12, 0xffff
    v_mov_b32 v13, v12
    v_mov_b32 v14, v12
    v_mov_b32 v15, v12
    s_waitcnt lgkmcnt(0)
    """)
    srd(p, 20, 6, E * 4)
    DS = 16
    SR = 44
    RK = 72
    BA = 100
    for r in range(NR):
        p(f"s_add_u32 s35, s34, {RS*r}")
        p(f"buffer_load_dwordx4 v[{DS+4*r}:{DS+4*r+3}], v1, s[20:23], s35 offen")
    srd(p, 16, 4, E * 4)
    for r in range(NR):
        p(f"s_add_u32 s35, s34, {RS*r}")
        p(f"buffer_load_dwordx4 v[{SR+4*r}:{SR+4*r+3}], v1, s[16:19], s35 offen")
    srd(p, 28, 12, WS_SIZE)
    for r in range(NF):
        p(f"ds_write_b128 v1, v[12:15] offset:{STG+RS*r}")
    p(f"""
    v_and_b32 v2, 0xf0, v1
    s_lshl_b32 s35, s2, 8
    s_add_u32 s35, s35, {CNT_OFF}
    s_add_u32 s36, s35, {NULLG_OFF - CNT_OFF}
    v_and_b32 v4, 63, v0
    v_lshlrev_b32 v4, 2, v4
    v_add_u32 v4, {784*4}, v4
    v_lshlrev_b32 v3, 2, v0
    s_mov_b32 s43, 0x10000
    s_movk_i32 s44, {783*4}
    s_mov_b32 s45, -4
    s_cmp_lg_u32 s33, 0
    s_cbranch_scc1 Lk1_b0
    buffer_store_dwordx4 v[8:11], v2, s[28:31], s35 offen
    buffer_store_dwordx4 v[12:15], v2, s[28:31], s36 offen
    v_and_b32 v2, 0x1f0, v1
    s_lshl_b32 s35, s2, 9
    s_add_u32 s35, s35, {FLG_OFF}
    buffer_store_dwordx4 v[8:11], v2, s[28:31], s35 offen
    s_waitcnt vmcnt({2 + 2*NR - 1} - 1)
    Lk1_b0:
    v_mov_b32 v2, 1
    s_waitcnt lgkmcnt(0)
    s_barrier
    """.replace(f"s_waitcnt vmcnt({2 + 2*NR - 1} - 1)\n", ""))
    return_marker = len(p.ins)
    for r in range(NR):
        p(f"s_waitcnt vmcnt({2*NR - 1 - r})")
        for k in range(4):
            e = 4 * r + k
            p(f"v_lshrrev_b32 v{BA+e}, 2, v{DS+e}")
            p(f"v_and_b32 v{BA+e}, s45, v{BA+e}")
            p(f"v_min_u32 v{BA+e}, s44, v{BA+e}")
            if r == NR - 1:
                p(f"""
                v_cmp_gt_u32 vcc, {EPW - (RS//4)*(NR-1) - k}, v3
                v_cndmask_b32 v{BA+e}, v4, v{BA+e}, vcc
                """)
            p(f"ds_add_rtn_u32 v{RK+e}, v{BA+e}, v2")
    stamp(p, 1)
    p("s_waitcnt vmcnt(0)")
    for e in range(NE):
        p(f"v_and_b32 v{DS+e}, 15, v{DS+e}")
        p(f"v_lshl_or_b32 v{DS+e}, s43, v{DS+e}, v{SR+e}")
    p(f"""
    s_waitcnt lgkmcnt(0)
    s_barrier
    ds_read_b128 v[8:11], v1
    s_lshl_b32 s37, s33, 2
    s_add_u32 s37, s37, {TOT}
    v_mov_b32 v6, s37
    v_add_u32 v8, 3, v8
    v_add_u32 v9, 3, v9
    v_add_u32 v10, 3, v10
    v_add_u32 v11, 3, v11
    v_and_b32 v8, -4, v8
    v_and_b32 v9, -4, v9
    v_and_b32 v10, -4, v10
    v_and_b32 v11, -4, v11
    v_add_u32 v13, v8, v9
    v_add_u32 v14, v13, v10
    v_add_u32 v15, v14, v11
    v_mov_b32 v5, v15
    v_add_u32_dpp v5, v5, v5 row_shr:1 row_mask:0xf bank_mask:0xf
    v_add_u32_dpp v5, v5, v5 row_shr:2 row_mask:0xf bank_mask:0xf
    v_add_u32_dpp v5, v5, v5 row_shr:4 row_mask:0xf bank_mask:0xf
    v_add_u32_dpp v5, v5, v5 row_shr:8 row_mask:0xf bank_mask:0xf
    v_add_u32_dpp v5, v5, v5 row_bcast:15 row_mask:0xa bank_mask:0xf
    v_add_u32_dpp v5, v5, v5 row_bcast:31 row_mask:0xc bank_mask:0xf
    v_readlane_b32 s36, v5, 63
    v_mov_b32 v4, s36
    ds_write_b32 v6, v4
    v_mov_b32 v6, {TOT}
    s_cmp_gt_u32 s33, 0
    s_cselect_b32 s38, -1, 0
    s_cmp_gt_u32 s33, 1
    s_cselect_b32 s39, -1, 0
    s_cmp_gt_u32 s33, 2
    s_cselect_b32 s40, -1, 0
    v_sub_u32 v5, v5, v15
    s_waitcnt lgkmcnt(0)
    s_barrier
    ds_read_b128 v[128:131], v6
    s_lshl_b32 s41, s2, 13
    s_add_u32 s41, s41, {OFFT_OFF}
    v_and_b32 v128, s38, v128
    v_and_b32 v129, s39, v129
    v_and_b32 v130, s40, v130
    v_add3_u32 v5, v5, v128, v129
    v_add_u32 v132, v5, v130
    v_add_u32 v133, v132, v8
    v_add_u32 v134, v132, v13
    v_add_u32 v135, v132, v14
    ds_write_b128 v1, v[132:135]
    buffer_store_dwordx4 v[132:135], v1, s[28:31], s41 offen
    s_waitcnt lgkmcnt(0)
    s_barrier
    """)
    stamp(p, 2)
    for e in range(NE):
        p(f"ds_read_b32 v{BA+e}, v{BA+e}")
    for e in range(NE):
        p(f"v_add_lshl_u32 v{BA+e}, v{BA+e}, v{RK+e}, 2")
        p(f"ds_write_b32 v{BA+e}, v{DS+e} offset:{STG}")
    p(f"""
    s_mul_i32 s42, s2, {ENT_STRIDE}
    s_add_u32 s42, s42, {ENT_OFF}
    s_waitcnt lgkmcnt(0)
    s_barrier
    """)
    for r in range(NO):
        p(f"ds_read_b128 v[{SR+4*r}:{SR+4*r+3}], v1 offset:{STG+RS*r}")
    for r in range(NO):
        p(f"s_add_u32 s35, s42, {RS*r}")
        p(f"buffer_store_dwordx4 v[{SR+4*r}:{SR+4*r+3}], v1, s[28:31], s35 offen")
    stamp(p, 3)
    if STAMPS:
        p("s_waitcnt vmcnt(0)")
    stamp(p, 4)
    stamp_flush(p, 0, 5, nw=NWV)
    p("s_endpgm")


def gen_k1():
    h = Prog()
    h(f"""
    s_cmp_ge_u32 s2, {K1_NWG}
    s_cbranch_scc1 Lk1_exit
    s_cmp_ge_u32 s2, {G+NW}
    s_cbranch_scc1 Lk1_ln
    s_cmp_ge_u32 s2, {G}
    s_cbranch_scc1 Lk1_w
    """)
    a = Prog()
    k1_bin(a)
    b = Prog()
    k1_ln(b)
    c = Prog()
    k1_wprep(c)
    body = emit(h.ins) + emit(a.finish()) + "Lk1_w:\n" + emit(c.finish()) + "Lk1_ln:\n" + emit(b.finish()) + "Lk1_exit:\n  s_endpgm\n"
    return body
```

```python
from k2loop import *

MF32 = "v_mfma_f32_32x32x16_bf16"
POLL_LIMIT = 1 << 22


MAP = os.environ.get('MAP', '2')
if MAP == '5':
    MAPCODE = """s_mul_i32 s35, s2, 13108
    s_lshr_b32 s35, s35, 16
    s_mul_i32 s3, s35, 5
    s_sub_u32 s34, s2, s3"""
elif MAP == '1':
    MAPCODE = """s_and_b32 s3, s2, 7
    s_lshr_b32 s4, s2, 3
    s_mul_i32 s5, s3, 31
    s_add_u32 s5, s5, s4
    s_max_u32 s3, s3, 5
    s_sub_u32 s3, s3, 5
    s_sub_u32 s5, s5, s3
    s_mul_i32 s35, s5, 13108
    s_lshr_b32 s35, s35, 16
    s_mul_i32 s3, s35, 5
    s_sub_u32 s34, s5, s3"""
else:
    sh = {'2': (0, 0, 0, 1, 1), '3': (0, 0, 3, 3, 6), '2b': (0, 0, 0, 4, 4)}[MAP]
    tab = sum(v << (4 * i) for i, v in enumerate(sh))
    MAPCODE = f"""s_mul_i32 s3, s2, 1639
    s_lshr_b32 s3, s3, 16
    s_mul_i32 s4, s3, 40
    s_sub_u32 s4, s2, s4
    s_lshr_b32 s34, s4, 3
    s_lshl_b32 s5, s34, 2
    s_lshr_b32 s5, {tab}, s5
    s_add_u32 s5, s5, s4
    s_and_b32 s5, s5, 7
    s_lshl_b32 s35, s3, 3
    s_add_u32 s35, s35, s5
    s_cmp_ge_u32 s2, 240
    s_cselect_b32 s34, s4, s34
    s_cselect_b32 s35, 48, s35"""


def k2_setup(p):
    stamp(p, 0)
    p(f"""
    s_load_dwordx2 s[12:13], s[0:1], {A_WS}
    s_load_dwordx2 s[14:15], s[0:1], {A_DEG}
    s_load_dwordx2 s[74:75], s[0:1], {A_X}
    s_load_dwordx2 s[76:77], s[0:1], {A_OUT}
    v_and_b32 v{V_LANE}, 63, v0
    v_lshrrev_b32 v{V_T0}, 6, v0
    v_lshlrev_b32 v{V_L16}, 4, v{V_LANE}
    v_readfirstlane_b32 s33, v{V_T0}
    v_and_b32 v{V_I}, 15, v{V_LANE}
    v_lshrrev_b32 v{V_G}, 4, v{V_LANE}
    v_and_b32 v{V_T0}, 1, v{V_G}
    v_mul_u32_u24 v{V_T0}, 12, v{V_T0}
    v_xor_b32 v{V_T0}, v{V_T0}, v{V_I}
    v_lshlrev_b32 v{V_T1}, 4, v{V_G}
    v_lshl_add_u32 v{V_KS}, v{V_T0}, 8, v{V_T1}
    v_lshlrev_b32 v{V_T0}, 4, v{V_T0}
    v_lshl_add_u32 v{V_KL}, v{V_G}, 8, v{V_T0}
    {MAPCODE}
    s_lshl_b32 s37, s35, 4
    s_lshl_b32 s3, s33, 2
    s_mul_i32 s36, s33, 5
    s_add_u32 s36, s36, s34
    s_cmp_lt_u32 s36, 16
    s_cselect_b32 s4, 0, 0x10000
    s_add_u32 s36, s36, s37
    s_add_u32 s36, s36, s4
    s_add_u32 s37, s37, s3
    s_lshl_b32 s39, s33, 12
    s_add_u32 s39, s39, {HROW_OFF}
    s_mul_i32 s70, s34, {NSTAT}
    s_lshl_b32 s38, s37, 12
    s_add_u32 s38, s38, {QIMG_OFF}
    s_mov_b32 s45, 0
    s_waitcnt lgkmcnt(0)
    """)
    srd(p, 28, 12, WS_SIZE)
    dma_tiles(p, 0, 1)
    p(f"""
    v_lshlrev_b32 v{V_T0}, 2, v{V_I}
    s_lshl_b32 s46, s37, 6
    s_add_u32 s46, s46, {MZ_OFF}
    """)
    for j in range(4):
        for ks in range(4):
            p(f"buffer_load_dwordx4 {vr(Qf(j,ks),4,'a')}, v{V_L16}, s[28:31], s38 offen offset:{1024*ks}")
        if j < 3:
            p("s_add_u32 s38, s38, 4096")
        if j == 0:
            for jj in range(4):
                p(f"buffer_load_dword v{NM(jj)}, v{V_T0}, s[28:31], s46 offen offset:{64*jj}")
    srd(p, 24, 14, N * 2)
    p(f"""
    s_add_u32 s16, s12, {HROW_OFF - 3072}
    s_addc_u32 s17, s13, 0
    """)
    srd(p, 20, 16, 0x330000 + 3072)
    p(f"""
    v_lshrrev_b32 v{V_T0}, 2, v{V_LANE}
    v_bfe_u32 v{V_T1}, v{V_LANE}, 1, 1
    v_mul_u32_u24 v{V_T2}, 12, v{V_T1}
    v_xor_b32 v{V_T0}, v{V_T0}, v{V_T2}
    v_lshlrev_b32 v{V_T0}, 4, v{V_T0}
    v_lshl_add_u32 v{V_T0}, v{V_T1}, 8, v{V_T0}
    v_and_b32 v{V_T1}, 1, v{V_LANE}
    v_lshl_add_u32 v{V_VL}, v{V_T1}, 3, v{V_T0}
    s_mul_i32 s49, s33, {GW_STRIDE}
    s_add_u32 s49, s49, {GW_OFF}
    s_lshl_b32 s32, s33, 14
    s_add_u32 s32, s32, {STG_OFF}
    s_mov_b32 s55, 256
    s_mov_b32 s57, 0x40004000
    s_mov_b32 s58, 0x07060302
    s_mov_b32 s60, {ENT_OFF}
    s_lshr_b32 s56, s37, 2
    s_mul_i32 s56, s56, {BLKB}
    s_mul_i32 s46, s34, {PART_STRIDE}
    s_add_u32 s56, s56, s46
    s_add_u32 s56, s56, {PART_OFF}
    s_lshl_b32 s78, s35, 9
    s_add_u32 s78, s78, {FLG_OFF}
    s_lshl_b32 s73, s35, 8
    s_add_u32 s73, s73, {CNT_OFF}
    v_lshlrev_b32 v{V_LA}, 5, v{V_G}
    v_add_u32 v{V_LA}, s49, v{V_LA}
    """)


def kv_dma(p):
    p("s_mov_b32 m0, s41")
    for i in range(4):
        p(f"buffer_load_dwordx4 v{V_KS}, s[28:31], s40 offen offset:{64*i} lds")
        if i < 3:
            p("s_add_u32 m0, m0, 960")


def kv2_dma(p):
    p(f"""
    s_add_u32 s46, s70, 2
    s_lshl_b32 s46, s46, 14
    s_add_u32 s46, s46, s39
    s_lshl_b32 s47, s33, 12
    s_add_u32 m0, s47, 32768
    """)
    for i in range(4):
        p(f"buffer_load_dwordx4 v{V_KS}, s[28:31], s46 offen offset:{64*i} lds")
        if i < 3:
            p("s_add_u32 m0, m0, 960")


def dma_tiles(p, t0, t1):
    if t0 == 0:
        p(f"""
        s_lshl_b32 s40, s70, 14
        s_add_u32 s40, s40, s39
        s_lshl_b32 s41, s33, 12
        """)
    for t in range(t0, t1):
        kv_dma(p)
        p("s_add_u32 s40, s40, 16384")
        p("s_add_u32 s41, s41, 16384")


def gather_consts(p):
    t0, t1, t2 = V_T0, V_T1, V_T2
    p(f"""
    v_and_b32 v{t0}, 1, v{V_G}
    v_lshlrev_b32 v{t0}, 3, v{t0}
    v_xor_b32 v{t1}, v{t0}, v{V_I}
    v_lshlrev_b32 v{t1}, 4, v{t1}
    """)
    for k in range(4):
        p(f"v_xor_b32 v{LO+k}, {32*k}, v{t1}")
        p(f"v_add_u32 v{LO+k}, {3072-1024*k}, v{LO+k}")
    p(f"""
    v_bfe_u32 v{t1}, v{V_LANE}, 2, 2
    v_lshl_add_u32 v{t2}, v{t1}, 2, v{V_G}
    v_lshlrev_b32 v{t2}, 8, v{t2}
    v_lshlrev_b32 v{t1}, 1, v{t1}
    v_xor_b32 v{t0}, v{t0}, v{t1}
    v_bfe_u32 v{t1}, v{V_LANE}, 1, 1
    v_xor_b32 v{t0}, v{t0}, v{t1}
    v_lshl_add_u32 v{t2}, v{t0}, 4, v{t2}
    v_and_b32 v{t1}, 1, v{V_LANE}
    v_lshl_add_u32 v{t2}, v{t1}, 3, v{t2}
    v_add_u32 v{t2}, s54, v{t2}
    """)
    for dt in range(8):
        p(f"v_xor_b32 v{TA+dt}, {32*dt}, v{t2}")
    p(f"v_add_u32 v{V_ROT}, 18, v{V_I}")


def gather_plan(p):
    t0, t1, t2 = V_T0, V_T1, V_T2
    p(f"""
    s_cmp_lt_u32 s36, {NBIN}
    s_cselect_b32 s46, {(EPW + 3) // 4}, 0
    v_sub_u32 v{CN}, v{ST+1}, v{ST}
    v_lshrrev_b32 v{CN}, 2, v{CN}
    v_min_u32 v{CN}, s46, v{CN}
    v_mul_u32_u24 v{t0}, {ENT_STRIDE}, v{V_LANE}
    v_mov_b32 v{PS}, v{CN}
    v_lshl_add_u32 v{ST}, v{ST}, 2, v{t0}
    v_mov_b32 v{OT}, {NULLG_OFF - ENT_OFF}
    v_add_u32_dpp v{PS}, v{PS}, v{PS} row_shr:1 row_mask:0xf bank_mask:0xf
    v_mov_b32 v{OT+1}, v{OT}
    v_mov_b32 v{OT+2}, v{OT}
    v_add_u32_dpp v{PS}, v{PS}, v{PS} row_shr:2 row_mask:0xf bank_mask:0xf
    v_mov_b32 v{OT+3}, v{OT}
    v_add_u32 v{t2}, s49, v{V_L16}
    v_add_u32_dpp v{PS}, v{PS}, v{PS} row_shr:4 row_mask:0xf bank_mask:0xf
    ds_write_b128 v{t2}, v[{OT}:{OT+3}] offset:{IDX}
    v_cmp_lt_u32 vcc, {MAXQ}, v{CN}
    v_add_u32_dpp v{PS}, v{PS}, v{PS} row_shr:8 row_mask:0xf bank_mask:0xf
    v_add_u32 v{AD8+1}, 16, v{ST}
    v_add_u32 v{AD8+2}, 32, v{ST}
    v_add_u32_dpp v{PS}, v{PS}, v{PS} row_bcast:15 row_mask:0xa bank_mask:0xf
    v_add_u32 v{AD8+3}, 48, v{ST}
    v_add_u32 v{AD8+4}, 64, v{ST}
    v_add_u32_dpp v{PS}, v{PS}, v{PS} row_bcast:31 row_mask:0xc bank_mask:0xf
    v_add_u32 v{AD8+5}, 80, v{ST}
    v_mov_b32 v{t1}, {IDX_TRASH - IDX}
    v_readlane_b32 s59, v{PS}, 63
    v_sub_u32 v{PS}, v{PS}, v{CN}
    s_cmp_gt_u32 s59, {MAXTOT}
    s_cselect_b32 s46, 1, 0
    s_cmp_lg_u64 vcc, 0
    s_cselect_b32 s46, 1, s46
    s_cmp_eq_u32 s46, 0
    s_cselect_b32 s61, -1, 0
    s_cselect_b32 s59, s59, 0
    v_and_b32 v{t2}, s61, v{CN}
    v_lshlrev_b32 v{t0}, 2, v{PS}
    v_cmp_eq_u32 vcc, 0, v{t2}
    s_add_u32 s66, s59, 7
    s_lshr_b32 s66, s66, 3
    v_cndmask_b32 v{t0}, v{t0}, v{t1}, vcc
    v_add_u32 v{t0}, s49, v{t0}
    """)
    for q in range(MAXQ - 1, -1, -1):
        p(f"ds_write_b32 v{t0}, v{AD8+q if q else ST} offset:{IDX+4*q}")
    p(f"""
    s_lshl_b32 s46, s59, 2
    v_lshlrev_b32 v{t0}, 2, v{V_LANE}
    v_add_u32 v{t0}, s49, v{t0}
    v_add_u32 v{t2}, s46, v{t0}
    ds_write_b32 v{t2}, v{OT} offset:{IDX}
    s_mov_b32 m0, s49
    """)
    for k in range(4):
        p(f"ds_read_b32 v{AD8+k}, v{t0} offset:{IDX+256*k}")
    for k in range(4):
        p(f"buffer_load_dwordx4 v{AD8+k}, s[28:31], s60 offen lds")
        if k < 3:
            p("s_add_u32 m0, m0, 1024")
    for k in range(6):
        p(f"v_mov_b32 v{AD8+k}, v{AD8+7}")
    for k in range(4):
        p(f"v_mov_b32 v{OT+k}, 0")


def gather_arm(p, extra):
    p(f"""
    s_mov_b32 s63, 0
    s_lshl_b32 s64, s66, 7
    s_add_u32 s72, s66, 1
    s_add_u32 s62, s66, {1 + extra}
    s_cmp_eq_u32 s66, 0
    s_cselect_b32 s72, 0, s72
    s_cselect_b32 s62, 0, s62
    """)


def k2_maxpass(p):
    MX = P_B
    CI = NM1_B
    p(f"""
    s_lshl_b32 s41, s33, 12
    s_mov_b32 s46, 0
    s_mov_b32 s47, s68
    s_mov_b32 s48, 0xff800000
    v_mov_b32 v{V_KA}, v{V_KL}
    """)
    for j in range(4):
        p(f"v_mov_b32 v{MX+j}, s48")
    for k in range(16):
        p(f"v_mov_b32 v{CI+k}, 0")
    p(f"""
    Lk2_mx_loop:
    s_max_u32 s40, s46, 5
    s_lshl_b32 s40, s40, 2
    s_add_u32 s40, s40, {LOG_OFF - 20}
    v_mov_b32 v{V_T0}, s40
    ds_read_b32 v{V_T0}, v{V_T0}
    v_readfirstlane_b32 s69, v{V_T0}
    s_and_b32 s69, s69, 0xffff
    s_add_u32 s40, s70, s46
    s_cmp_lt_u32 s46, 5
    s_cselect_b32 s69, s40, s69
    s_lshl_b32 s40, s69, 14
    s_add_u32 s40, s40, s39
    """)
    kv_dma(p)
    p(f"""
    s_waitcnt vmcnt(0)
    s_barrier
    """)
    for s in range(4):
        for ks in range(4):
            p.extend([kread(s, ks)])
    p("s_waitcnt lgkmcnt(0)")
    p("s_barrier")
    for j in range(4):
        for s in range(4):
            d = vr(O_B + (j * 4 + s) * 4, 4)
            for ks in range(4):
                p(mf(d, vr(Kf(s, ks), 4, 'a'), vr(Qf(j, ks), 4, 'a'), vr(CI + 4 * s, 4) if ks == 0 else d))
    for j in range(4):
        for k in range(0, 16, 2):
            b = O_B + j * 16 + k
            p(f"v_max3_f32 v{MX+j}, v{MX+j}, v{b}, v{b+1}")
    p(f"""
    s_add_u32 s46, s46, 1
    s_cmp_lt_u32 s46, s47
    s_nop 7
    s_cbranch_scc1 Lk2_mx_loop
    """)
    for j in range(4):
        allreduce_g(p, MX + j, V_T0, 'v_max_f32')
        p(f"v_sub_f32 v{NM(j)}, 0, v{MX+j}")


def k2_prologue(p):
    p("s_branch Lk2_run1")
    p("Lk2_run:")
    dma_tiles(p, 0, 1)
    kv2_dma(p)
    p("Lk2_run1:")
    dma_tiles(p, 1, 2)
    p("s_add_u32 s40, s40, 16384")
    p("s_add_u32 s41, s41, 16384")
    p(f"""
    v_mov_b32 v{V_T3}, 0x7fff0000
    s_mov_b32 s54, s32
    s_add_u32 s65, s32, 4096
    s_mov_b32 s67, 0
    s_mov_b32 m0, s54
    v_mov_b32 v{OH}, 0
    """)
    for i in range(8):
        if i == 4:
            p("s_mov_b32 m0, s65")
            p("s_nop 0")
        p(f"buffer_load_dwordx4 v{V_T3}, s[20:23], 0 offen offset:{1024*(i&3)} lds")
    for r in range(1, 8):
        p(f"v_mov_b32 v{OH+r}, 0")
    z = vr(OH, 4)
    for b in range(O_B, P_B + 32, 16):
        p(f"{MF32} {vr(b,16)}, {z}, {z}, 0")
    for b in range(V_A, GA_A, 16):
        p(f"{MF32} {vr(b,16,'a')}, {z}, {z}, 0")
    gather_consts(p)
    for r in range(8):
        p(f"v_mov_b32 v{AD8+r}, v{V_T3}")
    p(f"""
    v_mov_b32 v{V_KA}, v{V_KL}
    s_mov_b32 s42, 0
    s_mov_b32 s43, 0
    s_mov_b32 s68, 0
    s_add_u32 s46, s70, 0x40004
    v_mov_b32 v{V_TN}, s46
    v_mov_b32 v{V_TK}, 0
    v_mov_b32 v{V_ONE}, 0
    v_mov_b32 v{V_AOFF}, v{V_T3}
    v_cmp_eq_u32 vcc, 0, v{V_LANE}
    v_mov_b32 v{V_T0}, {LOG_OFF}
    s_mov_b32 s44, 4
    v_cndmask_b32 v{V_LG}, v{V_T3}, v{V_T0}, vcc
    s_cmp_lg_u32 s45, 0
    s_cbranch_scc1 Lk2_second
    {MF32} a[{GA_A}:{GA_A+15}], {z}, {z}, 0
    {MF32} a[{GA_A+16}:{GA_A+31}], {z}, {z}, 0
    s_min_u32 s46, s36, 1000
    s_lshl_b32 s46, s46, 2
    s_add_u32 s46, s46, {OFFT_OFF}
    v_lshlrev_b32 v{V_T0}, 13, v{V_LANE}
    buffer_load_dwordx2 v[{ST}:{ST+1}], v{V_T0}, s[28:31], s46 offen
    s_lshl_b32 s46, s36, 5
    v_lshlrev_b32 v{V_T1}, 1, v{V_I}
    buffer_load_ushort v{DEG}, v{V_T1}, s[24:27], s46 offen
    v_cmp_eq_u32 vcc, 0, v0
    v_mov_b32 v{V_T0}, s73
    s_add_u32 s46, s70, 5
    v_cndmask_b32 v{V_AOFF}, v{V_T3}, v{V_T0}, vcc
    v_cndmask_b32 v{V_ONE}, 0, 1, vcc
    v_mov_b32 v{V_T0}, {5*NSTAT}
    v_mov_b32 v{V_T1}, s46
    v_cndmask_b32 v{V_T0}, v{V_T0}, v{V_T1}, vcc
    v_lshlrev_b32 v{V_T1}, 2, v0
    v_add_u32 v{V_T1}, {LOG_OFF}, v{V_T1}
    ds_write_b32 v{V_T1}, v{V_T0}
    s_mov_b32 s71, 1
    s_mov_b32 s66, 0
    s_waitcnt vmcnt(26)
    s_branch Lk2_go
    Lk2_second:
    v_lshlrev_b32 v{V_T1}, 2, v0
    v_add_u32 v{V_T1}, {LOG_OFF}, v{V_T1}
    ds_read_b32 v{V_T0}, v{V_T1}
    s_waitcnt lgkmcnt(0)
    v_and_b32 v{V_T0}, 0xffff, v{V_T0}
    ds_write_b32 v{V_T1}, v{V_T0}
    s_waitcnt vmcnt(0)
    Lk2_go:
    s_mov_b32 s47, 0x40000
    s_mov_b32 s48, 0x10000
    """)
    gather_arm(p, 0)
    p("""
    s_waitcnt lgkmcnt(0)
    s_barrier
    """)
    stamp(p, 1)
    for s in range(4):
        for ks in range(4):
            p.extend([kread(s, ks)])
    for j in range(4):
        for r in range(1, 4):
            p(f"v_mov_b32 v{NM(j)+r}, v{NM(j)}")
    p(f"""
    s_waitcnt lgkmcnt(4)
    """)
    stamp(p, 2)
    stamp(p, 9, True)


def side_loads(p):
    p(f"""
    s_lshr_b32 s46, s33, 1
    s_lshl_b32 s46, s46, 12
    s_and_b32 s3, s33, 1
    s_lshl_b32 s4, s3, 11
    s_add_u32 s4, s4, s46
    s_add_u32 m0, s4, {TAIL_OFF}
    s_lshl_b32 s3, s3, 7
    s_add_u32 s46, s46, s3
    s_add_u32 s46, s46, {HROW_OFF + NTILE * 16384}
    buffer_load_dwordx4 v{V_KS}, s[28:31], s46 offen lds
    s_add_u32 m0, m0, 960
    s_min_u32 s3, s36, 783
    buffer_load_dwordx4 v{V_KS}, s[28:31], s46 offen offset:64 lds
    s_mov_b32 m0, s49
    s_lshl_b32 s3, s3, 12
    s_add_u32 s3, s3, {QIMG_OFF}
    """)
    for i in range(4):
        p(f"buffer_load_dwordx4 v{V_L16}, s[28:31], s3 offen offset:{1024*i} lds")


def k2_glue(p):
    p(f"""
    Lk2_glue:
    s_cmp_le_u32 s71, 2
    s_cbranch_scc1 Lk2_glue12
    s_add_u32 s71, s71, 1
    s_add_u32 s67, s67, 1
    s_cmp_eq_u32 s67, 3
    s_cbranch_scc1 Lk2_glue_w3
    s_cmp_eq_u32 s67, 4
    s_cbranch_scc1 Lk2_glue_w4
    s_sub_u32 s46, s67, 1
    s_lshl_b32 s46, s46, 13
    s_add_u32 s54, s32, s46
    s_add_u32 s65, s54, 4096
    s_add_u32 s46, s54, {WIMG_OFF - (HROW_OFF - 3072) - STG_OFF}
    v_add_u32 v{AD8}, s46, v{V_L16}
    v_add_u32 v{AD8+4}, 4096, v{AD8}
    v_mov_b32 v{AD8+1}, v{AD8}
    v_mov_b64 v[{AD8+2}:{AD8+3}], v[{AD8}:{AD8+1}]
    v_mov_b32 v{AD8+5}, v{AD8+4}
    v_mov_b64 v[{AD8+6}:{AD8+7}], v[{AD8+4}:{AD8+5}]
    s_branch Lk2_glue_back
    Lk2_glue_w3:
    v_mov_b32 v{AD8}, 0x7fff0000
    v_mov_b32 v{AD8+1}, v{AD8}
    v_mov_b64 v[{AD8+2}:{AD8+3}], v[{AD8}:{AD8+1}]
    v_mov_b64 v[{AD8+4}:{AD8+5}], v[{AD8}:{AD8+1}]
    v_mov_b64 v[{AD8+6}:{AD8+7}], v[{AD8}:{AD8+1}]
    s_mov_b32 s54, 0x30000
    s_mov_b32 s65, 0x30000
    """)
    side_loads(p)
    p(f"""
    s_branch Lk2_glue_back
    Lk2_glue_w4:
    s_mov_b32 s71, 0
    s_branch Lk2_glue_back
    Lk2_glue12:
    s_cmp_eq_u32 s71, 1
    s_cbranch_scc1 Lk2_glue1
    s_add_u32 s71, s66, 3
    s_and_b32 s71, s71, s61
    s_barrier
    s_branch Lk2_glue_back
    Lk2_glue1:
    """)
    stamp(p, 13, True)
    kv2_dma(p)
    gather_plan(p)
    gather_arm(p, 1)
    p("""
    s_mov_b32 s71, 2
    s_mov_b32 s47, 0x40000
    s_waitcnt lgkmcnt(0)
    s_barrier
    """)
    stamp(p, 14, True)
    stamp(p, 15, True)
    p(f"""
    s_branch Lk2_glue_back
    Lk2_sync:
    v_add_u32 v{V_T0}, -4, v{V_LG}
    s_mov_b32 s46, 0
    Lk2_sync1:
    ds_read_b32 v{V_TN}, v{V_T0}
    s_add_u32 s46, s46, 1
    s_waitcnt lgkmcnt(0)
    v_readfirstlane_b32 s69, v{V_TN}
    s_cmp_gt_u32 s46, {1 << 22}
    s_cbranch_scc1 Lk2_sync_back
    s_cmp_lt_u32 s69, s47
    s_cbranch_scc1 Lk2_sync1
    s_branch Lk2_sync_back
    """)


def k2_tail_setup(p):
    p(f"""
    v_cmp_eq_u32 vcc, 0, v{V_G}
    v_mov_b32 v{NINF_B}, 0xff800000
    """)
    for k in range(16):
        p(f"v_cndmask_b32 v{NM1_B+k}, v{NINF_B}, v{NM_B+k}, vcc")
    p("s_nop 1")


def k2_slow_gather(p):
    t0, t1, t2 = V_T0, V_T1, V_T2
    B = OT
    p(f"""
    Lk2_g_rare:
    s_mov_b32 s59, 0
    s_mov_b32 s54, s32
    s_add_u32 s65, s32, 4096
    s_mov_b32 s67, 0
    """)
    for r in range(32):
        p(f"v_accvgpr_write_b32 a{GA_A+r}, 0")
    gather_consts(p)
    p(f"""
    Lk2_g_slow:
    s_waitcnt vmcnt(0) lgkmcnt(0)
    v_cmp_lt_u32 vcc, s59, v{CN}
    s_cbranch_vccz Lk2_g_back
    v_mov_b32 v{B}, 0xffff
    v_mov_b32 v{B+1}, 0xffff
    v_mov_b32 v{B+2}, 0xffff
    v_mov_b32 v{B+3}, 0xffff
    s_lshl_b32 s46, s59, 4
    s_add_u32 s46, s46, s60
    s_mov_b64 exec, vcc
    buffer_load_dwordx4 v[{B}:{B+3}], v{ST}, s[28:31], s46 offen
    s_mov_b64 exec, -1
    v_add_u32 v{t0}, s54, v{V_L16}
    ds_write_b128 v{t0}, v[{B}:{B+3}] offset:8192
    s_add_u32 s59, s59, 1
    s_mov_b32 s47, 8
    v_lshlrev_b32 v{t2}, 5, v{V_G}
    v_add_u32 v{t2}, s54, v{t2}
    s_waitcnt lgkmcnt(0)
    Lk2_g_loop:
    ds_read_b128 v[{E0}:{E0+3}], v{t2} offset:8192
    ds_read_b128 v[{E0+4}:{E0+7}], v{t2} offset:8208
    v_add_u32 v{t2}, 128, v{t2}
    s_mov_b32 m0, s54
    """)
    for i in range(8):
        if i == 4:
            p("s_mov_b32 m0, s65")
        p.extend([gmad8(i), gdma8(i)])
    for k in range(4):
        o = OH + k
        p(f"v_perm_b32 v{o}, v{E0+2*k+1}, v{E0+2*k}, s58")
        p(f"v_alignbit_b32 v{o}, v{o}, v{o}, v{V_ROT}")
        p(f"v_and_b32 v{o}, s57, v{o}")
    p("s_waitcnt vmcnt(0)")
    for dt in range(8):
        for u in range(2):
            p(f"ds_read_b64_tr_b16 {vr(GF_A+4*dt+2*u,2,'a')}, v{TA+dt} offset:{4096*u}")
    for dt in range(8):
        d = vr(GA_A + 4 * dt, 4, 'a')
        p(mf(d, vr(GF_A + 4 * dt, 4, 'a'), vr(OH, 4), d))
    p(f"""
    s_sub_u32 s47, s47, 1
    s_cmp_lg_u32 s47, 0
    s_cbranch_scc1 Lk2_g_loop
    s_branch Lk2_g_slow
    Lk2_g_back:
    s_nop 7
    s_branch Lk2_g_done
    """)


XR = 208
YA = 224
AGF = P_B + 16


def flag(j):
    return f"buffer_store_dword v{V_ROT}, v{V_LA}, s[28:31], s79 offen offset:{32*j}"


def tile_stores(j):
    gs = []
    for kk in range(4):
        o = O(j, 2 * kk)
        g = [I(f"v_cvt_pk_bf16_f32 v{o+h}, v{o+2*h}, v{o+2*h+1}") for h in range(4)]
        g.append(I(f"buffer_store_dwordx4 {vr(o,4)}, v{V_L16}, s[28:31], s{40+j} offen offset:{1024*kk}"))
        gs.append(g)
    o = O(j, 7)
    gs.append([I(f"v_sub_f32 v{o+2}, 0, v{NM(j)}"),
               I(f"buffer_store_dwordx2 {vr(o+2,2)}, v{V_T2}, s[28:31], s44 offen offset:{128*j}")])
    return gs


def k2_end(p, drain):
    p(f"""
    s_cmp_gt_i32 s62, 0
    s_cselect_b32 s46, 0, s61
    s_cmp_lg_u32 s46, -1
    s_cbranch_scc1 Lk2_g_rare
    Lk2_g_done:
    s_cmp_lg_u32 s67, 4
    s_cbranch_scc1 Lk2_w_rare
    Lk2_w_done:
    v_lshlrev_b32 v{V_T3}, 8, v{V_I}
    v_lshl_add_u32 v{V_T3}, v{V_G}, 4, v{V_T3}
    s_min_u32 s38, s36, 1000
    s_lshl_b32 s38, s38, 12
    s_mov_b32 s16, s74
    s_and_b32 s17, s75, 0xffff
    s_mov_b32 s18, {N*256}
    s_mov_b32 s19, 0x20000
    buffer_load_dwordx4 v[{XR}:{XR+3}], v{V_T3}, s[16:19], s38 offen
    buffer_load_dwordx4 v[{XR+4}:{XR+7}], v{V_T3}, s[16:19], s38 offen offset:64
    buffer_load_dwordx4 v[{XR+8}:{XR+11}], v{V_T3}, s[16:19], s38 offen offset:128
    buffer_load_dwordx4 v[{XR+12}:{XR+15}], v{V_T3}, s[16:19], s38 offen offset:192
    v_cmp_eq_u32 s[50:51], 3, v{V_G}
    v_lshlrev_b32 v{V_T0}, 3, v{V_I}
    v_mov_b32 v{V_T2}, 0x7fff0000
    s_mov_b32 s40, s56
    s_add_u32 s41, s56, 4096
    s_add_u32 s42, s56, 8192
    s_add_u32 s43, s56, 12288
    s_add_u32 s44, s56, 16384
    v_cndmask_b32 v{V_T2}, v{V_T2}, v{V_T0}, s[50:51]
    """)
    gs = tile_stores(0) + tile_stores(1) + tile_stores(2)
    flat = [x for g in gs for x in g]
    nm = 0
    for i in drain:
        p.extend([i])
        if i.kind == 'mfma':
            nm += 1
            for _ in range(3):
                if flat:
                    p.extend([flat.pop(0)])
    p.extend(flat)
    for g in tile_stores(3):
        p.extend(g)
    stamp(p, 10, True)
    stamp(p, 3)
    p(f"""
    s_mov_b32 s48, {hexf(2.0**100)}
    v_add_f32 v{V_LC}, v{O(0,7)+3}, v{O(1,7)+3}
    v_add_f32 v{V_KA}, v{O(2,7)+3}, v{O(3,7)+3}
    v_add_f32 v{V_KA}, v{V_LC}, v{V_KA}
    v_cmp_nlt_f32 vcc, v{V_KA}, s48
    s_lshl_b32 s47, s33, 2
    s_add_u32 s47, s47, {FLAG_OFF}
    s_and_b64 s[52:53], vcc, s[50:51]
    s_cselect_b32 s46, 1, 0
    v_mov_b32 v{V_LC}, s47
    v_mov_b32 v{V_KA}, s46
    ds_write_b32 v{V_LC}, v{V_KA}
    v_mov_b32 v{V_LC}, {FLAG_OFF}
    s_lshl_b32 s47, s33, 7
    s_lshl_b32 s48, s34, 2
    s_add_u32 s47, s47, s48
    s_add_u32 s79, s47, s78
    s_waitcnt lgkmcnt(0)
    s_barrier
    ds_read_b128 v[{S_B}:{S_B+3}], v{V_LC}
    v_lshlrev_b32 v{V_T1}, 26, v{V_LANE}
    v_or_b32 v{S_B}, v{S_B}, v{S_B+1}
    v_or3_b32 v{S_B}, v{S_B}, v{S_B+2}, v{S_B+3}
    v_readfirstlane_b32 s47, v{S_B}
    s_andn2_b32 s47, s47, s45
    s_cmp_lg_u32 s47, 0
    s_cbranch_scc1 Lk2_redo
    v_mov_b32 v{V_LA}, v{V_T1}
    v_mov_b32 v{V_ROT}, 1
    s_waitcnt vmcnt(15)
    {flag(0)}
    """)
    stamp(p, 4)
    p(f"""
    s_cmp_ge_u32 s36, {NBIN}
    s_cbranch_scc1 Lk2_nofinal
    """)
    return 1


def k2_nofinal(p, y):
    p(f"""
    Lk2_nofinal:
    s_waitcnt vmcnt(11)
    {flag(1)}
    s_waitcnt vmcnt(7)
    {flag(2)}
    s_waitcnt vmcnt(3)
    {flag(3)}
    {'s_branch Lk2_fin' if STAMPS else 's_endpgm'}
    Lk2_w_rare:
    s_sub_u32 s46, s32, {STG_OFF}
    s_add_u32 s46, s46, {WIMG_OFF}
    s_mov_b32 m0, s32
    s_mov_b32 s47, 0
    Lk2_w_loop:
    buffer_load_dwordx4 v{V_L16}, s[28:31], s46 offen lds
    s_add_u32 m0, m0, 1024
    s_add_u32 s46, s46, 1024
    s_add_u32 s47, s47, 1
    s_cmp_lt_u32 s47, 16
    s_cbranch_scc1 Lk2_w_loop
    """)
    side_loads(p)
    p("""
    s_waitcnt vmcnt(0)
    s_branch Lk2_w_done
    """)


def k2_final(p, y):
    STT = 192
    PT = O_B
    O6 = 96
    OF = 128
    WF = 144
    CO = 144
    L = 156
    QT = 128
    KT = 144
    VT = 224
    P2 = lambda r: f"v[{r}:{r+1}]"
    p(f"""
    v_add_u32 v{V_T1}, {STG_OFF}, v{V_L16}
    v_lshlrev_b32 v{V_KA}, 16, v{DEG}
    v_mul_f32 v{V_KA}, 0.5, v{V_KA}
    v_add_u32 v{V_KL}, {TAIL_OFF}, v{V_KL}
    v_add_u32 v{V_VL}, {TAIL_OFF}, v{V_VL}
    v_add_u32 v{V_LC}, s49, v{V_L16}
    s_mov_b32 s48, 0xffff0000
    s_lshr_b32 s46, s36, 2
    s_mul_i32 s46, s46, {BLKB}
    s_add_u32 s46, s46, {PART_OFF}
    s_and_b32 s47, s36, 3
    s_lshl_b32 s59, s47, 12
    s_add_u32 s59, s59, s46
    s_lshl_b32 s60, s47, 7
    s_add_u32 s60, s60, s46
    s_add_u32 s60, s60, 16384
    """)
    for ks in range(4):
        p(f"ds_read_b128 {vr(QT+4*ks,4,'a')}, v{V_LC} offset:{1024*ks}")
    for k in range(16):
        t = P_B + 8 + 2 * (k & 3)
        p(f"v_accvgpr_read_b32 v{t}, a{GA_A+2*k}")
        p(f"v_accvgpr_read_b32 v{t+1}, a{GA_A+2*k+1}")
        p(f"v_mul_f32 v{t}, v{t}, v{V_KA}")
        p(f"v_mul_f32 v{t+1}, v{t+1}, v{V_KA}")
        p(f"v_cvt_pk_bf16_f32 v{AGF+k}, v{t}, v{t+1}")
    p("s_waitcnt vmcnt(11)")
    p(flag(1))
    stamp(p, 5)
    for u in range(2):
        for ks in range(4):
            p(f"ds_read_b128 {vr(KT+(u*4+ks)*4,4,'a')}, v{V_KL} offset:{4096*u+1024*ks}")
    for dt in range(8):
        for u in range(2):
            p(f"ds_read_b64_tr_b16 {vr(VT+4*dt+2*u,2,'a')}, v{V_VL} offset:{4096*u+512*dt}")
    SS = STT
    for u in range(2):
        d = vr(SS + 4 * u, 4)
        for ks in range(4):
            p(mf(d, vr(KT + (u * 4 + ks) * 4, 4, 'a'), vr(QT + 4 * ks, 4, 'a'), '0' if ks == 0 else d))
    for k in range(16):
        p(f"v_lshlrev_b32 v{YA+2*k}, 16, v{XR+k}")
        p(f"v_and_b32 v{YA+2*k+1}, s48, v{XR+k}")
    p("s_waitcnt vmcnt(7)")
    p(flag(2))
    M6 = STT + 10
    p(f"""
    v_cmp_eq_u32 vcc, 0, v{V_G}
    v_mov_b32 v{V_KA}, 0xff800000
    """)
    for r in range(4):
        p(f"v_cndmask_b32 v{SS+4+r}, v{V_KA}, v{SS+4+r}, vcc")
    p(f"""
    v_max3_f32 v{M6}, v{SS}, v{SS+1}, v{SS+2}
    v_max3_f32 v{M6}, v{M6}, v{SS+3}, v{SS+4}
    v_max3_f32 v{M6}, v{M6}, v{SS+5}, v{SS+6}
    v_max_f32 v{M6}, v{M6}, v{SS+7}
    """)
    allreduce_g(p, M6, V_KA, 'v_max_f32')
    for r in range(8):
        p(f"v_sub_f32 v{SS+r}, v{SS+r}, v{M6}")
    for r in range(8):
        p(f"v_exp_f32 v{SS+r}, v{SS+r}")
    for r in range(4):
        p(f"v_cvt_pk_bf16_f32 v{OF+r}, v{SS+2*r}, v{SS+2*r+1}")
    for dt in range(8):
        p(mf(vr(O6 + 4 * dt, 4), vr(VT + 4 * dt, 4, 'a'), vr(OF, 4), '0'))
    p("s_waitcnt vmcnt(3)")
    p(flag(3))
    for ft in range(8):
        for kk in range(4):
            p(f"ds_read_b128 {vr((ft*4+kk)*4,4,'a')}, v{V_T1} offset:{32768+4096*ft+1024*kk}")

    def rd(ft, buf):
        b = WF + 16 * buf
        for kk in range(4):
            p(f"ds_read_b128 v[{b+4*kk}:{b+4*kk+3}], v{V_T1} offset:{4096*ft+1024*kk}")
    rd(0, 0)
    bcast_g3(p, O6 + 31, M6 + 1, V_KA)
    p(f"""
    v_min_u32 v{V_LC}, 4, v{V_LANE}
    v_lshlrev_b32 v{V_LC}, 2, v{V_LC}
    s_and_b32 s46, s36, 15
    s_lshl_b32 s46, s46, 5
    s_add_u32 s46, s46, s78
    s_mov_b32 s47, 0
    buffer_load_dword v{V_T2}, v{V_LC}, s[28:31], s46 offen sc1
    """)
    for ft in range(8):
        if ft < 7:
            rd(ft + 1, (ft + 1) & 1)
        b = WF + 16 * (ft & 1)
        d = vr(YA + 4 * ft, 4)
        for kk in range(4):
            p(mf(d, vr(b + 4 * kk, 4), vr(AGF + 4 * kk, 4), d))
    srd(p, 20, 76, N * 256)
    for s in range(1, 5):
        p(f"s_add_u32 s{40+s}, s59, {PART_STRIDE*s}")
    p(f"""
    s_branch Lk2_poll1
    Lk2_poll:
    buffer_load_dword v{V_T2}, v{V_LC}, s[28:31], s46 offen sc1
    s_add_u32 s47, s47, 1
    Lk2_poll1:
    s_waitcnt vmcnt(0)
    v_cmp_ne_u32 vcc, 1, v{V_T2}
    s_cmp_gt_u32 s47, {POLL_LIMIT}
    s_cbranch_scc1 Lk2_fetch
    s_cbranch_vccnz Lk2_poll
    Lk2_fetch:
    """)
    stamp(p, 6)
    p("s_mov_b32 s46, s60")
    for s in range(5):
        p(f"buffer_load_dwordx2 v[{STT+2*s}:{STT+2*s+1}], v{V_T0}, s[28:31], s46 offen sc1")
        if s < 4:
            p(f"s_add_u32 s46, s46, {PART_STRIDE}")
    for kk in range(4):
        for s in range(5):
            b = PT + 16 * s + 4 * kk
            p(f"buffer_load_dwordx4 v[{b}:{b+3}], v{V_L16}, s[28:31], s{59 if s == 0 else 40+s} offen offset:{1024*kk} sc1")
    tiny = hexf(2.0 ** -120)
    R6 = range(6)
    for s in range(5):
        p(f"v_max_f32 v{STT+2*s+1}, {tiny}, v{STT+2*s+1}")
    for s in R6:
        p(f"v_log_f32 v{L+s}, v{STT+2*s+1}")
    for s in R6:
        p(f"v_add_f32 v{L+s}, v{L+s}, v{STT+2*s}")
    T = V_T2
    p(f"""
    v_max3_f32 v{T}, v{L}, v{L+1}, v{L+2}
    v_max3_f32 v{T}, v{T}, v{L+3}, v{L+4}
    v_max_f32 v{T}, v{T}, v{L+5}
    """)
    for s in R6:
        p(f"v_sub_f32 v{L+s}, v{L+s}, v{T}")
    for s in R6:
        p(f"v_exp_f32 v{L+s}, v{L+s}")
    for s in R6:
        p(f"v_rcp_f32 v{STT+2*s}, v{STT+2*s+1}")
    p(f"""
    v_add_f32 v{T}, v{L}, v{L+1}
    v_add_f32 v{V_KA}, v{L+2}, v{L+3}
    v_add_f32 v{T}, v{T}, v{L+4}
    v_add_f32 v{V_KA}, v{V_KA}, v{L+5}
    v_add_f32 v{T}, v{T}, v{V_KA}
    v_rcp_f32 v{T}, v{T}
    """)
    for s in R6:
        p(f"v_mul_f32 v{L+s}, v{L+s}, v{T}")
    for s in R6:
        p(f"v_mul_f32 v{CO+2*s}, v{L+s}, v{STT+2*s}")
    for k in range(16):
        p(f"v_pk_mul_f32 {P2(O6+2*k)}, {P2(O6+2*k)}, {P2(CO+10)} op_sel_hi:[1,0]")
    pend = []
    for kk in range(4):
        oa = O6 + 8 * kk
        n = 0
        for s in range(5):
            for q in range(4):
                r = PT + 16 * s + 4 * kk + q
                t = STT + 2 * (n & 3)
                p(f"v_lshlrev_b32 v{t}, 16, v{r}")
                p(f"v_and_b32 v{t+1}, s48, v{r}")
                p(f"v_pk_fma_f32 {P2(oa+2*q)}, {P2(t)}, {P2(CO+2*s)}, {P2(oa+2*q)} op_sel_hi:[1,0,1]")
                n += 1
                if pend and n % 2 == 0:
                    p(pend.pop(0))
        for x in pend:
            p(x)
        for q in range(4):
            p(f"v_cvt_pk_bf16_f32 v{OF+4*kk+q}, v{oa+2*q}, v{oa+2*q+1}")
        pend = [mf(vr(YA + 4 * ft, 4), vr((ft * 4 + kk) * 4, 4, 'a'), vr(OF + 4 * kk, 4), vr(YA + 4 * ft, 4)) for ft in range(8)]
    for x in pend:
        p(x)
    for k in range(16):
        p(f"v_cvt_pk_bf16_f32 v{PT+k}, v{YA+2*k}, v{YA+2*k+1}")
        if k % 4 == 3:
            kk = k // 4
            p(f"buffer_store_dwordx4 v[{PT+4*kk}:{PT+4*kk+3}], v{V_T3}, s[20:23], s38 offen offset:{64*kk}")
    if STAMPS:
        p("s_branch Lk2_fin2")
        p("Lk2_fin:")
        p("s_mov_b32 s85, s84")
        p("s_mov_b32 s86, s84")
        p("Lk2_fin2:")
    stamp(p, 7)
    if STAMPS:
        p("s_waitcnt vmcnt(0)")
    stamp(p, 8)
    if STAMPS:
        p("s_mov_b32 s92, s68")
    stamp_flush(p, 1, 16)
    p("s_endpgm")


def gen_k2():
    mid, tail, drain = gen_loop_variants()
    s = f"""  s_cmp_ge_u32 s2, {K2_NWG}
  s_cbranch_scc1 Lk2_exit
"""
    a = Prog()
    k2_setup(a)
    k2_prologue(a)
    s += emit(a.finish())
    s += ".p2align 6\nLk2_loop:\n" + emit(mid) + "  s_cbranch_scc1 Lk2_loop\n"
    c = Prog()
    stamp(c, 11, True)
    c("s_waitcnt lgkmcnt(0)")
    y = k2_end(c, [x for x in drain if x.kind != 'nop'])
    k2_final(c, y)
    cc = auto_wait(c.ins)
    cc, _ = pad_hazards(cc, pre=mid[-30:])
    s += emit(cc)
    g = Prog()
    k2_glue(g)
    s += emit(g.finish())
    e = Prog()
    k2_nofinal(e, y)
    s += emit(e.finish())
    d = Prog()
    d("Lk2_redo:")
    d("s_mov_b32 s45, 1")
    d("s_mov_b32 s66, 0")
    d("s_mov_b32 s61, -1")
    d("s_mov_b32 s71, 0")
    d("s_waitcnt vmcnt(0) lgkmcnt(0)")
    d("s_barrier")
    k2_maxpass(d)
    d("s_branch Lk2_run")
    s += emit(d.finish())
    e = Prog()
    k2_slow_gather(e)
    s += emit(e.finish())
    s += "Lk2_exit:\n  s_endpgm\n"
    return s
```

```python
from common import *

K2_ATT = 245
K2_NWG = 245
NFULL = 39
LAG = 5
MAPB = bool(int(os.environ.get('MAPB', '0')))
RING = 65536
STG_OFF = 65536
GW_OFF = 131072
GW_STRIDE = 5632
IDX = 4096
IDX_TRASH = IDX + 4 * 330
MAXQ = 6
MAXTOT = 240
FLAG_OFF = GW_OFF + 4 * GW_STRIDE
LOG_OFF = FLAG_OFF + 64
TAIL_OFF = LOG_OFF + 1024
K2_LDS = TAIL_OFF + 8192
NSTAT = 6
NTILE = 195

V_LANE, V_G, V_I, V_L16 = 1, 2, 3, 4
V_KL, V_VL, V_KA, V_VA = 5, 6, 7, 8
V_T0, V_T1, V_T2, V_T3 = 9, 10, 11, 12
V_LA, V_LC, V_ROT = 13, 14, 15
O_B = 16
S_B = 144
P_B = 160
NM_B = 192
NM1_B = 208
NINF_B = 224
E0 = 208
LO = 216
TA = 220
OH = 228
OT = 232
AD = 236
ST, CN, PS, DEG = 238, 239, 240, 241
V_KS = 242
OH2 = 244
V_TK, V_ONE, V_AOFF, V_LG, V_TN = 244, 245, 246, 247, 236
AD8 = 248
Q_A = 0
K_A = 64
V_A = 128
GA_A = 192
GF_A = 224


def O(j, dt): return O_B + (j * 8 + dt) * 4
def Sr(s): return S_B + 4 * s
def Pr(j, k2): return P_B + j * 8 + k2 * 4
def NM(j): return NM_B + 4 * j
def Qf(j, ks): return Q_A + (j * 4 + ks) * 4
def Kf(s, ks): return K_A + (s * 4 + ks) * 4
def Vf(dt, k2): return V_A + (dt * 2 + k2) * 4


def mf(d, a, b, c):
    return f"v_mfma_f32_16x16x32_bf16 {d}, {a}, {b}, {c}"


def kread(s, ks, areg=V_KA):
    return I(f"ds_read_b128 {vr(Kf(s,ks),4,'a')}, v{areg} offset:{4096*s+1024*ks}", 'kread')


def vread(dt, k2, u):
    return I(f"ds_read_b64_tr_b16 {vr(Vf(dt,k2)+2*u,2,'a')}, v{V_VA} offset:{4096*(2*k2+u)+512*dt}", 'vread' if k2 == 0 else 'vread_hi')


def build_iter(variant):
    NG = 128
    mf_l = [None] * NG
    fixed = [[] for _ in range(NG)]
    units = [2] * NG
    for p in range(16):
        j, s = divmod(p, 4)
        for ks in range(4):
            if ks == 0:
                c = vr(NM(j), 4)
                if variant == 'tail':
                    c = [vr(NM(j), 4), vr(NM1_B + 4 * j, 4), vr(NM(j), 4), vr(NM(j), 4)][s]
            else:
                c = vr(Sr(s), 4)
            mf_l[8 * p + ks] = I(mf(vr(Sr(s), 4), vr(Kf(s, ks), 4, 'a'), vr(Qf(j, ks), 4, 'a'), c), 'qk' if s < 2 else 'qk_hi')
        pp = (p - LAG) % 16
        jp, a = divmod(pp, 4)
        prev = p < LAG
        n = 0
        for dt in (2 * a, 2 * a + 1):
            for k2 in (0, 1):
                mf_l[8 * p + 4 + n] = I(mf(vr(O(jp, dt), 4), vr(Vf(dt, k2), 4, 'a'), vr(Pr(jp, k2), 4), vr(O(jp, dt), 4)),
                                        'pv_prev' if prev else ('pv' if k2 == 0 else 'pv_hi'))
                n += 1
        q = (p - 1) % 16
        jq, sq = divmod(q, 4)
        tg = 'sm_prev' if p == 0 else ('sm' if sq < 2 else 'sm_hi')
        for r in range(4):
            fixed[8 * p + 2 * r].append(I(f"v_exp_f32 v{Sr(sq)+r}, v{Sr(sq)+r}", tg))
            units[8 * p + 2 * r] -= 2
        pd = Pr(jq, sq >> 1) + 2 * (sq & 1)
        fixed[8 * p + 3].append(I(f"v_cvt_pk_bf16_f32 v{pd}, v{Sr(sq)}, v{Sr(sq)+1}", tg))
        units[8 * p + 3] -= 1
        fixed[8 * p + 7].append(I(f"v_cvt_pk_bf16_f32 v{pd+1}, v{Sr(sq)+2}, v{Sr(sq)+3}", tg))
        units[8 * p + 7] -= 1
    LATM = 9
    BAR = 95
    placed = [[] for _ in range(NG)]

    def sched(mov, start):
        pend = sorted(mov, key=lambda m: (m[1], m[0]))
        for ga in range(start, start + NG):
            g = ga % NG
            while units[g] > 0:
                cand = [m for m in pend if m[0] <= ga and m[2] <= units[g]]
                if not cand:
                    break
                m = cand[0]
                assert ga <= m[1], ('deadline miss', ga, m)
                pend.remove(m)
                placed[g].append(m[3])
                units[g] -= m[2]
        assert not pend, pend
    units[BLK] = 0
    mov = []
    for i, g in enumerate(KVPOS):
        mov.append((g, g, 1, I(f"buffer_load_dwordx4 v{V_KS}, s[28:31], s40 offen offset:{64*i} lds", 'dma')))
    mov.append((95, 95, 1, I(f"buffer_atomic_add v{V_TK}, v{V_AOFF}, s[28:31], 0 offen {ATOMFLAGS}", 'tk')))
    for i, g in enumerate(GPOS):
        mov.append((g, g, 1, gdma8(i)))
    sched(mov, 0)
    mov = [(1, 11, 1, I(f"v_add_u32 v{V_VA}, s43, v{V_VL}", 'va'))]
    for a in range(4):
        n = 0
        for dt in (2 * a, 2 * a + 1):
            for k2 in (0, 1):
                last = 8 * ((12 + LAG + a) - 16) + 4 + n
                nxt = 8 * (LAG + a) + 4 + n
                for u in range(2):
                    mov.append((last, nxt - LATM, 1, vread(dt, k2, u)))
                n += 1
    for s in range(4):
        for ks in range(4):
            mov.append((8 * (12 + s) + ks, 127, 1, kread(s, ks)))
    sched(mov, 0)
    mov = []
    mov.append((128 + 4, 128 + 8, 1, I(f"v_add_u32 v{V_LC}, s63, v{V_LA}", 'g')))
    mov.append((57, 60, 1, I(f"ds_read_b128 v[{E0}:{E0+3}], v{V_LC}", 'g')))
    mov.append((57, 60, 1, I(f"ds_read_b128 v[{E0+4}:{E0+7}], v{V_LC} offset:16", 'g')))
    k = 0
    for u in range(2):
        for dt in range(8):
            mov.append((58 if u == 0 else 69, 64 + k, 1, I(f"ds_read_b64_tr_b16 {vr(GF_A+4*dt+2*u,2,'a')}, v{TA+dt} offset:{4096*u}", 'g')))
            k += 1
    tk = I(f"ds_add_u32 v{V_LG}, v{V_TK}", 'tk')
    mov.append((80, 81, 1, I(f"v_or_b32 v{V_TK}, s48, v{V_TK}", 'tk')))
    mov.append((82, 83, 1, tk))
    mov.append((106, 112, 1, I(f"ds_read_b32 v{V_TN}, v{V_LG}", 'tk')))
    mov.append((113, 127, 1, I(f"v_add_u32 v{V_LG}, 4, v{V_LG}", 'tk')))
    mov.append((128 + 1, 128 + 1, 1, I(f"v_readfirstlane_b32 s69, v{V_TN}", 'tk')))
    mov.append((80, 95, 1, I(f"v_add_u32 v{V_KA}, s42, v{V_KL}", 'ka')))
    for k in range(4):
        mov.append((87, 150 + k, 1, I(f"v_and_b32 v{OH+k}, s57, v{OT+k}", 'g')))
    sched(mov, 54)
    needs = {84: set(('v', E0 + k) for k in range(8)) | set(('a', GF_A + k) for k in range(32)),
             127: {('v', V_TN)}}
    scal = [[] for _ in range(NG)]
    sops = [
        (0, 0, I("s_mov_b32 m0, s41", 'dma')),
        (3, 3, I("s_cmp_lt_u32 s69, s47", 'tk')),
        (4, 4, I("s_cbranch_scc1 Lk2_sync", 'tk')),
        (4, 4, I("Lk2_sync_back:", 'tk')),
        (6, 6, I("s_add_u32 m0, m0, 960", 'dma')),
        (8, 8, I("s_add_u32 m0, m0, 960", 'dma')),
        (10, 10, I("s_add_u32 m0, m0, 960", 'dma')),
        (9, 9, I("s_sub_u32 s69, s69, s47", 'tk')),
        (11, 12, I("s_cmp_lt_u32 s68, 200", 'tk')),
        (13, 13, I("s_cselect_b32 s69, s69, 0xff", 'tk')),
        (14, 15, I("s_lshl_b32 s40, s69, 14", 'dma')),
        (16, 17, I("s_add_u32 s40, s40, s39", 'dma')),
        (31, 31, I("s_waitcnt vmcnt(21)", 'bar')),
        (28, 30, I(f"s_cmp_lt_u32 s69, {NTILE}", 'tk')),
        (32, 33, I("s_addc_u32 s44, s44, 0", 'tk')),
        (40, 42, I("s_add_u32 s68, s68, 1", 'tk')),
        (18, 21, I("s_add_u32 s41, s41, 16384", 'dma')),
        (24, 27, I("s_and_b32 s41, s41, 0xffff", 'dma')),
        (50, 53, I("s_add_u32 s42, s42, 16384", 'ka')),
        (54, 56, I("s_and_b32 s42, s42, 0xffff", 'ka')),
        (57, 57, I("s_waitcnt vmcnt(8)", 'bar')),
        (68, 68, I("s_waitcnt vmcnt(4)", 'bar')),
        (58, 61, I("s_add_u32 s63, s63, 128", 'g')),
        (62, 64, I("s_min_u32 s63, s63, s64", 'g')),
        (65, 67, I("s_cmp_eq_u32 s71, s68", 'g')),
        (69, 69, I("s_cbranch_scc1 Lk2_glue", 'g')),
        (69, 69, I("Lk2_glue_back:", 'g')),
        (71, 76, I("s_mov_b32 m0, s54", 'g')),
        (77, 79, I("s_sub_u32 s62, s62, 1", 'g')),
        (80, 83, I("s_cmp_lt_u32 s62, s72", 'g')),
        (98, 101, I("s_mov_b32 s43, s42", 'va')),
        (GPOS[3] + 1, GPOS[4] - 1, I("s_mov_b32 m0, s65", 'g')),
        (119, 121, I("s_sub_u32 s44, s44, 1", 'loop')),
        (122, 126, I("s_cmp_lg_u32 s44, 0", 'loop')),
    ]
    for lo, hi, ins in sops:
        g = next((g for g in range(lo, hi + 1) if g not in WAITGAPS and not scal[g]), lo)
        scal[g].append(ins)
    gaps = []
    for g in range(NG):
        vec = [x for x in placed[g] if x.kind != 'valu'] + [x for x in placed[g] if x.kind == 'valu'] + fixed[g]
        gaps.append([mf_l[g], scal[g], vec])
    if variant == 'drain':
        keep = lambda i: i.tag in ('pv_prev', 'sm_prev')
        needs = {}
    elif variant == 'tail':
        keep = lambda i: i.tag in ('qk', 'pv', 'pv_prev', 'sm', 'sm_prev', 'vread', 'va')
        needs = {}
    else:
        DROP = os.environ.get('DROP', '').split(',')

        def keep(i):
            if 'gdma' in DROP and i.tag == 'g' and i.kind == 'vmem':
                return False
            if 'kvdma' in DROP and i.tag == 'dma' and i.kind == 'vmem':
                return False
            if 'gds' in DROP and i.tag == 'g' and i.kind == 'ds':
                return False
            if 'vmwait' in DROP and i.tag == 'bar' and i.kind == 'waitcnt':
                return False
            if 'barrier' in DROP and i.kind == 'barrier':
                return False
            return True
    out = []
    for m, sc, ve in gaps:
        out.append([m if keep(m) else None, [x for x in sc if keep(x)], [x for x in ve if keep(x)]])
    if variant in ('mid', 'midskip'):
        out[BLK][2] = gblock(variant == 'mid')
    if variant == 'tail':
        ex = [I(f"v_mov_b32 v{Pr(j,1)+r}, 0") for j in (2, 3) for r in range(4)] + \
             [I(f"v_mov_b32 v{Sr(3)+r}, v{NINF_B}") for r in range(4)]
        for n, x in enumerate(ex):
            out[48 + 4 * n][2].append(x)
    return out, needs


BLK = 85
ATOMFLAGS = os.environ.get('ATOMFLAGS', 'sc0')


def gmad(i):
    return I(f"v_mad_u32_u16 v{AD+(i&1)}, v{E0+i}, s55, v{LO+(i&3)}", 'g')


def gdma(i):
    return I(f"buffer_load_dwordx4 v{AD+(i&1)}, s[20:23], 0 offen offset:{1024*(i&3)} lds", 'g')


KVPOS = (5, 7, 9, 11)
GPOS = (87, 93, 99, 103, 109, 115, 119, 125)


def gmad8(i):
    return I(f"v_mad_u32_u16 v{AD8+i}, v{E0+i}, s55, v{LO+(i&3)}", 'g')


def gdma8(i):
    return I(f"buffer_load_dwordx4 v{AD8+i}, s[20:23], 0 offen offset:{1024*(i&3)} lds", 'g')


def gblock(on):
    r = [I(f"v_mov_b32 v{V_TK}, v{V_ONE}", 'tk'), I("s_cbranch_scc0 Lk2_gskip", 'g')]
    if on:
        gm = lambda dt: I(mf(vr(GA_A + 4 * dt, 4, 'a'), vr(GF_A + 4 * dt, 4, 'a'), vr(OH, 4), vr(GA_A + 4 * dt, 4, 'a')), 'gm')
        pm = lambda k: I(f"v_perm_b32 v{OT+k}, v{E0+2*k+1}, v{E0+2*k}, s58", 'g')
        al = lambda k: I(f"v_alignbit_b32 v{OT+k}, v{OT+k}, v{OT+k}, v{V_ROT}", 'g')
        r += [gm(0), gmad8(0), gmad8(1), gm(1), gmad8(2), gmad8(3), gm(2), gmad8(4), gmad8(5), gm(3), gmad8(6), gmad8(7),
              gm(4), pm(0), pm(1), gm(5), pm(2), pm(3), gm(6), al(0), al(1), gm(7), al(2), al(3)]
    r += [I("Lk2_gskip:")]
    return r


WAITGAPS = set()


def place_waits(gaps, needs, entry, nextm, AGE=7):
    issued = list(entry)
    done = 0
    flat = []
    n = len(gaps)
    wg = set()

    def need_for(t):
        q = -1
        for k in range(done, len(issued)):
            if issued[k][0] & t:
                q = k
        return q
    touch = lambda i: set(i.rd) | set(i.wr)
    for g in range(n):
        m, sc, ve = gaps[g]
        if m is not None:
            assert need_for(touch(m)) < 0, ('late ds', g, m)
            flat.append(m)
        nx = gaps[g + 1][0] if g + 1 < n else nextm
        t = set(needs.get(g, set()))
        if nx is not None:
            t |= touch(nx)
        q = need_for(t)
        if q >= 0:
            for k in range(q, len(issued)):
                if issued[k][1] <= g - AGE:
                    q = k
            N = min(15, len(issued) - 1 - q)
            flat.append(I(f"s_waitcnt lgkmcnt({N})", 'w'))
            wg.add(g)
            done = len(issued) - N
        flat.extend(sc)
        for x in ve:
            if x.kind not in ('label', 'dir'):
                assert need_for(touch(x)) < 0, ('late ds', g, x)
            if x.kind == 'ds':
                issued.append((set(x.wr), g))
            flat.append(x)
    return flat, [(r, g - n) for r, g in issued[done:]], wg


def iter_code(variant, entry, pre):
    gaps, needs = build_iter(variant)
    nextm = None if variant in ('drain', 'tail') else gaps[0][0]
    flat, ex, wg = place_waits(gaps, needs, entry, nextm)
    fixed, problems = pad_hazards(flat, fix=True, pre=pre)
    return fixed, problems, ex, wg


def gen_loop_variants():
    WAITGAPS.clear()
    _, _, ex, _ = iter_code('mid', [], [])
    _, _, ex2, wg = iter_code('mid', ex, [])
    assert ex == ex2
    WAITGAPS.update(wg)
    mid0, _, _, _ = iter_code('mid', ex, [])
    mid, prob, _, _ = iter_code('mid', ex, mid0[-30:])
    assert not prob, prob
    _, prob, _, _ = iter_code('midskip', ex, mid0[-30:])
    assert not prob, prob
    tail, _, ex3, _ = iter_code('tail', ex, mid[-30:])
    drain, _, _, _ = iter_code('drain', ex, mid[-30:])
    drain2, _, _, _ = iter_code('drain', ex3, tail[-30:])
    assert [x.text for x in drain] == [x.text for x in drain2]
    return mid, tail, drain
```

```python
from common import *

def gen_diag(specs, back, spin=None):
    p = Prog()
    p(f"""
    s_load_dwordx2 s[12:13], s[0:1], {A_WS}
    s_load_dwordx2 s[14:15], s[0:1], {A_DBG}
    v_lshlrev_b32 v1, 6, v0
    s_waitcnt lgkmcnt(0)
    s_sub_u32 s14, s14, {back}
    s_subb_u32 s15, s15, 0
    """)
    srd(p, 28, 12, WS_SIZE)
    srd(p, 24, 14, 256)
    for n, (kern, idx, first, nrec, ismax) in enumerate(specs):
        op = 'max' if ismax else 'min'
        rounds = (nrec + 63) // 64
        for r in range(rounds):
            base = STAMP_OFF + kern * 0x20000 + (first + 64 * r) * 64 + idx * 4
            if r == rounds - 1 and nrec % 64:
                base -= (64 - nrec % 64) * 64
            p(f"s_mov_b32 s40, {base}")
            p(f"buffer_load_dword v{8+r}, v1, s[28:31], s40 offen")
        for r in range(1, rounds):
            p(f"v_{op}_u32 v8, v8, v{8+r}")
        p("s_nop 1")
        p("v_readlane_b32 s41, v8, 0")
        for l in range(1, 64):
            p(f"v_readlane_b32 s42, v8, {l}")
            p(f"s_{op}_u32 s41, s41, s42")
        if n == 0:
            p("s_mov_b32 s43, s41")
        else:
            p("s_sub_u32 s41, s41, s43")
        if spin and n == spin[0]:
            p("s_mov_b32 s51, s41" if n else "s_mov_b32 s51, 0")
        if spin and n == spin[1]:
            p("s_sub_u32 s50, s41, s51")
            p("s_lshl_b32 s50, s50, 3")
        p(f"""
        v_mov_b32 v2, s41
        v_mov_b32 v3, {4*n}
        buffer_store_dword v2, v3, s[24:27], 0 offen
        s_waitcnt vmcnt(0)
        """)
    if spin:
        p("""
        s_min_u32 s50, s50, 60000
        s_memrealtime s[52:53]
        s_waitcnt lgkmcnt(0)
        Ldiag_spin:
        s_memrealtime s[54:55]
        s_waitcnt lgkmcnt(0)
        s_sub_u32 s56, s54, s52
        s_cmp_lt_u32 s56, s50
        s_cbranch_scc1 Ldiag_spin
        """)
    return "  s_cmp_ge_u32 s2, 1\n  s_cbranch_scc1 Ldiag_exit\n" + emit(p.finish()) + "Ldiag_exit:\n  s_endpgm\n"
```

```python
import math, os
from asmlib import *

K1T = int(os.environ.get('K1T', '320'))
N = 12500
D = 128
E = 400000
NT16 = 784
NBIN = 782
G = int(os.environ.get('GBIN', '60'))
EPW = ((E + G - 1) // G + 3) // 4 * 4
ENT_STRIDE = 10240 * 4
OFFT_STRIDE = 8192

KIMG_OFF = 0x0000000
QIMG_OFF = 0x0400000
HROW_OFF = 0x0800000
CELL = 24
BINB = G * CELL * 4
ENT2_OFF = 0x3400000
OVF_OFF = 0x0C00000
OVF_STRIDE = 7168 * 4
OVC_OFF = 0x0F00000
ENT_OFF = 0x0C00000
OFFT_OFF = 0x0F00000
PART_OFF = 0x1000000
PART_STRIDE = 0x400000
BLKB = 17408
STAT_OFF = 0x3000000
STAT_STRIDE = 0x20000
AGG_OFF = 0x3400000
WIMG_OFF = HROW_OFF + 0x320000
FLG_OFF = 0x3920000
NULLG_OFF = 0x3910000
MZ_OFF = 0x3A00000
MARGIN = 32.0
CNT_OFF = 0x3900000
WCNT_OFF = CNT_OFF + 55 * 256
WS_SIZE = 0x4000000

RT128 = math.sqrt(128.0)
CH = 1.0 / (RT128 - 1.0)
QSCALE = math.log2(math.e) / RT128

A_X, A_SRC, A_DST, A_DEG, A_WMSG, A_WQ, A_WK, A_WV, A_WOUT, A_OUT, A_DBG, A_WS = [8 * i for i in range(12)]


def srd(p, d, base, size):
    p(f"""
    s_mov_b32 s{d}, s{base}
    s_and_b32 s{d+1}, s{base+1}, 0xffff
    s_mov_b32 s{d+2}, {size}
    s_mov_b32 s{d+3}, 0x20000
    """)


def allreduce_g(p, v, t, op='v_add_f32'):
    p(f"""
    v_mov_b32 v{t}, v{v}
    v_permlane16_swap_b32 v{v}, v{t}
    {op} v{v}, v{v}, v{t}
    v_mov_b32 v{t}, v{v}
    v_permlane32_swap_b32 v{v}, v{t}
    {op} v{v}, v{v}, v{t}
    """)


def bcast_g3(p, src, dst, t):
    p(f"""
    v_mov_b32 v{t}, v{src}
    v_mov_b32 v{dst}, v{src}
    v_permlane32_swap_b32 v{t}, v{dst}
    v_mov_b32 v{t}, v{dst}
    v_permlane16_swap_b32 v{t}, v{dst}
    """)


def kernel_wrap(name, body, nvgpr, accum, nsgpr=102):
    s = f""".globl {name}
.p2align 8
.type {name},@function
{name}:
"""
    s += body
    return s


def kernel_desc(name, nvgpr, accum, nsgpr=102):
    return f""".p2align 6
.amdhsa_kernel {name}
  .amdhsa_next_free_vgpr {nvgpr}
  .amdhsa_next_free_sgpr {nsgpr}
  .amdhsa_accum_offset {accum}
  .amdhsa_group_segment_fixed_size 0
  .amdhsa_kernarg_size 96
  .amdhsa_user_sgpr_count 2
  .amdhsa_user_sgpr_kernarg_segment_ptr 1
  .amdhsa_system_sgpr_workgroup_id_x 1
.end_amdhsa_kernel
"""


import os
STAMPS = bool(os.environ.get("STAMPS"))
STAMP_OFF = 0x3C00000


def stamp(p, idx, cyc=False):
    if not STAMPS:
        return
    p(f"""
    {'s_memtime' if cyc else 's_memrealtime'} s[98:99]
    s_waitcnt lgkmcnt(0)
    s_mov_b32 s{80+idx}, s98
    """)


def stamp_flush(p, kern, n, wave_sgpr=33, nw=4):
    if not STAMPS:
        return
    p(f"""
    s_mul_i32 s98, s2, {nw}
    s_add_u32 s98, s98, s{wave_sgpr}
    s_lshl_b32 s98, s98, 6
    s_add_u32 s98, s98, {STAMP_OFF + kern * 0x20000}
    s_mov_b64 exec, 1
    v_mov_b32 v200, 0
    """)
    for i in range(n):
        p(f"v_mov_b32 v201, s{80+i}")
        p(f"buffer_store_dword v201, v200, s[28:31], s98 offen offset:{4*i}")


_pf_n = [0]


def code_prefetch(p, label, nk, vlane, vt, sp=4):
    if os.environ.get('NOPF'):
        return 0
    n = _pf_n[0]
    _pf_n[0] += 1
    p(f"""
    s_getpc_b64 s[{sp}:{sp+1}]
    Lpf{n}:
    s_add_u32 s{sp}, s{sp}, {label}-Lpf{n}
    s_addc_u32 s{sp+1}, s{sp+1}, 0
    v_lshlrev_b32 v{vt}, 7, v{vlane}
    """)
    for k in range(nk):
        p(f"global_load_dword v{vt+1}, v{vt}, s[{sp}:{sp+1}]")
        if k + 1 < nk:
            p(f"v_add_u32 v{vt}, 8192, v{vt}")
    return nk
```

```python
from common import *

NW = 16
NWV = K1T // 64
NLN = (784 + NWV - 1) // NWV
K1_NWG = G + NW + NLN
K1_LDS = 65536
K1_NREC = K1_NWG * NWV


def bf16_round(p, v, t):
    p(f"""
    v_cvt_pk_bf16_f32 v{t}, v{v}, v{v}
    v_lshlrev_b32 v{v}, 16, v{t}
    """)


def pk_rowsum(p, B, T):
    P2 = lambda r: f"v[{r}:{r+1}]"
    for c in range(4):
        p(f"v_pk_add_f32 {P2(T+2*c)}, {P2(B+2*c)}, {P2(B+8+2*c)}")
    for k in range(8, 16):
        c = k & 3
        p(f"v_pk_add_f32 {P2(T+2*c)}, {P2(T+2*c)}, {P2(B+2*k)}")
    p(f"""
    v_pk_add_f32 {P2(T)}, {P2(T)}, {P2(T+2)}
    v_pk_add_f32 {P2(T+4)}, {P2(T+4)}, {P2(T+6)}
    v_pk_add_f32 {P2(T)}, {P2(T)}, {P2(T+4)}
    v_add_f32 v{T}, v{T}, v{T+1}
    """)
    allreduce_g(p, T, T + 1)


def k1_ln(p):
    stamp(p, 0)
    p(f"""
    s_load_dwordx2 s[4:5], s[0:1], {A_X}
    s_load_dwordx4 s[8:11], s[0:1], {A_WQ}
    s_load_dwordx2 s[12:13], s[0:1], {A_WS}
    v_and_b32 v1, 63, v0
    """)
    if os.environ.get('PF1', '1') == '1':
        code_prefetch(p, "Lk1_pfstart", 1, 1, 198, 14)
    p(f"""
    Lk1_pfstart:
    v_lshrrev_b32 v7, 6, v0
    v_lshrrev_b32 v2, 4, v1
    v_and_b32 v3, 15, v1
    v_readfirstlane_b32 s33, v7
    s_sub_u32 s34, s2, {G+NW}
    s_mul_i32 s34, s34, {NWV}
    v_lshlrev_b32 v4, 8, v3
    v_lshl_add_u32 v4, v2, 4, v4
    s_add_u32 s34, s34, s33
    s_lshl_b32 s35, s34, 12
    s_waitcnt lgkmcnt(0)
    """)
    srd(p, 16, 4, N * 256)
    for ks in range(4):
        p(f"buffer_load_dwordx4 v[{8+4*ks}:{11+4*ks}], v4, s[16:19], s35 offen offset:{64*ks}")
    srd(p, 20, 8, 32768)
    srd(p, 24, 10, 32768)
    srd(p, 28, 12, WS_SIZE)
    p("""
    s_barrier
    s_cmp_ge_u32 s33, 4
    s_cbranch_scc1 Lk1_nodma
    """)
    p(f"""
    v_lshlrev_b32 v5, 2, v2
    v_xor_b32 v5, v5, v3
    v_lshlrev_b32 v5, 4, v5
    v_lshl_add_u32 v5, v2, 8, v5
    s_lshl_b32 s36, s33, 13
    s_mov_b32 m0, s36
    s_add_u32 s37, s36, 4096
    """)
    for j in range(4):
        p(f"buffer_load_dwordx4 v5, s[20:23], s36 offen offset:{1024*j} lds")
    p("s_mov_b32 m0, s37")
    for j in range(4):
        p(f"buffer_load_dwordx4 v5, s[20:23], s37 offen offset:{1024*j} lds")
    p(f"""
    s_lshl_b32 s38, s33, 2
    v_xor_b32 v6, v3, v2
    v_xor_b32 v6, s38, v6
    v_lshlrev_b32 v6, 4, v6
    v_lshl_add_u32 v6, v2, 8, v6
    s_lshl_b32 s38, s33, 11
    """)
    for a in range(4):
        p(f"""
        s_add_u32 s39, s38, {8192*a}
        s_add_u32 s40, s39, 32768
        s_mov_b32 m0, s40
        s_nop 0
        buffer_load_dwordx4 v6, s[24:27], s39 offen lds
        buffer_load_dwordx4 v6, s[24:27], s39 offen offset:1024 lds
        """)
    p("Lk1_nodma:")
    p(f"""
    v_bfe_u32 v205, v1, 2, 2
    v_and_b32 v206, 3, v1
    v_lshl_add_u32 v207, v2, 3, v205
    v_lshlrev_b32 v207, 8, v207
    v_lshl_add_u32 v207, v206, 4, v207
    v_lshl_add_u32 v208, v205, 6, v207
    v_xor_b32 v209, 64, v208
    v_xor_b32 v210, 128, v208
    v_xor_b32 v211, 192, v208
    """)
    p(f"""
    v_lshrrev_b32 v212, 2, v3
    v_lshlrev_b32 v212, 3, v212
    v_and_b32 v213, 3, v3
    v_add_u32 v212, v212, v213
    v_lshlrev_b32 v212, 8, v212
    v_xor_b32 v213, v2, v3
    v_lshl_add_u32 v212, v213, 4, v212
    v_add_u32 v212, 32768, v212
    v_xor_b32 v213, 64, v212
    v_xor_b32 v214, 128, v212
    v_xor_b32 v215, 192, v212
    """)
    if STAMPS:
        p("s_waitcnt vmcnt(16)")
        stamp(p, 1)
    if NWV > 4:
        p("""
        s_cmp_lt_u32 s33, 4
        s_cbranch_scc1 Lk1_xw
        s_waitcnt vmcnt(0)
        Lk1_xw:
        s_waitcnt vmcnt(16)
        """)
    F = 24
    P2 = lambda r: f"v[{r}:{r+1}]"
    p("s_mov_b32 s41, 0xffff0000")
    for k in range(16):
        p(f"v_lshlrev_b32 v{F+2*k}, 16, v{8+k}")
        p(f"v_and_b32 v{F+2*k+1}, s41, v{8+k}")
    pk_rowsum(p, F, 200)
    p(f"v_mul_f32 v200, {hexf(1.0/128)}, v200")
    for k in range(16):
        p(f"v_pk_add_f32 {P2(F+2*k)}, {P2(F+2*k)}, v[200:201] op_sel_hi:[1,0] neg_lo:[0,1] neg_hi:[0,1]")
    for c in range(4):
        p(f"v_pk_mul_f32 {P2(200+2*c)}, {P2(F+2*c)}, {P2(F+2*c)}")
    for k in range(4, 16):
        c = k & 3
        p(f"v_pk_fma_f32 {P2(200+2*c)}, {P2(F+2*k)}, {P2(F+2*k)}, {P2(200+2*c)}")
    p("""
    v_pk_add_f32 v[200:201], v[200:201], v[202:203]
    v_pk_add_f32 v[204:205], v[204:205], v[206:207]
    v_pk_add_f32 v[200:201], v[200:201], v[204:205]
    v_add_f32 v200, v200, v201
    """)
    allreduce_g(p, 200, 201)
    bcast_g3(p, F + 31, 202, 203)
    p(f"v_mul_f32 v200, {hexf(1.0/128)}, v200")
    bf16_round(p, 200, 201)
    p(f"v_add_f32 v200, {hexf(1e-5)}, v200")
    bf16_round(p, 200, 201)
    p("v_sqrt_f32 v200, v200")
    bf16_round(p, 200, 201)
    p("v_rcp_f32 v200, v200")
    p(f"v_mul_f32 v202, {hexf(CH)}, v202")
    p("v_cmp_eq_u32 s[42:43], 3, v2")
    p("v_mul_f32 v202, v202, v200")
    HB = 56
    HT = 72
    H2 = 88
    for k in range(16):
        p(f"v_pk_fma_f32 {P2(H2+2*k)}, {P2(F+2*k)}, v[200:201], v[202:203] op_sel_hi:[1,0,0]")
    p(f"v_cndmask_b32 v{H2+31}, v{H2+31}, 1.0, s[42:43]")
    p(f"""
    s_add_u32 s45, s35, {HROW_OFF}
    s_add_u32 s46, s35, {QIMG_OFF}
    """)
    for k in range(16):
        p(f"v_cvt_pk_bf16_f32 v{HT+k}, v{H2+2*k}, v{H2+2*k+1}")
        if k % 4 == 3:
            ks = k // 4
            p(f"buffer_store_dwordx4 v[{HT+4*ks}:{HT+4*ks+3}], v4, s[28:31], s45 offen offset:{64*ks}")
    for k in range(16):
        p(f"v_pk_mul_f32 {P2(F+2*k)}, {P2(F+2*k)}, v[200:201] op_sel_hi:[1,0]")
    for k in range(16):
        p(f"v_cvt_pk_bf16_f32 v{HB+k}, v{F+2*k}, v{F+2*k+1}")
    p("""
    s_waitcnt vmcnt(12)
    s_barrier
    """)
    stamp(p, 2)
    QA = 88
    AF = 168

    def rd1(t):
        b = AF + 16 * (t & 1)
        for ks in range(4):
            for u in range(2):
                p(f"ds_read_b64_tr_b16 v[{b+4*ks+2*u}:{b+4*ks+2*u+1}], v{208+(t>>1)} offset:{8192*ks+1024*u+8*(t&1)}")
    rd1(0)
    for t in range(8):
        if t < 7:
            rd1(t + 1)
        b = AF + 16 * (t & 1)
        for ks in range(4):
            c = '0' if ks == 0 else f'v[{QA+4*t}:{QA+4*t+3}]'
            p(f"v_mfma_f32_16x16x32_bf16 v[{QA+4*t}:{QA+4*t+3}], v[{b+4*ks}:{b+4*ks+3}], v[{HB+4*ks}:{HB+4*ks+3}], {c}")
    UA = 136
    QF = 120

    def rd2(t):
        b = AF + 16 * (t & 1)
        for kk in range(4):
            p(f"ds_read_b128 v[{b+4*kk}:{b+4*kk+3}], v{212+kk} offset:{8192*(t>>1)+1024*(t&1)}")
    p("""
    s_waitcnt vmcnt(4)
    s_barrier
    """)
    rd2(0)
    for k in range(16):
        p(f"v_cvt_pk_bf16_f32 v{QF+k}, v{QA+2*k}, v{QA+2*k+1}")
    for t in range(8):
        if t < 7:
            rd2(t + 1)
        b = AF + 16 * (t & 1)
        for kk in range(4):
            c = '0' if kk == 0 else f'v[{UA+4*t}:{UA+4*t+3}]'
            p(f"v_mfma_f32_16x16x32_bf16 v[{UA+4*t}:{UA+4*t+3}], v[{b+4*kk}:{b+4*kk+3}], v[{QF+4*kk}:{QF+4*kk+3}], {c}")
    pk_rowsum(p, UA, 200)
    bcast_g3(p, UA + 31, 202, 201)
    k1c = (1.0 + CH) / RT128 * QSCALE
    k2c = -CH / RT128 * QSCALE
    p(f"""
    v_mul_f32 v202, {hexf(k1c)}, v202
    v_mul_f32 v200, {hexf(k2c)}, v200
    v_add_f32 v200, v200, v202
    v_mov_b32 v202, {hexf(QSCALE)}
    """)
    for k in range(16):
        p(f"v_pk_fma_f32 {P2(UA+2*k)}, {P2(UA+2*k)}, v[202:203], v[200:201] op_sel_hi:[1,0,0]")
    p(f"v_cndmask_b32 v{UA+31}, v{UA+31}, 0, s[42:43]")
    for k in range(16):
        p(f"v_cvt_pk_bf16_f32 v{QF+k}, v{UA+2*k}, v{UA+2*k+1}")
    p("v_lshlrev_b32 v204, 4, v1")
    for ks in range(4):
        p(f"buffer_store_dwordx4 v[{QF+4*ks}:{QF+4*ks+3}], v204, s[28:31], s46 offen offset:{1024*ks}")
    for ks in range(4):
        p(mf("v[200:203]", vr(HT + 4 * ks, 4), vr(QF + 4 * ks, 4), '0' if ks == 0 else "v[200:203]"))
    p(f"""
    s_cmp_eq_u32 s34, {N // 16}
    s_cselect_b32 s48, 0, 4
    v_cmp_lt_u32 vcc, s48, v2
    v_mov_b32 v205, 0xff800000
    s_lshl_b32 s47, s34, 6
    s_add_u32 s47, s47, {MZ_OFF}
    v_lshlrev_b32 v206, 2, v3
    v_max3_f32 v200, v200, v201, v202
    v_max_f32 v200, v200, v203
    v_cndmask_b32 v200, v200, v205, vcc
    """)
    allreduce_g(p, 200, 201, 'v_max_f32')
    p(f"""
    v_sub_f32 v200, {hexf(-MARGIN)}, v200
    buffer_store_dword v200, v206, s[28:31], s47 offen
    """)
    stamp(p, 3)
    if STAMPS:
        p("s_waitcnt vmcnt(0)")
    stamp(p, 4)
    stamp_flush(p, 0, 5, nw=NWV)
    p("s_endpgm")


def mf(d, a, b, c):
    return f"v_mfma_f32_16x16x32_bf16 {d}, {a}, {b}, {c}"


def k1_wprep(p):
    p(f"""
    s_load_dwordx2 s[4:5], s[0:1], {A_WMSG}
    s_load_dwordx2 s[6:7], s[0:1], {A_WV}
    s_load_dwordx2 s[8:9], s[0:1], {A_WOUT}
    s_load_dwordx2 s[12:13], s[0:1], {A_WS}
    v_and_b32 v1, 63, v0
    v_lshrrev_b32 v7, 6, v0
    v_lshrrev_b32 v2, 4, v1
    v_and_b32 v3, 15, v1
    v_readfirstlane_b32 s33, v7
    s_sub_u32 s34, s2, {G}
    s_cmp_lg_u32 s33, 0
    s_cbranch_scc1 Lk1_wskip
    s_and_b32 s35, s34, 7
    s_waitcnt lgkmcnt(0)
    s_cmp_ge_u32 s34, 8
    s_cselect_b32 s4, s6, s4
    s_cselect_b32 s5, s7, s5
    """)
    srd(p, 16, 4, 32768)
    srd(p, 20, 8, 32768)
    srd(p, 28, 12, WS_SIZE)
    AFR = 16
    BFR = 144
    AC = 160
    p(f"""
    v_lshlrev_b32 v4, 8, v3
    v_lshl_add_u32 v4, v2, 4, v4
    s_mov_b32 s36, 0
    """)
    for t in range(8):
        for kk in range(4):
            b = AFR + (t * 4 + kk) * 4
            p(f"buffer_load_dwordx4 v[{b}:{b+3}], v4, s[16:19], s36 offen offset:{64*kk}")
        p("s_add_u32 s36, s36, 4096")
    p(f"""
    v_lshrrev_b32 v5, 2, v3
    v_lshlrev_b32 v5, 3, v5
    v_and_b32 v6, 3, v3
    v_add_u32 v5, v5, v6
    v_lshlrev_b32 v5, 1, v5
    v_lshl_add_u32 v5, v2, 11, v5
    s_lshr_b32 s36, s35, 1
    s_lshl_b32 s36, s36, 6
    s_and_b32 s37, s35, 1
    s_lshl_b32 s37, s37, 3
    s_add_u32 s36, s36, s37
    """)
    for kk in range(4):
        p(f"s_add_u32 s37, s36, {8192*kk}")
        for x in range(8):
            p(f"buffer_load_ushort v{AC+8*kk+x}, v5, s[20:23], s37 offen offset:{256*x}")
    for k in range(16):
        p(f"v_lshl_or_b32 v{BFR+k}, v{AC+2*k+1}, 16, v{AC+2*k}")
    for t in range(8):
        d = vr(AC + 4 * t, 4)
        for kk in range(4):
            b = AFR + (t * 4 + kk) * 4
            p(mf(d, vr(b, 4), vr(BFR + 4 * kk, 4), '0' if kk == 0 else d))
    for c in range(4):
        p(f"v_add_f32 v{200+c}, v{AC+c}, v{AC+4+c}")
    for k in range(2, 8):
        for c in range(4):
            p(f"v_add_f32 v{200+c}, v{200+c}, v{AC+4*k+c}")
    p("""
    v_add_f32 v200, v200, v201
    v_add_f32 v202, v202, v203
    v_add_f32 v200, v200, v202
    """)
    allreduce_g(p, 200, 201)
    bcast_g3(p, AC + 31, 202, 201)
    p(f"""
    v_mul_f32 v202, {hexf((1.0+CH)/RT128)}, v202
    v_mul_f32 v200, {hexf(-CH/RT128)}, v200
    v_add_f32 v200, v200, v202
    v_cmp_eq_u32 s[42:43], 3, v2
    """)
    for k in range(32):
        p(f"v_add_f32 v{AC+k}, v{AC+k}, v200")
    p(f"v_cndmask_b32 v{AC+31}, v{AC+31}, 0, s[42:43]")
    for k in range(16):
        p(f"v_cvt_pk_bf16_f32 v{16+k}, v{AC+2*k}, v{AC+2*k+1}")
    p(f"""
    v_lshlrev_b32 v4, 4, v1
    s_lshl_b32 s36, s34, 12
    s_add_u32 s36, s36, {WIMG_OFF}
    """)
    for kk in range(4):
        p(f"buffer_store_dwordx4 v[{16+4*kk}:{19+4*kk}], v4, s[28:31], s36 offen offset:{1024*kk}")
    if not STAMPS:
        p("s_endpgm")
    p("Lk1_wskip:")
    if os.environ.get('PF3', '1') == '1':
        code_prefetch(p, "Lk1_exit", 1, 1, 210, 14)
        code_prefetch(p, "Lk1_exit+6144", 1, 1, 212, 14)
    if STAMPS:
        p("s_waitcnt lgkmcnt(0)")
        srd(p, 28, 12, WS_SIZE)
        for i in range(5):
            stamp(p, i)
        stamp_flush(p, 0, 5, nw=NWV)
    p("s_endpgm")


def k1_bin(p):
    RS = K1T * 16
    NR = (EPW * 4 + RS - 1) // RS
    STG = 8192
    NO = (8608 * 4 + RS - 1) // RS
    NF = (9400 * 4 + RS - 1) // RS
    TOT = STG + max(NF, NO) * RS
    assert TOT + 64 <= K1_LDS and NO * RS <= ENT_STRIDE
    NE = 4 * NR
    stamp(p, 0)
    p(f"""
    s_load_dwordx4 s[4:7], s[0:1], {A_SRC}
    s_load_dwordx2 s[12:13], s[0:1], {A_WS}
    v_lshlrev_b32 v1, 4, v0
    v_lshrrev_b32 v7, 6, v0
    v_mov_b64 v[8:9], 0
    v_mov_b64 v[10:11], 0
    v_readfirstlane_b32 s33, v7
    ds_write_b128 v1, v[8:11]
    s_mul_i32 s34, s2, {EPW*4}
    v_mov_b32 v12, 0xffff
    v_mov_b32 v13, v12
    v_mov_b32 v14, v12
    v_mov_b32 v15, v12
    s_waitcnt lgkmcnt(0)
    """)
    srd(p, 20, 6, E * 4)
    DS = 16
    SR = 44
    RK = 72
    BA = 100
    for r in range(NR):
        p(f"s_add_u32 s35, s34, {RS*r}")
        p(f"buffer_load_dwordx4 v[{DS+4*r}:{DS+4*r+3}], v1, s[20:23], s35 offen")
    srd(p, 16, 4, E * 4)
    for r in range(NR):
        p(f"s_add_u32 s35, s34, {RS*r}")
        p(f"buffer_load_dwordx4 v[{SR+4*r}:{SR+4*r+3}], v1, s[16:19], s35 offen")
    srd(p, 28, 12, WS_SIZE)
    for r in range(NF):
        p(f"ds_write_b128 v1, v[12:15] offset:{STG+RS*r}")
    p(f"""
    v_and_b32 v2, 0xf0, v1
    s_lshl_b32 s35, s2, 8
    s_add_u32 s35, s35, {CNT_OFF}
    s_add_u32 s36, s35, {NULLG_OFF - CNT_OFF}
    v_and_b32 v4, 63, v0
    v_lshlrev_b32 v4, 2, v4
    v_add_u32 v4, {784*4}, v4
    v_lshlrev_b32 v3, 2, v0
    s_mov_b32 s43, 0x10000
    s_movk_i32 s44, {783*4}
    s_mov_b32 s45, -4
    s_cmp_lg_u32 s33, 0
    s_cbranch_scc1 Lk1_b0
    buffer_store_dwordx4 v[8:11], v2, s[28:31], s35 offen
    buffer_store_dwordx4 v[12:15], v2, s[28:31], s36 offen
    v_and_b32 v2, 0x1f0, v1
    s_lshl_b32 s35, s2, 9
    s_add_u32 s35, s35, {FLG_OFF}
    buffer_store_dwordx4 v[8:11], v2, s[28:31], s35 offen
    s_waitcnt vmcnt({2 + 2*NR - 1} - 1)
    Lk1_b0:
    v_mov_b32 v2, 1
    s_waitcnt lgkmcnt(0)
    s_barrier
    """.replace(f"s_waitcnt vmcnt({2 + 2*NR - 1} - 1)\n", ""))
    return_marker = len(p.ins)
    for r in range(NR):
        p(f"s_waitcnt vmcnt({2*NR - 1 - r})")
        for k in range(4):
            e = 4 * r + k
            p(f"v_lshrrev_b32 v{BA+e}, 2, v{DS+e}")
            p(f"v_and_b32 v{BA+e}, s45, v{BA+e}")
            p(f"v_min_u32 v{BA+e}, s44, v{BA+e}")
            if r == NR - 1:
                p(f"""
                v_cmp_gt_u32 vcc, {EPW - (RS//4)*(NR-1) - k}, v3
                v_cndmask_b32 v{BA+e}, v4, v{BA+e}, vcc
                """)
            p(f"ds_add_rtn_u32 v{RK+e}, v{BA+e}, v2")
    stamp(p, 1)
    p("s_waitcnt vmcnt(0)")
    for e in range(NE):
        p(f"v_and_b32 v{DS+e}, 15, v{DS+e}")
        p(f"v_lshl_or_b32 v{DS+e}, s43, v{DS+e}, v{SR+e}")
    p(f"""
    s_waitcnt lgkmcnt(0)
    s_barrier
    ds_read_b128 v[8:11], v1
    s_lshl_b32 s37, s33, 2
    s_add_u32 s37, s37, {TOT}
    v_mov_b32 v6, s37
    v_add_u32 v8, 3, v8
    v_add_u32 v9, 3, v9
    v_add_u32 v10, 3, v10
    v_add_u32 v11, 3, v11
    v_and_b32 v8, -4, v8
    v_and_b32 v9, -4, v9
    v_and_b32 v10, -4, v10
    v_and_b32 v11, -4, v11
    v_add_u32 v13, v8, v9
    v_add_u32 v14, v13, v10
    v_add_u32 v15, v14, v11
    v_mov_b32 v5, v15
    v_add_u32_dpp v5, v5, v5 row_shr:1 row_mask:0xf bank_mask:0xf
    v_add_u32_dpp v5, v5, v5 row_shr:2 row_mask:0xf bank_mask:0xf
    v_add_u32_dpp v5, v5, v5 row_shr:4 row_mask:0xf bank_mask:0xf
    v_add_u32_dpp v5, v5, v5 row_shr:8 row_mask:0xf bank_mask:0xf
    v_add_u32_dpp v5, v5, v5 row_bcast:15 row_mask:0xa bank_mask:0xf
    v_add_u32_dpp v5, v5, v5 row_bcast:31 row_mask:0xc bank_mask:0xf
    v_readlane_b32 s36, v5, 63
    v_mov_b32 v4, s36
    ds_write_b32 v6, v4
    v_mov_b32 v6, {TOT}
    s_cmp_gt_u32 s33, 0
    s_cselect_b32 s38, -1, 0
    s_cmp_gt_u32 s33, 1
    s_cselect_b32 s39, -1, 0
    s_cmp_gt_u32 s33, 2
    s_cselect_b32 s40, -1, 0
    v_sub_u32 v5, v5, v15
    s_waitcnt lgkmcnt(0)
    s_barrier
    ds_read_b128 v[128:131], v6
    s_lshl_b32 s41, s2, 13
    s_add_u32 s41, s41, {OFFT_OFF}
    v_and_b32 v128, s38, v128
    v_and_b32 v129, s39, v129
    v_and_b32 v130, s40, v130
    v_add3_u32 v5, v5, v128, v129
    v_add_u32 v132, v5, v130
    v_add_u32 v133, v132, v8
    v_add_u32 v134, v132, v13
    v_add_u32 v135, v132, v14
    ds_write_b128 v1, v[132:135]
    buffer_store_dwordx4 v[132:135], v1, s[28:31], s41 offen
    s_waitcnt lgkmcnt(0)
    s_barrier
    """)
    stamp(p, 2)
    for e in range(NE):
        p(f"ds_read_b32 v{BA+e}, v{BA+e}")
    for e in range(NE):
        p(f"v_add_lshl_u32 v{BA+e}, v{BA+e}, v{RK+e}, 2")
        p(f"ds_write_b32 v{BA+e}, v{DS+e} offset:{STG}")
    p(f"""
    s_mul_i32 s42, s2, {ENT_STRIDE}
    s_add_u32 s42, s42, {ENT_OFF}
    s_waitcnt lgkmcnt(0)
    s_barrier
    """)
    for r in range(NO):
        p(f"ds_read_b128 v[{SR+4*r}:{SR+4*r+3}], v1 offset:{STG+RS*r}")
    for r in range(NO):
        p(f"s_add_u32 s35, s42, {RS*r}")
        p(f"buffer_store_dwordx4 v[{SR+4*r}:{SR+4*r+3}], v1, s[28:31], s35 offen")
    stamp(p, 3)
    if STAMPS:
        p("s_waitcnt vmcnt(0)")
    stamp(p, 4)
    stamp_flush(p, 0, 5, nw=NWV)
    p("s_endpgm")


def gen_k1():
    h = Prog()
    h(f"""
    s_cmp_ge_u32 s2, {K1_NWG}
    s_cbranch_scc1 Lk1_exit
    s_cmp_ge_u32 s2, {G+NW}
    s_cbranch_scc1 Lk1_ln
    s_cmp_ge_u32 s2, {G}
    s_cbranch_scc1 Lk1_w
    """)
    a = Prog()
    k1_bin(a)
    b = Prog()
    k1_ln(b)
    c = Prog()
    k1_wprep(c)
    body = emit(h.ins) + emit(a.finish()) + "Lk1_w:\n" + emit(c.finish()) + "Lk1_ln:\n" + emit(b.finish()) + "Lk1_exit:\n  s_endpgm\n"
    return body
```

```python
from k2loop import *

MF32 = "v_mfma_f32_32x32x16_bf16"
POLL_LIMIT = 1 << 22


MAP = os.environ.get('MAP', '2')
if MAP == '5':
    MAPCODE = """s_mul_i32 s35, s2, 13108
    s_lshr_b32 s35, s35, 16
    s_mul_i32 s3, s35, 5
    s_sub_u32 s34, s2, s3"""
elif MAP == '1':
    MAPCODE = """s_and_b32 s3, s2, 7
    s_lshr_b32 s4, s2, 3
    s_mul_i32 s5, s3, 31
    s_add_u32 s5, s5, s4
    s_max_u32 s3, s3, 5
    s_sub_u32 s3, s3, 5
    s_sub_u32 s5, s5, s3
    s_mul_i32 s35, s5, 13108
    s_lshr_b32 s35, s35, 16
    s_mul_i32 s3, s35, 5
    s_sub_u32 s34, s5, s3"""
else:
    sh = {'2': (0, 0, 0, 1, 1), '3': (0, 0, 3, 3, 6), '2b': (0, 0, 0, 4, 4)}[MAP]
    tab = sum(v << (4 * i) for i, v in enumerate(sh))
    MAPCODE = f"""s_mul_i32 s3, s2, 1639
    s_lshr_b32 s3, s3, 16
    s_mul_i32 s4, s3, 40
    s_sub_u32 s4, s2, s4
    s_lshr_b32 s34, s4, 3
    s_lshl_b32 s5, s34, 2
    s_lshr_b32 s5, {tab}, s5
    s_add_u32 s5, s5, s4
    s_and_b32 s5, s5, 7
    s_lshl_b32 s35, s3, 3
    s_add_u32 s35, s35, s5
    s_cmp_ge_u32 s2, 240
    s_cselect_b32 s34, s4, s34
    s_cselect_b32 s35, 48, s35"""


def k2_setup(p):
    stamp(p, 0)
    p(f"""
    s_load_dwordx2 s[12:13], s[0:1], {A_WS}
    s_load_dwordx2 s[14:15], s[0:1], {A_DEG}
    s_load_dwordx2 s[74:75], s[0:1], {A_X}
    s_load_dwordx2 s[76:77], s[0:1], {A_OUT}
    v_and_b32 v{V_LANE}, 63, v0
    v_lshrrev_b32 v{V_T0}, 6, v0
    """)
    if os.environ.get('PF2', '1') == '1':
        code_prefetch(p, "Lk2_pfstart", 1, V_LANE, CN, 6)
    p(f"""
    Lk2_pfstart:
    v_lshlrev_b32 v{V_L16}, 4, v{V_LANE}
    v_readfirstlane_b32 s33, v{V_T0}
    v_and_b32 v{V_I}, 15, v{V_LANE}
    v_lshrrev_b32 v{V_G}, 4, v{V_LANE}
    v_and_b32 v{V_T0}, 1, v{V_G}
    v_mul_u32_u24 v{V_T0}, 12, v{V_T0}
    v_xor_b32 v{V_T0}, v{V_T0}, v{V_I}
    v_lshlrev_b32 v{V_T1}, 4, v{V_G}
    v_lshl_add_u32 v{V_KS}, v{V_T0}, 8, v{V_T1}
    v_lshlrev_b32 v{V_T0}, 4, v{V_T0}
    v_lshl_add_u32 v{V_KL}, v{V_G}, 8, v{V_T0}
    {MAPCODE}
    s_lshl_b32 s37, s35, 4
    s_lshl_b32 s3, s33, 2
    s_mul_i32 s36, s33, 5
    s_add_u32 s36, s36, s34
    s_cmp_lt_u32 s36, 16
    s_cselect_b32 s4, 0, 0x10000
    s_add_u32 s36, s36, s37
    s_add_u32 s36, s36, s4
    s_add_u32 s37, s37, s3
    s_lshl_b32 s39, s33, 12
    s_add_u32 s39, s39, {HROW_OFF}
    s_mul_i32 s70, s34, {NSTAT}
    s_lshl_b32 s38, s37, 12
    s_add_u32 s38, s38, {QIMG_OFF}
    s_mov_b32 s45, 0
    s_waitcnt lgkmcnt(0)
    """)
    srd(p, 28, 12, WS_SIZE)
    dma_tiles(p, 0, 1)
    p(f"""
    v_lshlrev_b32 v{V_T0}, 2, v{V_I}
    s_lshl_b32 s46, s37, 6
    s_add_u32 s46, s46, {MZ_OFF}
    """)
    for j in range(4):
        for ks in range(4):
            p(f"buffer_load_dwordx4 {vr(Qf(j,ks),4,'a')}, v{V_L16}, s[28:31], s38 offen offset:{1024*ks}")
        if j < 3:
            p("s_add_u32 s38, s38, 4096")
        if j == 0:
            for jj in range(4):
                p(f"buffer_load_dword v{NM(jj)}, v{V_T0}, s[28:31], s46 offen offset:{64*jj}")
    srd(p, 24, 14, N * 2)
    p(f"""
    s_add_u32 s16, s12, {HROW_OFF - 3072}
    s_addc_u32 s17, s13, 0
    """)
    srd(p, 20, 16, 0x330000 + 3072)
    p(f"""
    v_lshrrev_b32 v{V_T0}, 2, v{V_LANE}
    v_bfe_u32 v{V_T1}, v{V_LANE}, 1, 1
    v_mul_u32_u24 v{V_T2}, 12, v{V_T1}
    v_xor_b32 v{V_T0}, v{V_T0}, v{V_T2}
    v_lshlrev_b32 v{V_T0}, 4, v{V_T0}
    v_lshl_add_u32 v{V_T0}, v{V_T1}, 8, v{V_T0}
    v_and_b32 v{V_T1}, 1, v{V_LANE}
    v_lshl_add_u32 v{V_VL}, v{V_T1}, 3, v{V_T0}
    s_mul_i32 s49, s33, {GW_STRIDE}
    s_add_u32 s49, s49, {GW_OFF}
    s_lshl_b32 s32, s33, 14
    s_add_u32 s32, s32, {STG_OFF}
    s_mov_b32 s55, 256
    s_mov_b32 s57, 0x40004000
    s_mov_b32 s58, 0x07060302
    s_mov_b32 s60, {ENT_OFF}
    s_lshr_b32 s56, s37, 2
    s_mul_i32 s56, s56, {BLKB}
    s_mul_i32 s46, s34, {PART_STRIDE}
    s_add_u32 s56, s56, s46
    s_add_u32 s56, s56, {PART_OFF}
    s_lshl_b32 s78, s35, 9
    s_add_u32 s78, s78, {FLG_OFF}
    s_lshl_b32 s73, s35, 8
    s_add_u32 s73, s73, {CNT_OFF}
    v_lshlrev_b32 v{V_LA}, 5, v{V_G}
    v_add_u32 v{V_LA}, s49, v{V_LA}
    """)


def kv_dma(p):
    p("s_mov_b32 m0, s41")
    for i in range(4):
        p(f"buffer_load_dwordx4 v{V_KS}, s[28:31], s40 offen offset:{64*i} lds")
        if i < 3:
            p("s_add_u32 m0, m0, 960")


def kv2_dma(p):
    p(f"""
    s_add_u32 s46, s70, 2
    s_lshl_b32 s46, s46, 14
    s_add_u32 s46, s46, s39
    s_lshl_b32 s47, s33, 12
    s_add_u32 m0, s47, 32768
    """)
    for i in range(4):
        p(f"buffer_load_dwordx4 v{V_KS}, s[28:31], s46 offen offset:{64*i} lds")
        if i < 3:
            p("s_add_u32 m0, m0, 960")


def dma_tiles(p, t0, t1):
    if t0 == 0:
        p(f"""
        s_lshl_b32 s40, s70, 14
        s_add_u32 s40, s40, s39
        s_lshl_b32 s41, s33, 12
        """)
    for t in range(t0, t1):
        kv_dma(p)
        p("s_add_u32 s40, s40, 16384")
        p("s_add_u32 s41, s41, 16384")


def gather_consts(p):
    t0, t1, t2 = V_T0, V_T1, V_T2
    p(f"""
    v_and_b32 v{t0}, 1, v{V_G}
    v_lshlrev_b32 v{t0}, 3, v{t0}
    v_xor_b32 v{t1}, v{t0}, v{V_I}
    v_lshlrev_b32 v{t1}, 4, v{t1}
    """)
    for k in range(4):
        p(f"v_xor_b32 v{LO+k}, {32*k}, v{t1}")
        p(f"v_add_u32 v{LO+k}, {3072-1024*k}, v{LO+k}")
    p(f"""
    v_bfe_u32 v{t1}, v{V_LANE}, 2, 2
    v_lshl_add_u32 v{t2}, v{t1}, 2, v{V_G}
    v_lshlrev_b32 v{t2}, 8, v{t2}
    v_lshlrev_b32 v{t1}, 1, v{t1}
    v_xor_b32 v{t0}, v{t0}, v{t1}
    v_bfe_u32 v{t1}, v{V_LANE}, 1, 1
    v_xor_b32 v{t0}, v{t0}, v{t1}
    v_lshl_add_u32 v{t2}, v{t0}, 4, v{t2}
    v_and_b32 v{t1}, 1, v{V_LANE}
    v_lshl_add_u32 v{t2}, v{t1}, 3, v{t2}
    v_add_u32 v{t2}, s54, v{t2}
    """)
    for dt in range(8):
        p(f"v_xor_b32 v{TA+dt}, {32*dt}, v{t2}")
    p(f"v_add_u32 v{V_ROT}, 18, v{V_I}")


def gather_plan(p):
    t0, t1, t2 = V_T0, V_T1, V_T2
    p(f"""
    s_cmp_lt_u32 s36, {NBIN}
    s_cselect_b32 s46, {(EPW + 3) // 4}, 0
    v_sub_u32 v{CN}, v{ST+1}, v{ST}
    v_lshrrev_b32 v{CN}, 2, v{CN}
    v_min_u32 v{CN}, s46, v{CN}
    v_mul_u32_u24 v{t0}, {ENT_STRIDE}, v{V_LANE}
    v_mov_b32 v{PS}, v{CN}
    v_lshl_add_u32 v{ST}, v{ST}, 2, v{t0}
    v_mov_b32 v{OT}, {NULLG_OFF - ENT_OFF}
    v_add_u32_dpp v{PS}, v{PS}, v{PS} row_shr:1 row_mask:0xf bank_mask:0xf
    v_mov_b32 v{OT+1}, v{OT}
    v_mov_b32 v{OT+2}, v{OT}
    v_add_u32_dpp v{PS}, v{PS}, v{PS} row_shr:2 row_mask:0xf bank_mask:0xf
    v_mov_b32 v{OT+3}, v{OT}
    v_add_u32 v{t2}, s49, v{V_L16}
    v_add_u32_dpp v{PS}, v{PS}, v{PS} row_shr:4 row_mask:0xf bank_mask:0xf
    ds_write_b128 v{t2}, v[{OT}:{OT+3}] offset:{IDX}
    v_cmp_lt_u32 vcc, {MAXQ}, v{CN}
    v_add_u32_dpp v{PS}, v{PS}, v{PS} row_shr:8 row_mask:0xf bank_mask:0xf
    v_add_u32 v{AD8+1}, 16, v{ST}
    v_add_u32 v{AD8+2}, 32, v{ST}
    v_add_u32_dpp v{PS}, v{PS}, v{PS} row_bcast:15 row_mask:0xa bank_mask:0xf
    v_add_u32 v{AD8+3}, 48, v{ST}
    v_add_u32 v{AD8+4}, 64, v{ST}
    v_add_u32_dpp v{PS}, v{PS}, v{PS} row_bcast:31 row_mask:0xc bank_mask:0xf
    v_add_u32 v{AD8+5}, 80, v{ST}
    v_mov_b32 v{t1}, {IDX_TRASH - IDX}
    v_readlane_b32 s59, v{PS}, 63
    v_sub_u32 v{PS}, v{PS}, v{CN}
    s_cmp_gt_u32 s59, {MAXTOT}
    s_cselect_b32 s46, 1, 0
    s_cmp_lg_u64 vcc, 0
    s_cselect_b32 s46, 1, s46
    s_cmp_eq_u32 s46, 0
    s_cselect_b32 s61, -1, 0
    s_cselect_b32 s59, s59, 0
    v_and_b32 v{t2}, s61, v{CN}
    v_lshlrev_b32 v{t0}, 2, v{PS}
    v_cmp_eq_u32 vcc, 0, v{t2}
    s_add_u32 s66, s59, 7
    s_lshr_b32 s66, s66, 3
    v_cndmask_b32 v{t0}, v{t0}, v{t1}, vcc
    v_add_u32 v{t0}, s49, v{t0}
    """)
    for q in range(MAXQ - 1, -1, -1):
        p(f"ds_write_b32 v{t0}, v{AD8+q if q else ST} offset:{IDX+4*q}")
    p(f"""
    s_lshl_b32 s46, s59, 2
    v_lshlrev_b32 v{t0}, 2, v{V_LANE}
    v_add_u32 v{t0}, s49, v{t0}
    v_add_u32 v{t2}, s46, v{t0}
    ds_write_b32 v{t2}, v{OT} offset:{IDX}
    s_mov_b32 m0, s49
    """)
    for k in range(4):
        p(f"ds_read_b32 v{AD8+k}, v{t0} offset:{IDX+256*k}")
    for k in range(4):
        p(f"buffer_load_dwordx4 v{AD8+k}, s[28:31], s60 offen lds")
        if k < 3:
            p("s_add_u32 m0, m0, 1024")
    for k in range(6):
        p(f"v_mov_b32 v{AD8+k}, v{AD8+7}")
    for k in range(4):
        p(f"v_mov_b32 v{OT+k}, 0")


def gather_arm(p, extra):
    p(f"""
    s_mov_b32 s63, 0
    s_lshl_b32 s64, s66, 7
    s_add_u32 s72, s66, 1
    s_add_u32 s62, s66, {1 + extra}
    s_cmp_eq_u32 s66, 0
    s_cselect_b32 s72, 0, s72
    s_cselect_b32 s62, 0, s62
    """)


def k2_maxpass(p):
    MX = P_B
    CI = NM1_B
    p(f"""
    s_lshl_b32 s41, s33, 12
    s_mov_b32 s46, 0
    s_mov_b32 s47, s68
    s_mov_b32 s48, 0xff800000
    v_mov_b32 v{V_KA}, v{V_KL}
    """)
    for j in range(4):
        p(f"v_mov_b32 v{MX+j}, s48")
    for k in range(16):
        p(f"v_mov_b32 v{CI+k}, 0")
    p(f"""
    Lk2_mx_loop:
    s_max_u32 s40, s46, 5
    s_lshl_b32 s40, s40, 2
    s_add_u32 s40, s40, {LOG_OFF - 20}
    v_mov_b32 v{V_T0}, s40
    ds_read_b32 v{V_T0}, v{V_T0}
    v_readfirstlane_b32 s69, v{V_T0}
    s_and_b32 s69, s69, 0xffff
    s_add_u32 s40, s70, s46
    s_cmp_lt_u32 s46, 5
    s_cselect_b32 s69, s40, s69
    s_lshl_b32 s40, s69, 14
    s_add_u32 s40, s40, s39
    """)
    kv_dma(p)
    p(f"""
    s_waitcnt vmcnt(0)
    s_barrier
    """)
    for s in range(4):
        for ks in range(4):
            p.extend([kread(s, ks)])
    p("s_waitcnt lgkmcnt(0)")
    p("s_barrier")
    for j in range(4):
        for s in range(4):
            d = vr(O_B + (j * 4 + s) * 4, 4)
            for ks in range(4):
                p(mf(d, vr(Kf(s, ks), 4, 'a'), vr(Qf(j, ks), 4, 'a'), vr(CI + 4 * s, 4) if ks == 0 else d))
    for j in range(4):
        for k in range(0, 16, 2):
            b = O_B + j * 16 + k
            p(f"v_max3_f32 v{MX+j}, v{MX+j}, v{b}, v{b+1}")
    p(f"""
    s_add_u32 s46, s46, 1
    s_cmp_lt_u32 s46, s47
    s_nop 7
    s_cbranch_scc1 Lk2_mx_loop
    """)
    for j in range(4):
        allreduce_g(p, MX + j, V_T0, 'v_max_f32')
        p(f"v_sub_f32 v{NM(j)}, 0, v{MX+j}")


def k2_prologue(p):
    p("s_branch Lk2_run1")
    p("Lk2_run:")
    dma_tiles(p, 0, 1)
    kv2_dma(p)
    p("Lk2_run1:")
    dma_tiles(p, 1, 2)
    p("s_add_u32 s40, s40, 16384")
    p("s_add_u32 s41, s41, 16384")
    p(f"""
    v_mov_b32 v{V_T3}, 0x7fff0000
    s_mov_b32 s54, s32
    s_add_u32 s65, s32, 4096
    s_mov_b32 s67, 0
    s_mov_b32 m0, s54
    v_mov_b32 v{OH}, 0
    """)
    for i in range(8):
        if i == 4:
            p("s_mov_b32 m0, s65")
            p("s_nop 0")
        p(f"buffer_load_dwordx4 v{V_T3}, s[20:23], 0 offen offset:{1024*(i&3)} lds")
    for r in range(1, 8):
        p(f"v_mov_b32 v{OH+r}, 0")
    z = vr(OH, 4)
    for b in range(O_B, P_B + 32, 16):
        p(f"{MF32} {vr(b,16)}, {z}, {z}, 0")
    for b in range(V_A, GA_A, 16):
        p(f"{MF32} {vr(b,16,'a')}, {z}, {z}, 0")
    gather_consts(p)
    for r in range(8):
        p(f"v_mov_b32 v{AD8+r}, v{V_T3}")
    p(f"""
    v_mov_b32 v{V_KA}, v{V_KL}
    s_mov_b32 s42, 0
    s_mov_b32 s43, 0
    s_mov_b32 s68, 0
    s_add_u32 s46, s70, 0x40004
    v_mov_b32 v{V_TN}, s46
    v_mov_b32 v{V_TK}, 0
    v_mov_b32 v{V_ONE}, 0
    v_mov_b32 v{V_AOFF}, v{V_T3}
    v_cmp_eq_u32 vcc, 0, v{V_LANE}
    v_mov_b32 v{V_T0}, {LOG_OFF}
    s_mov_b32 s44, 4
    v_cndmask_b32 v{V_LG}, v{V_T3}, v{V_T0}, vcc
    s_cmp_lg_u32 s45, 0
    s_cbranch_scc1 Lk2_second
    {MF32} a[{GA_A}:{GA_A+15}], {z}, {z}, 0
    {MF32} a[{GA_A+16}:{GA_A+31}], {z}, {z}, 0
    s_min_u32 s46, s36, 1000
    s_lshl_b32 s46, s46, 2
    s_add_u32 s46, s46, {OFFT_OFF}
    v_lshlrev_b32 v{V_T0}, 13, v{V_LANE}
    buffer_load_dwordx2 v[{ST}:{ST+1}], v{V_T0}, s[28:31], s46 offen
    s_lshl_b32 s46, s36, 5
    v_lshlrev_b32 v{V_T1}, 1, v{V_I}
    buffer_load_ushort v{DEG}, v{V_T1}, s[24:27], s46 offen
    v_cmp_eq_u32 vcc, 0, v0
    v_mov_b32 v{V_T0}, s73
    s_add_u32 s46, s70, 5
    v_cndmask_b32 v{V_AOFF}, v{V_T3}, v{V_T0}, vcc
    v_cndmask_b32 v{V_ONE}, 0, 1, vcc
    v_mov_b32 v{V_T0}, {5*NSTAT}
    v_mov_b32 v{V_T1}, s46
    v_cndmask_b32 v{V_T0}, v{V_T0}, v{V_T1}, vcc
    v_lshlrev_b32 v{V_T1}, 2, v0
    v_add_u32 v{V_T1}, {LOG_OFF}, v{V_T1}
    ds_write_b32 v{V_T1}, v{V_T0}
    s_mov_b32 s71, 1
    s_mov_b32 s66, 0
    s_waitcnt vmcnt(26)
    s_branch Lk2_go
    Lk2_second:
    v_lshlrev_b32 v{V_T1}, 2, v0
    v_add_u32 v{V_T1}, {LOG_OFF}, v{V_T1}
    ds_read_b32 v{V_T0}, v{V_T1}
    s_waitcnt lgkmcnt(0)
    v_and_b32 v{V_T0}, 0xffff, v{V_T0}
    ds_write_b32 v{V_T1}, v{V_T0}
    s_waitcnt vmcnt(0)
    Lk2_go:
    s_mov_b32 s47, 0x40000
    s_mov_b32 s48, 0x10000
    """)
    gather_arm(p, 0)
    p("""
    s_waitcnt lgkmcnt(0)
    s_barrier
    """)
    stamp(p, 1)
    for s in range(4):
        for ks in range(4):
            p.extend([kread(s, ks)])
    for j in range(4):
        for r in range(1, 4):
            p(f"v_mov_b32 v{NM(j)+r}, v{NM(j)}")
    p(f"""
    s_waitcnt lgkmcnt(4)
    """)
    stamp(p, 2)
    stamp(p, 9, True)


def side_loads(p):
    p(f"""
    s_lshr_b32 s46, s33, 1
    s_lshl_b32 s46, s46, 12
    s_and_b32 s3, s33, 1
    s_lshl_b32 s4, s3, 11
    s_add_u32 s4, s4, s46
    s_add_u32 m0, s4, {TAIL_OFF}
    s_lshl_b32 s3, s3, 7
    s_add_u32 s46, s46, s3
    s_add_u32 s46, s46, {HROW_OFF + NTILE * 16384}
    buffer_load_dwordx4 v{V_KS}, s[28:31], s46 offen lds
    s_add_u32 m0, m0, 960
    s_min_u32 s3, s36, 783
    buffer_load_dwordx4 v{V_KS}, s[28:31], s46 offen offset:64 lds
    s_mov_b32 m0, s49
    s_lshl_b32 s3, s3, 12
    s_add_u32 s3, s3, {QIMG_OFF}
    """)
    for i in range(4):
        p(f"buffer_load_dwordx4 v{V_L16}, s[28:31], s3 offen offset:{1024*i} lds")


def k2_glue(p):
    p(f"""
    Lk2_glue:
    s_cmp_le_u32 s71, 2
    s_cbranch_scc1 Lk2_glue12
    s_add_u32 s71, s71, 1
    s_add_u32 s67, s67, 1
    s_cmp_eq_u32 s67, 3
    s_cbranch_scc1 Lk2_glue_w3
    s_cmp_eq_u32 s67, 4
    s_cbranch_scc1 Lk2_glue_w4
    s_sub_u32 s46, s67, 1
    s_lshl_b32 s46, s46, 13
    s_add_u32 s54, s32, s46
    s_add_u32 s65, s54, 4096
    s_add_u32 s46, s54, {WIMG_OFF - (HROW_OFF - 3072) - STG_OFF}
    v_add_u32 v{AD8}, s46, v{V_L16}
    v_add_u32 v{AD8+4}, 4096, v{AD8}
    v_mov_b32 v{AD8+1}, v{AD8}
    v_mov_b64 v[{AD8+2}:{AD8+3}], v[{AD8}:{AD8+1}]
    v_mov_b32 v{AD8+5}, v{AD8+4}
    v_mov_b64 v[{AD8+6}:{AD8+7}], v[{AD8+4}:{AD8+5}]
    s_branch Lk2_glue_back
    Lk2_glue_w3:
    v_mov_b32 v{AD8}, 0x7fff0000
    v_mov_b32 v{AD8+1}, v{AD8}
    v_mov_b64 v[{AD8+2}:{AD8+3}], v[{AD8}:{AD8+1}]
    v_mov_b64 v[{AD8+4}:{AD8+5}], v[{AD8}:{AD8+1}]
    v_mov_b64 v[{AD8+6}:{AD8+7}], v[{AD8}:{AD8+1}]
    s_mov_b32 s54, 0x30000
    s_mov_b32 s65, 0x30000
    """)
    side_loads(p)
    p(f"""
    s_branch Lk2_glue_back
    Lk2_glue_w4:
    s_mov_b32 s71, 0
    """)
    code_prefetch(p, "Lk2_endcode", 1, V_LANE, CN)
    p(f"""
    s_branch Lk2_glue_back
    Lk2_glue12:
    s_cmp_eq_u32 s71, 1
    s_cbranch_scc1 Lk2_glue1
    s_add_u32 s71, s66, 3
    s_and_b32 s71, s71, s61
    s_barrier
    s_branch Lk2_glue_back
    Lk2_glue1:
    """)
    stamp(p, 13, True)
    kv2_dma(p)
    gather_plan(p)
    gather_arm(p, 1)
    p("""
    s_mov_b32 s71, 2
    s_mov_b32 s47, 0x40000
    s_waitcnt lgkmcnt(0)
    s_barrier
    """)
    stamp(p, 14, True)
    stamp(p, 15, True)
    p(f"""
    s_branch Lk2_glue_back
    Lk2_sync:
    v_add_u32 v{V_T0}, -4, v{V_LG}
    s_mov_b32 s46, 0
    Lk2_sync1:
    ds_read_b32 v{V_TN}, v{V_T0}
    s_add_u32 s46, s46, 1
    s_waitcnt lgkmcnt(0)
    v_readfirstlane_b32 s69, v{V_TN}
    s_cmp_gt_u32 s46, {1 << 22}
    s_cbranch_scc1 Lk2_sync_back
    s_cmp_lt_u32 s69, s47
    s_cbranch_scc1 Lk2_sync1
    s_branch Lk2_sync_back
    """)


def k2_tail_setup(p):
    p(f"""
    v_cmp_eq_u32 vcc, 0, v{V_G}
    v_mov_b32 v{NINF_B}, 0xff800000
    """)
    for k in range(16):
        p(f"v_cndmask_b32 v{NM1_B+k}, v{NINF_B}, v{NM_B+k}, vcc")
    p("s_nop 1")


def k2_slow_gather(p):
    t0, t1, t2 = V_T0, V_T1, V_T2
    B = OT
    p(f"""
    Lk2_g_rare:
    s_mov_b32 s59, 0
    s_mov_b32 s54, s32
    s_add_u32 s65, s32, 4096
    s_mov_b32 s67, 0
    """)
    for r in range(32):
        p(f"v_accvgpr_write_b32 a{GA_A+r}, 0")
    gather_consts(p)
    p(f"""
    Lk2_g_slow:
    s_waitcnt vmcnt(0) lgkmcnt(0)
    v_cmp_lt_u32 vcc, s59, v{CN}
    s_cbranch_vccz Lk2_g_back
    v_mov_b32 v{B}, 0xffff
    v_mov_b32 v{B+1}, 0xffff
    v_mov_b32 v{B+2}, 0xffff
    v_mov_b32 v{B+3}, 0xffff
    s_lshl_b32 s46, s59, 4
    s_add_u32 s46, s46, s60
    s_mov_b64 exec, vcc
    buffer_load_dwordx4 v[{B}:{B+3}], v{ST}, s[28:31], s46 offen
    s_mov_b64 exec, -1
    v_add_u32 v{t0}, s54, v{V_L16}
    ds_write_b128 v{t0}, v[{B}:{B+3}] offset:8192
    s_add_u32 s59, s59, 1
    s_mov_b32 s47, 8
    v_lshlrev_b32 v{t2}, 5, v{V_G}
    v_add_u32 v{t2}, s54, v{t2}
    s_waitcnt lgkmcnt(0)
    Lk2_g_loop:
    ds_read_b128 v[{E0}:{E0+3}], v{t2} offset:8192
    ds_read_b128 v[{E0+4}:{E0+7}], v{t2} offset:8208
    v_add_u32 v{t2}, 128, v{t2}
    s_mov_b32 m0, s54
    """)
    for i in range(8):
        if i == 4:
            p("s_mov_b32 m0, s65")
        p.extend([gmad8(i), gdma8(i)])
    for k in range(4):
        o = OH + k
        p(f"v_perm_b32 v{o}, v{E0+2*k+1}, v{E0+2*k}, s58")
        p(f"v_alignbit_b32 v{o}, v{o}, v{o}, v{V_ROT}")
        p(f"v_and_b32 v{o}, s57, v{o}")
    p("s_waitcnt vmcnt(0)")
    for dt in range(8):
        for u in range(2):
            p(f"ds_read_b64_tr_b16 {vr(GF_A+4*dt+2*u,2,'a')}, v{TA+dt} offset:{4096*u}")
    for dt in range(8):
        d = vr(GA_A + 4 * dt, 4, 'a')
        p(mf(d, vr(GF_A + 4 * dt, 4, 'a'), vr(OH, 4), d))
    p(f"""
    s_sub_u32 s47, s47, 1
    s_cmp_lg_u32 s47, 0
    s_cbranch_scc1 Lk2_g_loop
    s_branch Lk2_g_slow
    Lk2_g_back:
    s_nop 7
    s_branch Lk2_g_done
    """)


XR = 208
YA = 224
AGF = P_B + 16


def flag(j):
    return f"buffer_store_dword v{V_ROT}, v{V_LA}, s[28:31], s79 offen offset:{32*j}"


def tile_stores(j):
    gs = []
    for kk in range(4):
        o = O(j, 2 * kk)
        g = [I(f"v_cvt_pk_bf16_f32 v{o+h}, v{o+2*h}, v{o+2*h+1}") for h in range(4)]
        g.append(I(f"buffer_store_dwordx4 {vr(o,4)}, v{V_L16}, s[28:31], s{40+j} offen offset:{1024*kk}"))
        gs.append(g)
    o = O(j, 7)
    gs.append([I(f"v_sub_f32 v{o+2}, 0, v{NM(j)}"),
               I(f"buffer_store_dwordx2 {vr(o+2,2)}, v{V_T2}, s[28:31], s44 offen offset:{128*j}")])
    return gs


def k2_end(p, drain):
    p(f"""
    s_cmp_gt_i32 s62, 0
    s_cselect_b32 s46, 0, s61
    s_cmp_lg_u32 s46, -1
    s_cbranch_scc1 Lk2_g_rare
    Lk2_g_done:
    s_cmp_lg_u32 s67, 4
    s_cbranch_scc1 Lk2_w_rare
    Lk2_w_done:
    v_lshlrev_b32 v{V_T3}, 8, v{V_I}
    v_lshl_add_u32 v{V_T3}, v{V_G}, 4, v{V_T3}
    s_min_u32 s38, s36, 1000
    s_lshl_b32 s38, s38, 12
    s_mov_b32 s16, s74
    s_and_b32 s17, s75, 0xffff
    s_mov_b32 s18, {N*256}
    s_mov_b32 s19, 0x20000
    buffer_load_dwordx4 v[{XR}:{XR+3}], v{V_T3}, s[16:19], s38 offen
    buffer_load_dwordx4 v[{XR+4}:{XR+7}], v{V_T3}, s[16:19], s38 offen offset:64
    buffer_load_dwordx4 v[{XR+8}:{XR+11}], v{V_T3}, s[16:19], s38 offen offset:128
    buffer_load_dwordx4 v[{XR+12}:{XR+15}], v{V_T3}, s[16:19], s38 offen offset:192
    v_cmp_eq_u32 s[50:51], 3, v{V_G}
    v_lshlrev_b32 v{V_T0}, 3, v{V_I}
    v_mov_b32 v{V_T2}, 0x7fff0000
    s_mov_b32 s40, s56
    s_add_u32 s41, s56, 4096
    s_add_u32 s42, s56, 8192
    s_add_u32 s43, s56, 12288
    s_add_u32 s44, s56, 16384
    v_cndmask_b32 v{V_T2}, v{V_T2}, v{V_T0}, s[50:51]
    """)
    gs = tile_stores(0) + tile_stores(1) + tile_stores(2)
    flat = [x for g in gs for x in g]
    nm = 0
    for i in drain:
        p.extend([i])
        if i.kind == 'mfma':
            nm += 1
            for _ in range(3):
                if flat:
                    p.extend([flat.pop(0)])
    p.extend(flat)
    for g in tile_stores(3):
        p.extend(g)
    stamp(p, 10, True)
    stamp(p, 3)
    p(f"""
    s_mov_b32 s48, {hexf(2.0**100)}
    v_add_f32 v{V_LC}, v{O(0,7)+3}, v{O(1,7)+3}
    v_add_f32 v{V_KA}, v{O(2,7)+3}, v{O(3,7)+3}
    v_add_f32 v{V_KA}, v{V_LC}, v{V_KA}
    v_cmp_nlt_f32 vcc, v{V_KA}, s48
    s_lshl_b32 s47, s33, 2
    s_add_u32 s47, s47, {FLAG_OFF}
    s_and_b64 s[52:53], vcc, s[50:51]
    s_cselect_b32 s46, 1, 0
    v_mov_b32 v{V_LC}, s47
    v_mov_b32 v{V_KA}, s46
    ds_write_b32 v{V_LC}, v{V_KA}
    v_mov_b32 v{V_LC}, {FLAG_OFF}
    s_lshl_b32 s47, s33, 7
    s_lshl_b32 s48, s34, 2
    s_add_u32 s47, s47, s48
    s_add_u32 s79, s47, s78
    s_waitcnt lgkmcnt(0)
    s_barrier
    ds_read_b128 v[{S_B}:{S_B+3}], v{V_LC}
    v_lshlrev_b32 v{V_T1}, 26, v{V_LANE}
    v_or_b32 v{S_B}, v{S_B}, v{S_B+1}
    v_or3_b32 v{S_B}, v{S_B}, v{S_B+2}, v{S_B+3}
    v_readfirstlane_b32 s47, v{S_B}
    s_andn2_b32 s47, s47, s45
    s_cmp_lg_u32 s47, 0
    s_cbranch_scc1 Lk2_redo
    v_mov_b32 v{V_LA}, v{V_T1}
    v_mov_b32 v{V_ROT}, 1
    s_waitcnt vmcnt(15)
    {flag(0)}
    """)
    stamp(p, 4)
    p(f"""
    s_cmp_ge_u32 s36, {NBIN}
    s_cbranch_scc1 Lk2_nofinal
    """)
    return 1


def k2_nofinal(p, y):
    p(f"""
    Lk2_nofinal:
    s_waitcnt vmcnt(11)
    {flag(1)}
    s_waitcnt vmcnt(7)
    {flag(2)}
    s_waitcnt vmcnt(3)
    {flag(3)}
    {'s_branch Lk2_fin' if STAMPS else 's_endpgm'}
    Lk2_w_rare:
    s_sub_u32 s46, s32, {STG_OFF}
    s_add_u32 s46, s46, {WIMG_OFF}
    s_mov_b32 m0, s32
    s_mov_b32 s47, 0
    Lk2_w_loop:
    buffer_load_dwordx4 v{V_L16}, s[28:31], s46 offen lds
    s_add_u32 m0, m0, 1024
    s_add_u32 s46, s46, 1024
    s_add_u32 s47, s47, 1
    s_cmp_lt_u32 s47, 16
    s_cbranch_scc1 Lk2_w_loop
    """)
    side_loads(p)
    p("""
    s_waitcnt vmcnt(0)
    s_branch Lk2_w_done
    """)


def k2_final(p, y):
    STT = 192
    PT = O_B
    O6 = 96
    OF = 128
    WF = 144
    CO = 144
    L = 156
    QT = 128
    KT = 144
    VT = 224
    P2 = lambda r: f"v[{r}:{r+1}]"
    p(f"""
    v_add_u32 v{V_T1}, {STG_OFF}, v{V_L16}
    v_lshlrev_b32 v{V_KA}, 16, v{DEG}
    v_mul_f32 v{V_KA}, 0.5, v{V_KA}
    v_add_u32 v{V_KL}, {TAIL_OFF}, v{V_KL}
    v_add_u32 v{V_VL}, {TAIL_OFF}, v{V_VL}
    v_add_u32 v{V_LC}, s49, v{V_L16}
    s_mov_b32 s48, 0xffff0000
    s_lshr_b32 s46, s36, 2
    s_mul_i32 s46, s46, {BLKB}
    s_add_u32 s46, s46, {PART_OFF}
    s_and_b32 s47, s36, 3
    s_lshl_b32 s59, s47, 12
    s_add_u32 s59, s59, s46
    s_lshl_b32 s60, s47, 7
    s_add_u32 s60, s60, s46
    s_add_u32 s60, s60, 16384
    """)
    for ks in range(4):
        p(f"ds_read_b128 {vr(QT+4*ks,4,'a')}, v{V_LC} offset:{1024*ks}")
    for k in range(16):
        t = P_B + 8 + 2 * (k & 3)
        p(f"v_accvgpr_read_b32 v{t}, a{GA_A+2*k}")
        p(f"v_accvgpr_read_b32 v{t+1}, a{GA_A+2*k+1}")
        p(f"v_mul_f32 v{t}, v{t}, v{V_KA}")
        p(f"v_mul_f32 v{t+1}, v{t+1}, v{V_KA}")
        p(f"v_cvt_pk_bf16_f32 v{AGF+k}, v{t}, v{t+1}")
    p("s_waitcnt vmcnt(11)")
    p(flag(1))
    stamp(p, 5)
    for u in range(2):
        for ks in range(4):
            p(f"ds_read_b128 {vr(KT+(u*4+ks)*4,4,'a')}, v{V_KL} offset:{4096*u+1024*ks}")
    for dt in range(8):
        for u in range(2):
            p(f"ds_read_b64_tr_b16 {vr(VT+4*dt+2*u,2,'a')}, v{V_VL} offset:{4096*u+512*dt}")
    SS = STT
    for u in range(2):
        d = vr(SS + 4 * u, 4)
        for ks in range(4):
            p(mf(d, vr(KT + (u * 4 + ks) * 4, 4, 'a'), vr(QT + 4 * ks, 4, 'a'), '0' if ks == 0 else d))
    for k in range(16):
        p(f"v_lshlrev_b32 v{YA+2*k}, 16, v{XR+k}")
        p(f"v_and_b32 v{YA+2*k+1}, s48, v{XR+k}")
    p("s_waitcnt vmcnt(7)")
    p(flag(2))
    M6 = STT + 10
    p(f"""
    v_cmp_eq_u32 vcc, 0, v{V_G}
    v_mov_b32 v{V_KA}, 0xff800000
    """)
    for r in range(4):
        p(f"v_cndmask_b32 v{SS+4+r}, v{V_KA}, v{SS+4+r}, vcc")
    p(f"""
    v_max3_f32 v{M6}, v{SS}, v{SS+1}, v{SS+2}
    v_max3_f32 v{M6}, v{M6}, v{SS+3}, v{SS+4}
    v_max3_f32 v{M6}, v{M6}, v{SS+5}, v{SS+6}
    v_max_f32 v{M6}, v{M6}, v{SS+7}
    """)
    allreduce_g(p, M6, V_KA, 'v_max_f32')
    for r in range(8):
        p(f"v_sub_f32 v{SS+r}, v{SS+r}, v{M6}")
    for r in range(8):
        p(f"v_exp_f32 v{SS+r}, v{SS+r}")
    for r in range(4):
        p(f"v_cvt_pk_bf16_f32 v{OF+r}, v{SS+2*r}, v{SS+2*r+1}")
    for dt in range(8):
        p(mf(vr(O6 + 4 * dt, 4), vr(VT + 4 * dt, 4, 'a'), vr(OF, 4), '0'))
    p("s_waitcnt vmcnt(3)")
    p(flag(3))
    for ft in range(8):
        for kk in range(4):
            p(f"ds_read_b128 {vr((ft*4+kk)*4,4,'a')}, v{V_T1} offset:{32768+4096*ft+1024*kk}")

    def rd(ft, buf):
        b = WF + 16 * buf
        for kk in range(4):
            p(f"ds_read_b128 v[{b+4*kk}:{b+4*kk+3}], v{V_T1} offset:{4096*ft+1024*kk}")
    rd(0, 0)
    bcast_g3(p, O6 + 31, M6 + 1, V_KA)
    p(f"""
    v_min_u32 v{V_LC}, 4, v{V_LANE}
    v_lshlrev_b32 v{V_LC}, 2, v{V_LC}
    s_and_b32 s46, s36, 15
    s_lshl_b32 s46, s46, 5
    s_add_u32 s46, s46, s78
    s_mov_b32 s47, 0
    buffer_load_dword v{V_T2}, v{V_LC}, s[28:31], s46 offen sc1
    """)
    for ft in range(8):
        if ft < 7:
            rd(ft + 1, (ft + 1) & 1)
        b = WF + 16 * (ft & 1)
        d = vr(YA + 4 * ft, 4)
        for kk in range(4):
            p(mf(d, vr(b + 4 * kk, 4), vr(AGF + 4 * kk, 4), d))
    srd(p, 20, 76, N * 256)
    for s in range(1, 5):
        p(f"s_add_u32 s{40+s}, s59, {PART_STRIDE*s}")
    p(f"""
    s_branch Lk2_poll1
    Lk2_poll:
    buffer_load_dword v{V_T2}, v{V_LC}, s[28:31], s46 offen sc1
    s_add_u32 s47, s47, 1
    Lk2_poll1:
    s_waitcnt vmcnt(0)
    v_cmp_ne_u32 vcc, 1, v{V_T2}
    s_cmp_gt_u32 s47, {POLL_LIMIT}
    s_cbranch_scc1 Lk2_fetch
    s_cbranch_vccnz Lk2_poll
    Lk2_fetch:
    """)
    stamp(p, 6)
    p("s_mov_b32 s46, s60")
    for s in range(5):
        p(f"buffer_load_dwordx2 v[{STT+2*s}:{STT+2*s+1}], v{V_T0}, s[28:31], s46 offen sc1")
        if s < 4:
            p(f"s_add_u32 s46, s46, {PART_STRIDE}")
    for kk in range(4):
        for s in range(5):
            b = PT + 16 * s + 4 * kk
            p(f"buffer_load_dwordx4 v[{b}:{b+3}], v{V_L16}, s[28:31], s{59 if s == 0 else 40+s} offen offset:{1024*kk} sc1")
    tiny = hexf(2.0 ** -120)
    R6 = range(6)
    for s in range(5):
        p(f"v_max_f32 v{STT+2*s+1}, {tiny}, v{STT+2*s+1}")
    for s in R6:
        p(f"v_log_f32 v{L+s}, v{STT+2*s+1}")
    for s in R6:
        p(f"v_add_f32 v{L+s}, v{L+s}, v{STT+2*s}")
    T = V_T2
    p(f"""
    v_max3_f32 v{T}, v{L}, v{L+1}, v{L+2}
    v_max3_f32 v{T}, v{T}, v{L+3}, v{L+4}
    v_max_f32 v{T}, v{T}, v{L+5}
    """)
    for s in R6:
        p(f"v_sub_f32 v{L+s}, v{L+s}, v{T}")
    for s in R6:
        p(f"v_exp_f32 v{L+s}, v{L+s}")
    for s in R6:
        p(f"v_rcp_f32 v{STT+2*s}, v{STT+2*s+1}")
    p(f"""
    v_add_f32 v{T}, v{L}, v{L+1}
    v_add_f32 v{V_KA}, v{L+2}, v{L+3}
    v_add_f32 v{T}, v{T}, v{L+4}
    v_add_f32 v{V_KA}, v{V_KA}, v{L+5}
    v_add_f32 v{T}, v{T}, v{V_KA}
    v_rcp_f32 v{T}, v{T}
    """)
    for s in R6:
        p(f"v_mul_f32 v{L+s}, v{L+s}, v{T}")
    for s in R6:
        p(f"v_mul_f32 v{CO+2*s}, v{L+s}, v{STT+2*s}")
    for k in range(16):
        p(f"v_pk_mul_f32 {P2(O6+2*k)}, {P2(O6+2*k)}, {P2(CO+10)} op_sel_hi:[1,0]")
    pend = []
    for kk in range(4):
        oa = O6 + 8 * kk
        n = 0
        for s in range(5):
            for q in range(4):
                r = PT + 16 * s + 4 * kk + q
                t = STT + 2 * (n & 3)
                p(f"v_lshlrev_b32 v{t}, 16, v{r}")
                p(f"v_and_b32 v{t+1}, s48, v{r}")
                p(f"v_pk_fma_f32 {P2(oa+2*q)}, {P2(t)}, {P2(CO+2*s)}, {P2(oa+2*q)} op_sel_hi:[1,0,1]")
                n += 1
                if pend and n % 2 == 0:
                    p(pend.pop(0))
        for x in pend:
            p(x)
        for q in range(4):
            p(f"v_cvt_pk_bf16_f32 v{OF+4*kk+q}, v{oa+2*q}, v{oa+2*q+1}")
        pend = [mf(vr(YA + 4 * ft, 4), vr((ft * 4 + kk) * 4, 4, 'a'), vr(OF + 4 * kk, 4), vr(YA + 4 * ft, 4)) for ft in range(8)]
    for x in pend:
        p(x)
    for k in range(16):
        p(f"v_cvt_pk_bf16_f32 v{PT+k}, v{YA+2*k}, v{YA+2*k+1}")
        if k % 4 == 3:
            kk = k // 4
            p(f"buffer_store_dwordx4 v[{PT+4*kk}:{PT+4*kk+3}], v{V_T3}, s[20:23], s38 offen offset:{64*kk}")
    if STAMPS:
        p("s_branch Lk2_fin2")
        p("Lk2_fin:")
        p("s_mov_b32 s85, s84")
        p("s_mov_b32 s86, s84")
        p("Lk2_fin2:")
    stamp(p, 7)
    if STAMPS:
        p("s_waitcnt vmcnt(0)")
    stamp(p, 8)
    if STAMPS:
        p("s_mov_b32 s92, s68")
    stamp_flush(p, 1, 16)
    p("s_endpgm")


def gen_k2():
    mid, tail, drain = gen_loop_variants()
    s = f"""  s_cmp_ge_u32 s2, {K2_NWG}
  s_cbranch_scc1 Lk2_exit
"""
    a = Prog()
    k2_setup(a)
    k2_prologue(a)
    s += emit(a.finish())
    g = Prog()
    k2_glue(g)
    s += "  s_branch Lk2_loop\n" + emit(g.finish())
    s += ".p2align 6\nLk2_loop:\n" + emit(mid) + "  s_cbranch_scc1 Lk2_loop\nLk2_endcode:\n"
    c = Prog()
    stamp(c, 11, True)
    c("s_waitcnt lgkmcnt(0)")
    y = k2_end(c, [x for x in drain if x.kind != 'nop'])
    k2_final(c, y)
    cc = auto_wait(c.ins)
    cc, _ = pad_hazards(cc, pre=mid[-30:])
    s += emit(cc)
    e = Prog()
    k2_nofinal(e, y)
    s += emit(e.finish())
    d = Prog()
    d("Lk2_redo:")
    d("s_mov_b32 s45, 1")
    d("s_mov_b32 s66, 0")
    d("s_mov_b32 s61, -1")
    d("s_mov_b32 s71, 0")
    d("s_waitcnt vmcnt(0) lgkmcnt(0)")
    d("s_barrier")
    k2_maxpass(d)
    d("s_branch Lk2_run")
    s += emit(d.finish())
    e = Prog()
    k2_slow_gather(e)
    s += emit(e.finish())
    s += "Lk2_exit:\n  s_endpgm\n"
    return s
```

```python
from k2loop import *

MF32 = "v_mfma_f32_32x32x16_bf16"
POLL_LIMIT = 1 << 22


MAP = os.environ.get('MAP', '2')
if MAP == '5':
    MAPCODE = """s_mul_i32 s35, s2, 13108
    s_lshr_b32 s35, s35, 16
    s_mul_i32 s3, s35, 5
    s_sub_u32 s34, s2, s3"""
elif MAP == '1':
    MAPCODE = """s_and_b32 s3, s2, 7
    s_lshr_b32 s4, s2, 3
    s_mul_i32 s5, s3, 31
    s_add_u32 s5, s5, s4
    s_max_u32 s3, s3, 5
    s_sub_u32 s3, s3, 5
    s_sub_u32 s5, s5, s3
    s_mul_i32 s35, s5, 13108
    s_lshr_b32 s35, s35, 16
    s_mul_i32 s3, s35, 5
    s_sub_u32 s34, s5, s3"""
else:
    sh = {'2': (0, 0, 0, 1, 1), '3': (0, 0, 3, 3, 6), '2b': (0, 0, 0, 4, 4)}[MAP]
    tab = sum(v << (4 * i) for i, v in enumerate(sh))
    MAPCODE = f"""s_mul_i32 s3, s2, 1639
    s_lshr_b32 s3, s3, 16
    s_mul_i32 s4, s3, 40
    s_sub_u32 s4, s2, s4
    s_lshr_b32 s34, s4, 3
    s_lshl_b32 s5, s34, 2
    s_lshr_b32 s5, {tab}, s5
    s_add_u32 s5, s5, s4
    s_and_b32 s5, s5, 7
    s_lshl_b32 s35, s3, 3
    s_add_u32 s35, s35, s5
    s_cmp_ge_u32 s2, 240
    s_cselect_b32 s34, s4, s34
    s_cselect_b32 s35, 48, s35"""


def k2_setup(p):
    stamp(p, 0)
    p(f"""
    s_load_dwordx2 s[12:13], s[0:1], {A_WS}
    s_load_dwordx2 s[14:15], s[0:1], {A_DEG}
    s_load_dwordx2 s[74:75], s[0:1], {A_X}
    s_load_dwordx2 s[76:77], s[0:1], {A_OUT}
    v_and_b32 v{V_LANE}, 63, v0
    v_lshrrev_b32 v{V_T0}, 6, v0
    """)
    if os.environ.get('PF2', '0') == '1':
        code_prefetch(p, "Lk2_pfstart", 1, V_LANE, CN, 6)
    p(f"""
    Lk2_pfstart:
    v_lshlrev_b32 v{V_L16}, 4, v{V_LANE}
    v_readfirstlane_b32 s33, v{V_T0}
    v_and_b32 v{V_I}, 15, v{V_LANE}
    v_lshrrev_b32 v{V_G}, 4, v{V_LANE}
    v_and_b32 v{V_T0}, 1, v{V_G}
    v_mul_u32_u24 v{V_T0}, 12, v{V_T0}
    v_xor_b32 v{V_T0}, v{V_T0}, v{V_I}
    v_lshlrev_b32 v{V_T1}, 4, v{V_G}
    v_lshl_add_u32 v{V_KS}, v{V_T0}, 8, v{V_T1}
    v_lshlrev_b32 v{V_T0}, 4, v{V_T0}
    v_lshl_add_u32 v{V_KL}, v{V_G}, 8, v{V_T0}
    {MAPCODE}
    s_lshl_b32 s37, s35, 4
    s_lshl_b32 s3, s33, 2
    s_mul_i32 s36, s33, 5
    s_add_u32 s36, s36, s34
    s_cmp_lt_u32 s36, 16
    s_cselect_b32 s4, 0, 0x10000
    s_add_u32 s36, s36, s37
    s_add_u32 s36, s36, s4
    s_add_u32 s37, s37, s3
    s_lshl_b32 s39, s33, 12
    s_add_u32 s39, s39, {HROW_OFF}
    s_mul_i32 s70, s34, {NSTAT}
    s_lshl_b32 s38, s37, 12
    s_add_u32 s38, s38, {QIMG_OFF}
    s_mov_b32 s45, 0
    s_min_u32 s47, s36, 1000
    s_lshl_b32 s47, s47, 2
    s_add_u32 s47, s47, {OFFT_OFF}
    v_lshlrev_b32 v{V_T2}, 13, v{V_LANE}
    s_waitcnt lgkmcnt(0)
    """)
    srd(p, 28, 12, WS_SIZE)
    p(f"buffer_load_dwordx2 v[{ST}:{ST+1}], v{V_T2}, s[28:31], s47 offen")
    dma_tiles(p, 0, 1)
    p(f"""
    v_lshlrev_b32 v{V_T0}, 2, v{V_I}
    s_lshl_b32 s46, s37, 6
    s_add_u32 s46, s46, {MZ_OFF}
    """)
    for j in range(4):
        for ks in range(4):
            p(f"buffer_load_dwordx4 {vr(Qf(j,ks),4,'a')}, v{V_L16}, s[28:31], s38 offen offset:{1024*ks}")
        if j < 3:
            p("s_add_u32 s38, s38, 4096")
        if j == 0:
            for jj in range(4):
                p(f"buffer_load_dword v{NM(jj)}, v{V_T0}, s[28:31], s46 offen offset:{64*jj}")
    srd(p, 24, 14, N * 2)
    p(f"""
    s_add_u32 s16, s12, {HROW_OFF - 3072}
    s_addc_u32 s17, s13, 0
    """)
    srd(p, 20, 16, 0x330000 + 3072)
    p(f"""
    v_lshrrev_b32 v{V_T0}, 2, v{V_LANE}
    v_bfe_u32 v{V_T1}, v{V_LANE}, 1, 1
    v_mul_u32_u24 v{V_T2}, 12, v{V_T1}
    v_xor_b32 v{V_T0}, v{V_T0}, v{V_T2}
    v_lshlrev_b32 v{V_T0}, 4, v{V_T0}
    v_lshl_add_u32 v{V_T0}, v{V_T1}, 8, v{V_T0}
    v_and_b32 v{V_T1}, 1, v{V_LANE}
    v_lshl_add_u32 v{V_VL}, v{V_T1}, 3, v{V_T0}
    s_mul_i32 s49, s33, {GW_STRIDE}
    s_add_u32 s49, s49, {GW_OFF}
    s_lshl_b32 s32, s33, 14
    s_add_u32 s32, s32, {STG_OFF}
    s_mov_b32 s55, 256
    s_mov_b32 s57, 0x40004000
    s_mov_b32 s58, 0x07060302
    s_mov_b32 s60, {ENT_OFF}
    s_lshr_b32 s56, s37, 2
    s_mul_i32 s56, s56, {BLKB}
    s_mul_i32 s46, s34, {PART_STRIDE}
    s_add_u32 s56, s56, s46
    s_add_u32 s56, s56, {PART_OFF}
    s_lshl_b32 s78, s35, 9
    s_add_u32 s78, s78, {FLG_OFF}
    s_lshl_b32 s73, s35, 8
    s_add_u32 s73, s73, {CNT_OFF}
    v_lshlrev_b32 v{V_LA}, 5, v{V_G}
    v_add_u32 v{V_LA}, s49, v{V_LA}
    """)


def kv_dma(p):
    p("s_mov_b32 m0, s41")
    for i in range(4):
        p(f"buffer_load_dwordx4 v{V_KS}, s[28:31], s40 offen offset:{64*i} lds")
        if i < 3:
            p("s_add_u32 m0, m0, 960")


def kv2_dma(p):
    p(f"""
    s_add_u32 s46, s70, 2
    s_lshl_b32 s46, s46, 14
    s_add_u32 s46, s46, s39
    s_lshl_b32 s47, s33, 12
    s_add_u32 m0, s47, 32768
    """)
    for i in range(4):
        p(f"buffer_load_dwordx4 v{V_KS}, s[28:31], s46 offen offset:{64*i} lds")
        if i < 3:
            p("s_add_u32 m0, m0, 960")


def dma_tiles(p, t0, t1):
    if t0 == 0:
        p(f"""
        s_lshl_b32 s40, s70, 14
        s_add_u32 s40, s40, s39
        s_lshl_b32 s41, s33, 12
        """)
    for t in range(t0, t1):
        kv_dma(p)
        p("s_add_u32 s40, s40, 16384")
        p("s_add_u32 s41, s41, 16384")


def gather_consts(p):
    t0, t1, t2 = V_T0, V_T1, V_T2
    p(f"""
    v_and_b32 v{t0}, 1, v{V_G}
    v_lshlrev_b32 v{t0}, 3, v{t0}
    v_xor_b32 v{t1}, v{t0}, v{V_I}
    v_lshlrev_b32 v{t1}, 4, v{t1}
    """)
    for k in range(4):
        p(f"v_xor_b32 v{LO+k}, {32*k}, v{t1}")
        p(f"v_add_u32 v{LO+k}, {3072-1024*k}, v{LO+k}")
    p(f"""
    v_bfe_u32 v{t1}, v{V_LANE}, 2, 2
    v_lshl_add_u32 v{t2}, v{t1}, 2, v{V_G}
    v_lshlrev_b32 v{t2}, 8, v{t2}
    v_lshlrev_b32 v{t1}, 1, v{t1}
    v_xor_b32 v{t0}, v{t0}, v{t1}
    v_bfe_u32 v{t1}, v{V_LANE}, 1, 1
    v_xor_b32 v{t0}, v{t0}, v{t1}
    v_lshl_add_u32 v{t2}, v{t0}, 4, v{t2}
    v_and_b32 v{t1}, 1, v{V_LANE}
    v_lshl_add_u32 v{t2}, v{t1}, 3, v{t2}
    v_add_u32 v{t2}, s54, v{t2}
    """)
    for dt in range(8):
        p(f"v_xor_b32 v{TA+dt}, {32*dt}, v{t2}")
    p(f"v_add_u32 v{V_ROT}, 18, v{V_I}")


def gather_plan(p):
    t0, t1, t2 = V_T0, V_T1, V_T2
    p(f"""
    s_cmp_lt_u32 s36, {NBIN}
    s_cselect_b32 s46, {(EPW + 3) // 4}, 0
    v_sub_u32 v{CN}, v{ST+1}, v{ST}
    v_lshrrev_b32 v{CN}, 2, v{CN}
    v_min_u32 v{CN}, s46, v{CN}
    v_mul_u32_u24 v{t0}, {ENT_STRIDE}, v{V_LANE}
    v_mov_b32 v{PS}, v{CN}
    v_lshl_add_u32 v{ST}, v{ST}, 2, v{t0}
    v_mov_b32 v{OT}, {NULLG_OFF - ENT_OFF}
    v_add_u32_dpp v{PS}, v{PS}, v{PS} row_shr:1 row_mask:0xf bank_mask:0xf
    v_mov_b32 v{OT+1}, v{OT}
    v_mov_b32 v{OT+2}, v{OT}
    v_add_u32_dpp v{PS}, v{PS}, v{PS} row_shr:2 row_mask:0xf bank_mask:0xf
    v_mov_b32 v{OT+3}, v{OT}
    v_add_u32 v{t2}, s49, v{V_L16}
    v_add_u32_dpp v{PS}, v{PS}, v{PS} row_shr:4 row_mask:0xf bank_mask:0xf
    ds_write_b128 v{t2}, v[{OT}:{OT+3}] offset:{IDX}
    v_cmp_lt_u32 vcc, {MAXQ}, v{CN}
    v_add_u32_dpp v{PS}, v{PS}, v{PS} row_shr:8 row_mask:0xf bank_mask:0xf
    v_add_u32 v{AD8+1}, 16, v{ST}
    v_add_u32 v{AD8+2}, 32, v{ST}
    v_add_u32_dpp v{PS}, v{PS}, v{PS} row_bcast:15 row_mask:0xa bank_mask:0xf
    v_add_u32 v{AD8+3}, 48, v{ST}
    v_add_u32 v{AD8+4}, 64, v{ST}
    v_add_u32_dpp v{PS}, v{PS}, v{PS} row_bcast:31 row_mask:0xc bank_mask:0xf
    v_add_u32 v{AD8+5}, 80, v{ST}
    v_mov_b32 v{t1}, {IDX_TRASH - IDX}
    v_readlane_b32 s59, v{PS}, 63
    v_sub_u32 v{PS}, v{PS}, v{CN}
    s_cmp_gt_u32 s59, {MAXTOT}
    s_cselect_b32 s46, 1, 0
    s_cmp_lg_u64 vcc, 0
    s_cselect_b32 s46, 1, s46
    s_cmp_eq_u32 s46, 0
    s_cselect_b32 s61, -1, 0
    s_cselect_b32 s59, s59, 0
    v_and_b32 v{t2}, s61, v{CN}
    v_lshlrev_b32 v{t0}, 2, v{PS}
    v_cmp_eq_u32 vcc, 0, v{t2}
    s_add_u32 s66, s59, 7
    s_lshr_b32 s66, s66, 3
    v_cndmask_b32 v{t0}, v{t0}, v{t1}, vcc
    v_add_u32 v{t0}, s49, v{t0}
    """)
    for q in range(MAXQ - 1, -1, -1):
        p(f"ds_write_b32 v{t0}, v{AD8+q if q else ST} offset:{IDX+4*q}")
    p(f"""
    s_lshl_b32 s46, s59, 2
    v_lshlrev_b32 v{t0}, 2, v{V_LANE}
    v_add_u32 v{t0}, s49, v{t0}
    v_add_u32 v{t2}, s46, v{t0}
    ds_write_b32 v{t2}, v{OT} offset:{IDX}
    s_mov_b32 m0, s49
    """)
    for k in range(4):
        p(f"ds_read_b32 v{AD8+k}, v{t0} offset:{IDX+256*k}")
    for k in range(4):
        p(f"buffer_load_dwordx4 v{AD8+k}, s[28:31], s60 offen lds")
        if k < 3:
            p("s_add_u32 m0, m0, 1024")
    for k in range(6):
        p(f"v_mov_b32 v{AD8+k}, v{AD8+7}")
    for k in range(4):
        p(f"v_mov_b32 v{OT+k}, 0")


def gather_arm(p, extra):
    p(f"""
    s_mov_b32 s63, 0
    s_lshl_b32 s64, s66, 7
    s_add_u32 s72, s66, 1
    s_add_u32 s62, s66, {1 + extra}
    s_cmp_eq_u32 s66, 0
    s_cselect_b32 s72, 0, s72
    s_cselect_b32 s62, 0, s62
    """)


def k2_maxpass(p):
    MX = P_B
    CI = NM1_B
    p(f"""
    s_lshl_b32 s41, s33, 12
    s_mov_b32 s46, 0
    s_mov_b32 s47, s68
    s_mov_b32 s48, 0xff800000
    v_mov_b32 v{V_KA}, v{V_KL}
    """)
    for j in range(4):
        p(f"v_mov_b32 v{MX+j}, s48")
    for k in range(16):
        p(f"v_mov_b32 v{CI+k}, 0")
    p(f"""
    Lk2_mx_loop:
    s_max_u32 s40, s46, 5
    s_lshl_b32 s40, s40, 2
    s_add_u32 s40, s40, {LOG_OFF - 20}
    v_mov_b32 v{V_T0}, s40
    ds_read_b32 v{V_T0}, v{V_T0}
    v_readfirstlane_b32 s69, v{V_T0}
    s_and_b32 s69, s69, 0xffff
    s_add_u32 s40, s70, s46
    s_cmp_lt_u32 s46, 5
    s_cselect_b32 s69, s40, s69
    s_lshl_b32 s40, s69, 14
    s_add_u32 s40, s40, s39
    """)
    kv_dma(p)
    p(f"""
    s_waitcnt vmcnt(0)
    s_barrier
    """)
    for s in range(4):
        for ks in range(4):
            p.extend([kread(s, ks)])
    p("s_waitcnt lgkmcnt(0)")
    p("s_barrier")
    for j in range(4):
        for s in range(4):
            d = vr(O_B + (j * 4 + s) * 4, 4)
            for ks in range(4):
                p(mf(d, vr(Kf(s, ks), 4, 'a'), vr(Qf(j, ks), 4, 'a'), vr(CI + 4 * s, 4) if ks == 0 else d))
    for j in range(4):
        for k in range(0, 16, 2):
            b = O_B + j * 16 + k
            p(f"v_max3_f32 v{MX+j}, v{MX+j}, v{b}, v{b+1}")
    p(f"""
    s_add_u32 s46, s46, 1
    s_cmp_lt_u32 s46, s47
    s_nop 7
    s_cbranch_scc1 Lk2_mx_loop
    """)
    for j in range(4):
        allreduce_g(p, MX + j, V_T0, 'v_max_f32')
        p(f"v_sub_f32 v{NM(j)}, 0, v{MX+j}")


def k2_prologue(p):
    p("s_branch Lk2_run1")
    p("Lk2_run:")
    dma_tiles(p, 0, 1)
    kv2_dma(p)
    p("Lk2_run1:")
    dma_tiles(p, 1, 2)
    p("s_add_u32 s40, s40, 16384")
    p("s_add_u32 s41, s41, 16384")
    p(f"""
    v_mov_b32 v{V_T3}, 0x7fff0000
    s_mov_b32 s54, s32
    s_add_u32 s65, s32, 4096
    s_mov_b32 s67, 0
    s_mov_b32 m0, s54
    v_mov_b32 v{OH}, 0
    """)
    for r in range(1, 8):
        p(f"v_mov_b32 v{OH+r}, 0")
    z = vr(OH, 4)
    for b in range(O_B, P_B + 32, 16):
        p(f"{MF32} {vr(b,16)}, {z}, {z}, 0")
    for b in range(V_A, GA_A, 16):
        p(f"{MF32} {vr(b,16,'a')}, {z}, {z}, 0")
    gather_consts(p)
    for r in range(8):
        p(f"v_mov_b32 v{AD8+r}, v{V_T3}")
    p(f"""
    v_mov_b32 v{V_KA}, v{V_KL}
    s_mov_b32 s42, 0
    s_mov_b32 s43, 0
    s_mov_b32 s68, 0
    s_add_u32 s46, s70, 0x40004
    v_mov_b32 v{V_TN}, s46
    v_mov_b32 v{V_TK}, 0
    v_mov_b32 v{V_ONE}, 0
    v_mov_b32 v{V_AOFF}, v{V_T3}
    v_cmp_eq_u32 vcc, 0, v{V_LANE}
    v_mov_b32 v{V_T0}, {LOG_OFF}
    s_mov_b32 s44, 4
    v_cndmask_b32 v{V_LG}, v{V_T3}, v{V_T0}, vcc
    s_cmp_lg_u32 s45, 0
    s_cbranch_scc1 Lk2_second
    {MF32} a[{GA_A}:{GA_A+15}], {z}, {z}, 0
    {MF32} a[{GA_A+16}:{GA_A+31}], {z}, {z}, 0
    s_lshl_b32 s46, s36, 5
    v_lshlrev_b32 v{V_T1}, 1, v{V_I}
    buffer_load_ushort v{DEG}, v{V_T1}, s[24:27], s46 offen
    v_cmp_eq_u32 vcc, 0, v0
    v_mov_b32 v{V_T0}, s73
    s_add_u32 s46, s70, 5
    v_cndmask_b32 v{V_AOFF}, v{V_T3}, v{V_T0}, vcc
    v_cndmask_b32 v{V_ONE}, 0, 1, vcc
    v_mov_b32 v{V_T0}, {5*NSTAT}
    v_mov_b32 v{V_T1}, s46
    v_cndmask_b32 v{V_T0}, v{V_T0}, v{V_T1}, vcc
    v_lshlrev_b32 v{V_T1}, 2, v0
    v_add_u32 v{V_T1}, {LOG_OFF}, v{V_T1}
    ds_write_b32 v{V_T1}, v{V_T0}
    s_mov_b32 s71, 1
    s_waitcnt vmcnt(29)
    """)
    q = Prog()
    gather_plan(q)
    qq, _ = pad_hazards(auto_wait(q.ins))
    for i in qq:
        i.cnt = None if i.kind == 'vmem' else i.cnt
    p.extend(qq)
    p(f"""
    s_waitcnt vmcnt(21)
    s_branch Lk2_go
    Lk2_second:
    v_lshlrev_b32 v{V_T1}, 2, v0
    v_add_u32 v{V_T1}, {LOG_OFF}, v{V_T1}
    ds_read_b32 v{V_T0}, v{V_T1}
    s_waitcnt lgkmcnt(0)
    v_and_b32 v{V_T0}, 0xffff, v{V_T0}
    ds_write_b32 v{V_T1}, v{V_T0}
    s_waitcnt vmcnt(0)
    Lk2_go:
    s_mov_b32 s47, 0x40000
    s_mov_b32 s48, 0x10000
    """)
    gather_arm(p, 1)
    p("""
    s_mov_b32 s63, -128
    s_waitcnt lgkmcnt(0)
    s_barrier
    """)
    stamp(p, 1)
    for s in range(4):
        for ks in range(4):
            p.extend([kread(s, ks)])
    for j in range(4):
        for r in range(1, 4):
            p(f"v_mov_b32 v{NM(j)+r}, v{NM(j)}")
    p(f"""
    s_waitcnt lgkmcnt(4)
    """)
    stamp(p, 2)
    stamp(p, 9, True)


def side_loads(p):
    p(f"""
    s_lshr_b32 s46, s33, 1
    s_lshl_b32 s46, s46, 12
    s_and_b32 s3, s33, 1
    s_lshl_b32 s4, s3, 11
    s_add_u32 s4, s4, s46
    s_add_u32 m0, s4, {TAIL_OFF}
    s_lshl_b32 s3, s3, 7
    s_add_u32 s46, s46, s3
    s_add_u32 s46, s46, {HROW_OFF + NTILE * 16384}
    buffer_load_dwordx4 v{V_KS}, s[28:31], s46 offen lds
    s_add_u32 m0, m0, 960
    s_min_u32 s3, s36, 783
    buffer_load_dwordx4 v{V_KS}, s[28:31], s46 offen offset:64 lds
    s_mov_b32 m0, s49
    s_lshl_b32 s3, s3, 12
    s_add_u32 s3, s3, {QIMG_OFF}
    """)
    for i in range(4):
        p(f"buffer_load_dwordx4 v{V_L16}, s[28:31], s3 offen offset:{1024*i} lds")


def k2_glue(p):
    p(f"""
    Lk2_glue:
    s_cmp_le_u32 s71, 2
    s_cbranch_scc1 Lk2_glue12
    s_add_u32 s71, s71, 1
    s_add_u32 s67, s67, 1
    s_cmp_eq_u32 s67, 3
    s_cbranch_scc1 Lk2_glue_w3
    s_cmp_eq_u32 s67, 4
    s_cbranch_scc1 Lk2_glue_w4
    s_sub_u32 s46, s67, 1
    s_lshl_b32 s46, s46, 13
    s_add_u32 s54, s32, s46
    s_add_u32 s65, s54, 4096
    s_add_u32 s46, s54, {WIMG_OFF - (HROW_OFF - 3072) - STG_OFF}
    v_add_u32 v{AD8}, s46, v{V_L16}
    v_add_u32 v{AD8+4}, 4096, v{AD8}
    v_mov_b32 v{AD8+1}, v{AD8}
    v_mov_b64 v[{AD8+2}:{AD8+3}], v[{AD8}:{AD8+1}]
    v_mov_b32 v{AD8+5}, v{AD8+4}
    v_mov_b64 v[{AD8+6}:{AD8+7}], v[{AD8+4}:{AD8+5}]
    s_branch Lk2_glue_back
    Lk2_glue_w3:
    v_mov_b32 v{AD8}, 0x7fff0000
    v_mov_b32 v{AD8+1}, v{AD8}
    v_mov_b64 v[{AD8+2}:{AD8+3}], v[{AD8}:{AD8+1}]
    v_mov_b64 v[{AD8+4}:{AD8+5}], v[{AD8}:{AD8+1}]
    v_mov_b64 v[{AD8+6}:{AD8+7}], v[{AD8}:{AD8+1}]
    s_mov_b32 s54, 0x30000
    s_mov_b32 s65, 0x30000
    """)
    side_loads(p)
    p(f"""
    s_branch Lk2_glue_back
    Lk2_glue_w4:
    s_mov_b32 s71, 0
    """)
    code_prefetch(p, "Lk2_endcode", 1, V_LANE, CN)
    p(f"""
    s_branch Lk2_glue_back
    Lk2_glue12:
    s_cmp_eq_u32 s71, 1
    s_cbranch_scc1 Lk2_glue1
    s_add_u32 s71, s66, 3
    s_and_b32 s71, s71, s61
    s_barrier
    s_branch Lk2_glue_back
    Lk2_glue1:
    """)
    stamp(p, 13, True)
    kv2_dma(p)
    p("""
    s_mov_b32 s71, 2
    s_mov_b32 s47, 0x40000
    s_barrier
    """)
    stamp(p, 14, True)
    stamp(p, 15, True)
    p(f"""
    s_branch Lk2_glue_back
    Lk2_sync:
    v_add_u32 v{V_T0}, -4, v{V_LG}
    s_mov_b32 s46, 0
    Lk2_sync1:
    ds_read_b32 v{V_TN}, v{V_T0}
    s_add_u32 s46, s46, 1
    s_waitcnt lgkmcnt(0)
    v_readfirstlane_b32 s69, v{V_TN}
    s_cmp_gt_u32 s46, {1 << 22}
    s_cbranch_scc1 Lk2_sync_back
    s_cmp_lt_u32 s69, s47
    s_cbranch_scc1 Lk2_sync1
    s_branch Lk2_sync_back
    """)


def k2_tail_setup(p):
    p(f"""
    v_cmp_eq_u32 vcc, 0, v{V_G}
    v_mov_b32 v{NINF_B}, 0xff800000
    """)
    for k in range(16):
        p(f"v_cndmask_b32 v{NM1_B+k}, v{NINF_B}, v{NM_B+k}, vcc")
    p("s_nop 1")


def k2_slow_gather(p):
    t0, t1, t2 = V_T0, V_T1, V_T2
    B = OT
    p(f"""
    Lk2_g_rare:
    s_mov_b32 s59, 0
    s_mov_b32 s54, s32
    s_add_u32 s65, s32, 4096
    s_mov_b32 s67, 0
    """)
    for r in range(32):
        p(f"v_accvgpr_write_b32 a{GA_A+r}, 0")
    gather_consts(p)
    p(f"""
    Lk2_g_slow:
    s_waitcnt vmcnt(0) lgkmcnt(0)
    v_cmp_lt_u32 vcc, s59, v{CN}
    s_cbranch_vccz Lk2_g_back
    v_mov_b32 v{B}, 0xffff
    v_mov_b32 v{B+1}, 0xffff
    v_mov_b32 v{B+2}, 0xffff
    v_mov_b32 v{B+3}, 0xffff
    s_lshl_b32 s46, s59, 4
    s_add_u32 s46, s46, s60
    s_mov_b64 exec, vcc
    buffer_load_dwordx4 v[{B}:{B+3}], v{ST}, s[28:31], s46 offen
    s_mov_b64 exec, -1
    v_add_u32 v{t0}, s54, v{V_L16}
    ds_write_b128 v{t0}, v[{B}:{B+3}] offset:8192
    s_add_u32 s59, s59, 1
    s_mov_b32 s47, 8
    v_lshlrev_b32 v{t2}, 5, v{V_G}
    v_add_u32 v{t2}, s54, v{t2}
    s_waitcnt lgkmcnt(0)
    Lk2_g_loop:
    ds_read_b128 v[{E0}:{E0+3}], v{t2} offset:8192
    ds_read_b128 v[{E0+4}:{E0+7}], v{t2} offset:8208
    v_add_u32 v{t2}, 128, v{t2}
    s_mov_b32 m0, s54
    """)
    for i in range(8):
        if i == 4:
            p("s_mov_b32 m0, s65")
        p.extend([gmad8(i), gdma8(i)])
    for k in range(4):
        o = OH + k
        p(f"v_perm_b32 v{o}, v{E0+2*k+1}, v{E0+2*k}, s58")
        p(f"v_alignbit_b32 v{o}, v{o}, v{o}, v{V_ROT}")
        p(f"v_and_b32 v{o}, s57, v{o}")
    p("s_waitcnt vmcnt(0)")
    for dt in range(8):
        for u in range(2):
            p(f"ds_read_b64_tr_b16 {vr(GF_A+4*dt+2*u,2,'a')}, v{TA+dt} offset:{4096*u}")
    for dt in range(8):
        d = vr(GA_A + 4 * dt, 4, 'a')
        p(mf(d, vr(GF_A + 4 * dt, 4, 'a'), vr(OH, 4), d))
    p(f"""
    s_sub_u32 s47, s47, 1
    s_cmp_lg_u32 s47, 0
    s_cbranch_scc1 Lk2_g_loop
    s_branch Lk2_g_slow
    Lk2_g_back:
    s_nop 7
    s_branch Lk2_g_done
    """)


XR = 208
YA = 224
AGF = P_B + 16


def flag(j):
    return f"buffer_store_dword v{V_ROT}, v{V_LA}, s[28:31], s79 offen offset:{32*j}"


def tile_stores(j):
    gs = []
    for kk in range(4):
        o = O(j, 2 * kk)
        g = [I(f"v_cvt_pk_bf16_f32 v{o+h}, v{o+2*h}, v{o+2*h+1}") for h in range(4)]
        g.append(I(f"buffer_store_dwordx4 {vr(o,4)}, v{V_L16}, s[28:31], s{40+j} offen offset:{1024*kk}"))
        gs.append(g)
    o = O(j, 7)
    gs.append([I(f"v_sub_f32 v{o+2}, 0, v{NM(j)}"),
               I(f"buffer_store_dwordx2 {vr(o+2,2)}, v{V_T2}, s[28:31], s44 offen offset:{128*j}")])
    return gs


def k2_end(p, drain):
    p(f"""
    s_cmp_gt_i32 s62, 0
    s_cselect_b32 s46, 0, s61
    s_cmp_lg_u32 s46, -1
    s_cbranch_scc1 Lk2_g_rare
    Lk2_g_done:
    s_cmp_lg_u32 s67, 4
    s_cbranch_scc1 Lk2_w_rare
    Lk2_w_done:
    v_lshlrev_b32 v{V_T3}, 8, v{V_I}
    v_lshl_add_u32 v{V_T3}, v{V_G}, 4, v{V_T3}
    s_min_u32 s38, s36, 1000
    s_lshl_b32 s38, s38, 12
    s_mov_b32 s16, s74
    s_and_b32 s17, s75, 0xffff
    s_mov_b32 s18, {N*256}
    s_mov_b32 s19, 0x20000
    buffer_load_dwordx4 v[{XR}:{XR+3}], v{V_T3}, s[16:19], s38 offen
    buffer_load_dwordx4 v[{XR+4}:{XR+7}], v{V_T3}, s[16:19], s38 offen offset:64
    buffer_load_dwordx4 v[{XR+8}:{XR+11}], v{V_T3}, s[16:19], s38 offen offset:128
    buffer_load_dwordx4 v[{XR+12}:{XR+15}], v{V_T3}, s[16:19], s38 offen offset:192
    v_cmp_eq_u32 s[50:51], 3, v{V_G}
    v_lshlrev_b32 v{V_T0}, 3, v{V_I}
    v_mov_b32 v{V_T2}, 0x7fff0000
    s_mov_b32 s40, s56
    s_add_u32 s41, s56, 4096
    s_add_u32 s42, s56, 8192
    s_add_u32 s43, s56, 12288
    s_add_u32 s44, s56, 16384
    v_cndmask_b32 v{V_T2}, v{V_T2}, v{V_T0}, s[50:51]
    """)
    gs = tile_stores(0) + tile_stores(1) + tile_stores(2)
    flat = [x for g in gs for x in g]
    nm = 0
    for i in drain:
        p.extend([i])
        if i.kind == 'mfma':
            nm += 1
            for _ in range(3):
                if flat:
                    p.extend([flat.pop(0)])
    p.extend(flat)
    for g in tile_stores(3):
        p.extend(g)
    stamp(p, 10, True)
    stamp(p, 3)
    p(f"""
    s_mov_b32 s48, {hexf(2.0**100)}
    v_add_f32 v{V_LC}, v{O(0,7)+3}, v{O(1,7)+3}
    v_add_f32 v{V_KA}, v{O(2,7)+3}, v{O(3,7)+3}
    v_add_f32 v{V_KA}, v{V_LC}, v{V_KA}
    v_cmp_nlt_f32 vcc, v{V_KA}, s48
    s_lshl_b32 s47, s33, 2
    s_add_u32 s47, s47, {FLAG_OFF}
    s_and_b64 s[52:53], vcc, s[50:51]
    s_cselect_b32 s46, 1, 0
    v_mov_b32 v{V_LC}, s47
    v_mov_b32 v{V_KA}, s46
    ds_write_b32 v{V_LC}, v{V_KA}
    v_mov_b32 v{V_LC}, {FLAG_OFF}
    s_lshl_b32 s47, s33, 7
    s_lshl_b32 s48, s34, 2
    s_add_u32 s47, s47, s48
    s_add_u32 s79, s47, s78
    s_waitcnt lgkmcnt(0)
    s_barrier
    ds_read_b128 v[{S_B}:{S_B+3}], v{V_LC}
    v_lshlrev_b32 v{V_T1}, 26, v{V_LANE}
    v_or_b32 v{S_B}, v{S_B}, v{S_B+1}
    v_or3_b32 v{S_B}, v{S_B}, v{S_B+2}, v{S_B+3}
    v_readfirstlane_b32 s47, v{S_B}
    s_andn2_b32 s47, s47, s45
    s_cmp_lg_u32 s47, 0
    s_cbranch_scc1 Lk2_redo
    v_mov_b32 v{V_LA}, v{V_T1}
    v_mov_b32 v{V_ROT}, 1
    s_waitcnt vmcnt(15)
    {flag(0)}
    """)
    stamp(p, 4)
    p(f"""
    s_cmp_ge_u32 s36, {NBIN}
    s_cbranch_scc1 Lk2_nofinal
    """)
    return 1


def k2_nofinal(p, y):
    p(f"""
    Lk2_nofinal:
    s_waitcnt vmcnt(11)
    {flag(1)}
    s_waitcnt vmcnt(7)
    {flag(2)}
    s_waitcnt vmcnt(3)
    {flag(3)}
    {'s_branch Lk2_fin' if STAMPS else 's_endpgm'}
    Lk2_w_rare:
    s_sub_u32 s46, s32, {STG_OFF}
    s_add_u32 s46, s46, {WIMG_OFF}
    s_mov_b32 m0, s32
    s_mov_b32 s47, 0
    Lk2_w_loop:
    buffer_load_dwordx4 v{V_L16}, s[28:31], s46 offen lds
    s_add_u32 m0, m0, 1024
    s_add_u32 s46, s46, 1024
    s_add_u32 s47, s47, 1
    s_cmp_lt_u32 s47, 16
    s_cbranch_scc1 Lk2_w_loop
    """)
    side_loads(p)
    p("""
    s_waitcnt vmcnt(0)
    s_branch Lk2_w_done
    """)


def k2_final(p, y):
    STT = 192
    PT = O_B
    O6 = 96
    OF = 128
    WF = 144
    CO = 144
    L = 156
    QT = 128
    KT = 144
    VT = 224
    P2 = lambda r: f"v[{r}:{r+1}]"
    p(f"""
    v_add_u32 v{V_T1}, {STG_OFF}, v{V_L16}
    v_lshlrev_b32 v{V_KA}, 16, v{DEG}
    v_mul_f32 v{V_KA}, 0.5, v{V_KA}
    v_add_u32 v{V_KL}, {TAIL_OFF}, v{V_KL}
    v_add_u32 v{V_VL}, {TAIL_OFF}, v{V_VL}
    v_add_u32 v{V_LC}, s49, v{V_L16}
    s_mov_b32 s48, 0xffff0000
    s_lshr_b32 s46, s36, 2
    s_mul_i32 s46, s46, {BLKB}
    s_add_u32 s46, s46, {PART_OFF}
    s_and_b32 s47, s36, 3
    s_lshl_b32 s59, s47, 12
    s_add_u32 s59, s59, s46
    s_lshl_b32 s60, s47, 7
    s_add_u32 s60, s60, s46
    s_add_u32 s60, s60, 16384
    """)
    for ks in range(4):
        p(f"ds_read_b128 {vr(QT+4*ks,4,'a')}, v{V_LC} offset:{1024*ks}")
    for k in range(16):
        t = P_B + 8 + 2 * (k & 3)
        p(f"v_accvgpr_read_b32 v{t}, a{GA_A+2*k}")
        p(f"v_accvgpr_read_b32 v{t+1}, a{GA_A+2*k+1}")
        p(f"v_mul_f32 v{t}, v{t}, v{V_KA}")
        p(f"v_mul_f32 v{t+1}, v{t+1}, v{V_KA}")
        p(f"v_cvt_pk_bf16_f32 v{AGF+k}, v{t}, v{t+1}")
    p("s_waitcnt vmcnt(11)")
    p(flag(1))
    stamp(p, 5)
    for u in range(2):
        for ks in range(4):
            p(f"ds_read_b128 {vr(KT+(u*4+ks)*4,4,'a')}, v{V_KL} offset:{4096*u+1024*ks}")
    for dt in range(8):
        for u in range(2):
            p(f"ds_read_b64_tr_b16 {vr(VT+4*dt+2*u,2,'a')}, v{V_VL} offset:{4096*u+512*dt}")
    SS = STT
    for u in range(2):
        d = vr(SS + 4 * u, 4)
        for ks in range(4):
            p(mf(d, vr(KT + (u * 4 + ks) * 4, 4, 'a'), vr(QT + 4 * ks, 4, 'a'), '0' if ks == 0 else d))
    for k in range(16):
        p(f"v_lshlrev_b32 v{YA+2*k}, 16, v{XR+k}")
        p(f"v_and_b32 v{YA+2*k+1}, s48, v{XR+k}")
    p("s_waitcnt vmcnt(7)")
    p(flag(2))
    M6 = STT + 10
    p(f"""
    v_cmp_eq_u32 vcc, 0, v{V_G}
    v_mov_b32 v{V_KA}, 0xff800000
    """)
    for r in range(4):
        p(f"v_cndmask_b32 v{SS+4+r}, v{V_KA}, v{SS+4+r}, vcc")
    p(f"""
    v_max3_f32 v{M6}, v{SS}, v{SS+1}, v{SS+2}
    v_max3_f32 v{M6}, v{M6}, v{SS+3}, v{SS+4}
    v_max3_f32 v{M6}, v{M6}, v{SS+5}, v{SS+6}
    v_max_f32 v{M6}, v{M6}, v{SS+7}
    """)
    allreduce_g(p, M6, V_KA, 'v_max_f32')
    for r in range(8):
        p(f"v_sub_f32 v{SS+r}, v{SS+r}, v{M6}")
    for r in range(8):
        p(f"v_exp_f32 v{SS+r}, v{SS+r}")
    for r in range(4):
        p(f"v_cvt_pk_bf16_f32 v{OF+r}, v{SS+2*r}, v{SS+2*r+1}")
    for dt in range(8):
        p(mf(vr(O6 + 4 * dt, 4), vr(VT + 4 * dt, 4, 'a'), vr(OF, 4), '0'))
    p("s_waitcnt vmcnt(3)")
    p(flag(3))
    for ft in range(8):
        for kk in range(4):
            p(f"ds_read_b128 {vr((ft*4+kk)*4,4,'a')}, v{V_T1} offset:{32768+4096*ft+1024*kk}")

    def rd(ft, buf):
        b = WF + 16 * buf
        for kk in range(4):
            p(f"ds_read_b128 v[{b+4*kk}:{b+4*kk+3}], v{V_T1} offset:{4096*ft+1024*kk}")
    rd(0, 0)
    bcast_g3(p, O6 + 31, M6 + 1, V_KA)
    p(f"""
    v_min_u32 v{V_LC}, 4, v{V_LANE}
    v_lshlrev_b32 v{V_LC}, 2, v{V_LC}
    s_and_b32 s46, s36, 15
    s_lshl_b32 s46, s46, 5
    s_add_u32 s46, s46, s78
    s_mov_b32 s47, 0
    buffer_load_dword v{V_T2}, v{V_LC}, s[28:31], s46 offen sc1
    """)
    for ft in range(8):
        if ft < 7:
            rd(ft + 1, (ft + 1) & 1)
        b = WF + 16 * (ft & 1)
        d = vr(YA + 4 * ft, 4)
        for kk in range(4):
            p(mf(d, vr(b + 4 * kk, 4), vr(AGF + 4 * kk, 4), d))
    srd(p, 20, 76, N * 256)
    for s in range(1, 5):
        p(f"s_add_u32 s{40+s}, s59, {PART_STRIDE*s}")
    p(f"""
    s_branch Lk2_poll1
    Lk2_poll:
    buffer_load_dword v{V_T2}, v{V_LC}, s[28:31], s46 offen sc1
    s_add_u32 s47, s47, 1
    Lk2_poll1:
    s_waitcnt vmcnt(0)
    v_cmp_ne_u32 vcc, 1, v{V_T2}
    s_cmp_gt_u32 s47, {POLL_LIMIT}
    s_cbranch_scc1 Lk2_fetch
    s_cbranch_vccnz Lk2_poll
    Lk2_fetch:
    """)
    stamp(p, 6)
    p("s_mov_b32 s46, s60")
    for s in range(5):
        p(f"buffer_load_dwordx2 v[{STT+2*s}:{STT+2*s+1}], v{V_T0}, s[28:31], s46 offen sc1")
        if s < 4:
            p(f"s_add_u32 s46, s46, {PART_STRIDE}")
    for kk in range(4):
        for s in range(5):
            b = PT + 16 * s + 4 * kk
            p(f"buffer_load_dwordx4 v[{b}:{b+3}], v{V_L16}, s[28:31], s{59 if s == 0 else 40+s} offen offset:{1024*kk} sc1")
    tiny = hexf(2.0 ** -120)
    R6 = range(6)
    for s in range(5):
        p(f"v_max_f32 v{STT+2*s+1}, {tiny}, v{STT+2*s+1}")
    for s in R6:
        p(f"v_log_f32 v{L+s}, v{STT+2*s+1}")
    for s in R6:
        p(f"v_add_f32 v{L+s}, v{L+s}, v{STT+2*s}")
    T = V_T2
    p(f"""
    v_max3_f32 v{T}, v{L}, v{L+1}, v{L+2}
    v_max3_f32 v{T}, v{T}, v{L+3}, v{L+4}
    v_max_f32 v{T}, v{T}, v{L+5}
    """)
    for s in R6:
        p(f"v_sub_f32 v{L+s}, v{L+s}, v{T}")
    for s in R6:
        p(f"v_exp_f32 v{L+s}, v{L+s}")
    for s in R6:
        p(f"v_rcp_f32 v{STT+2*s}, v{STT+2*s+1}")
    p(f"""
    v_add_f32 v{T}, v{L}, v{L+1}
    v_add_f32 v{V_KA}, v{L+2}, v{L+3}
    v_add_f32 v{T}, v{T}, v{L+4}
    v_add_f32 v{V_KA}, v{V_KA}, v{L+5}
    v_add_f32 v{T}, v{T}, v{V_KA}
    v_rcp_f32 v{T}, v{T}
    """)
    for s in R6:
        p(f"v_mul_f32 v{L+s}, v{L+s}, v{T}")
    for s in R6:
        p(f"v_mul_f32 v{CO+2*s}, v{L+s}, v{STT+2*s}")
    for k in range(16):
        p(f"v_pk_mul_f32 {P2(O6+2*k)}, {P2(O6+2*k)}, {P2(CO+10)} op_sel_hi:[1,0]")
    pend = []
    for kk in range(4):
        oa = O6 + 8 * kk
        n = 0
        for s in range(5):
            for q in range(4):
                r = PT + 16 * s + 4 * kk + q
                t = STT + 2 * (n & 3)
                p(f"v_lshlrev_b32 v{t}, 16, v{r}")
                p(f"v_and_b32 v{t+1}, s48, v{r}")
                p(f"v_pk_fma_f32 {P2(oa+2*q)}, {P2(t)}, {P2(CO+2*s)}, {P2(oa+2*q)} op_sel_hi:[1,0,1]")
                n += 1
                if pend and n % 2 == 0:
                    p(pend.pop(0))
        for x in pend:
            p(x)
        for q in range(4):
            p(f"v_cvt_pk_bf16_f32 v{OF+4*kk+q}, v{oa+2*q}, v{oa+2*q+1}")
        pend = [mf(vr(YA + 4 * ft, 4), vr((ft * 4 + kk) * 4, 4, 'a'), vr(OF + 4 * kk, 4), vr(YA + 4 * ft, 4)) for ft in range(8)]
    for x in pend:
        p(x)
    for k in range(16):
        p(f"v_cvt_pk_bf16_f32 v{PT+k}, v{YA+2*k}, v{YA+2*k+1}")
        if k % 4 == 3:
            kk = k // 4
            p(f"buffer_store_dwordx4 v[{PT+4*kk}:{PT+4*kk+3}], v{V_T3}, s[20:23], s38 offen offset:{64*kk}")
    if STAMPS:
        p("s_branch Lk2_fin2")
        p("Lk2_fin:")
        p("s_mov_b32 s85, s84")
        p("s_mov_b32 s86, s84")
        p("Lk2_fin2:")
    stamp(p, 7)
    if STAMPS:
        p("s_waitcnt vmcnt(0)")
    stamp(p, 8)
    if STAMPS:
        p("s_mov_b32 s92, s68")
    stamp_flush(p, 1, 16)
    p("s_endpgm")


def gen_k2():
    mid, tail, drain = gen_loop_variants()
    s = f"""  s_cmp_ge_u32 s2, {K2_NWG}
  s_cbranch_scc1 Lk2_exit
"""
    a = Prog()
    k2_setup(a)
    k2_prologue(a)
    s += emit(a.finish())
    g = Prog()
    k2_glue(g)
    s += "  s_branch Lk2_loop\n" + emit(g.finish())
    s += ".p2align 6\nLk2_loop:\n" + emit(mid) + "  s_cbranch_scc1 Lk2_loop\nLk2_endcode:\n"
    c = Prog()
    stamp(c, 11, True)
    c("s_waitcnt lgkmcnt(0)")
    y = k2_end(c, [x for x in drain if x.kind != 'nop'])
    k2_final(c, y)
    cc = auto_wait(c.ins)
    cc, _ = pad_hazards(cc, pre=mid[-30:])
    s += emit(cc)
    e = Prog()
    k2_nofinal(e, y)
    s += emit(e.finish())
    d = Prog()
    d("Lk2_redo:")
    d("s_mov_b32 s45, 1")
    d("s_mov_b32 s66, 0")
    d("s_mov_b32 s61, -1")
    d("s_mov_b32 s71, 0")
    d("s_waitcnt vmcnt(0) lgkmcnt(0)")
    d("s_barrier")
    k2_maxpass(d)
    d("s_branch Lk2_run")
    s += emit(d.finish())
    e = Prog()
    k2_slow_gather(e)
    s += emit(e.finish())
    s += "Lk2_exit:\n  s_endpgm\n"
    return s
```

```python
from common import *

NWV = K1T // 64
NLN = 196
K1_NWG = G + NLN
K1_LDS = 65536
K1_NREC = K1_NWG * NWV


def bf16_round(p, v, t):
    p(f"""
    v_cvt_pk_bf16_f32 v{t}, v{v}, v{v}
    v_lshlrev_b32 v{v}, 16, v{t}
    """)


def pk_rowsum(p, B, T):
    P2 = lambda r: f"v[{r}:{r+1}]"
    for c in range(4):
        p(f"v_pk_add_f32 {P2(T+2*c)}, {P2(B+2*c)}, {P2(B+8+2*c)}")
    for k in range(8, 16):
        c = k & 3
        p(f"v_pk_add_f32 {P2(T+2*c)}, {P2(T+2*c)}, {P2(B+2*k)}")
    p(f"""
    v_pk_add_f32 {P2(T)}, {P2(T)}, {P2(T+2)}
    v_pk_add_f32 {P2(T+4)}, {P2(T+4)}, {P2(T+6)}
    v_pk_add_f32 {P2(T)}, {P2(T)}, {P2(T+4)}
    v_add_f32 v{T}, v{T}, v{T+1}
    """)
    allreduce_g(p, T, T + 1)


def k1_ln(p):
    stamp(p, 0)
    p(f"""
    s_load_dwordx2 s[4:5], s[0:1], {A_X}
    s_load_dwordx4 s[8:11], s[0:1], {A_WQ}
    s_load_dwordx2 s[12:13], s[0:1], {A_WS}
    v_and_b32 v1, 63, v0
    """)
    if os.environ.get('PF1', '1') == '1':
        code_prefetch(p, "Lk1_pfstart", 1, 1, 198, 14)
    p(f"""
    Lk1_pfstart:
    v_lshrrev_b32 v7, 6, v0
    v_lshrrev_b32 v2, 4, v1
    v_and_b32 v3, 15, v1
    v_readfirstlane_b32 s33, v7
    s_sub_u32 s34, s2, {G}
    s_lshl_b32 s34, s34, 2
    v_lshlrev_b32 v4, 8, v3
    v_lshl_add_u32 v4, v2, 4, v4
    s_add_u32 s34, s34, s33
    s_lshl_b32 s35, s34, 12
    s_waitcnt lgkmcnt(0)
    """)
    srd(p, 16, 4, N * 256)
    for ks in range(4):
        p(f"buffer_load_dwordx4 v[{8+4*ks}:{11+4*ks}], v4, s[16:19], s35 offen offset:{64*ks}")
    srd(p, 20, 8, 32768)
    srd(p, 24, 10, 32768)
    srd(p, 28, 12, WS_SIZE)
    p("s_barrier")
    p(f"""
    v_lshlrev_b32 v5, 2, v2
    v_xor_b32 v5, v5, v3
    v_lshlrev_b32 v5, 4, v5
    v_lshl_add_u32 v5, v2, 8, v5
    s_lshl_b32 s36, s33, 13
    s_mov_b32 m0, s36
    s_add_u32 s37, s36, 4096
    """)
    for j in range(4):
        p(f"buffer_load_dwordx4 v5, s[20:23], s36 offen offset:{1024*j} lds")
    p("s_mov_b32 m0, s37")
    for j in range(4):
        p(f"buffer_load_dwordx4 v5, s[20:23], s37 offen offset:{1024*j} lds")
    p(f"""
    s_lshl_b32 s38, s33, 2
    v_xor_b32 v6, v3, v2
    v_xor_b32 v6, s38, v6
    v_lshlrev_b32 v6, 4, v6
    v_lshl_add_u32 v6, v2, 8, v6
    s_lshl_b32 s38, s33, 11
    """)
    for a in range(4):
        p(f"""
        s_add_u32 s39, s38, {8192*a}
        s_add_u32 s40, s39, 32768
        s_mov_b32 m0, s40
        s_nop 0
        buffer_load_dwordx4 v6, s[24:27], s39 offen lds
        buffer_load_dwordx4 v6, s[24:27], s39 offen offset:1024 lds
        """)
    T = 232
    A1 = 240
    A2 = 244
    X = 248
    p(f"""
    v_bfe_u32 v{T}, v1, 2, 2
    v_and_b32 v{T+1}, 3, v1
    v_lshl_add_u32 v{T+2}, v2, 3, v{T}
    v_lshlrev_b32 v{T+2}, 8, v{T+2}
    v_lshl_add_u32 v{T+2}, v{T+1}, 4, v{T+2}
    v_lshl_add_u32 v{A1}, v{T}, 6, v{T+2}
    v_xor_b32 v{A1+1}, 64, v{A1}
    v_xor_b32 v{A1+2}, 128, v{A1}
    v_xor_b32 v{A1+3}, 192, v{A1}
    v_lshrrev_b32 v{A2}, 2, v3
    v_lshlrev_b32 v{A2}, 3, v{A2}
    v_and_b32 v{T}, 3, v3
    v_add_u32 v{A2}, v{A2}, v{T}
    v_lshlrev_b32 v{A2}, 8, v{A2}
    v_xor_b32 v{T}, v2, v3
    v_lshl_add_u32 v{A2}, v{T}, 4, v{A2}
    v_add_u32 v{A2}, 32768, v{A2}
    v_xor_b32 v{A2+1}, 64, v{A2}
    v_xor_b32 v{A2+2}, 128, v{A2}
    v_xor_b32 v{A2+3}, 192, v{A2}
    v_cmp_eq_u32 s[42:43], 3, v2
    v_lshlrev_b32 v5, 4, v1
    v_lshlrev_b32 v6, 2, v3
    s_add_u32 s45, s35, {HROW_OFF}
    s_add_u32 s46, s35, {QIMG_OFF}
    s_lshl_b32 s47, s34, 6
    s_add_u32 s47, s47, {MZ_OFF}
    s_cmp_eq_u32 s34, {N // 16}
    s_cselect_b32 s48, 0, 4
    v_cmp_lt_u32 s[50:51], s48, v2
    s_mov_b32 s41, 0xffff0000
    s_waitcnt vmcnt(16)
    """)
    stamp(p, 1)
    stamp(p, 9, True)
    F = 24
    HB, HT, QA, WS, QF, UA = 56, 72, 88, 120, 8, 24
    P2 = lambda r: f"v[{r}:{r+1}]"
    for k in range(16):
        p(f"v_lshlrev_b32 v{F+2*k}, 16, v{8+k}")
        p(f"v_and_b32 v{F+2*k+1}, s41, v{8+k}")
    pk_rowsum(p, F, T)
    p(f"v_mul_f32 v{T}, {hexf(1.0/128)}, v{T}")
    for k in range(16):
        p(f"v_pk_add_f32 {P2(F+2*k)}, {P2(F+2*k)}, {P2(T)} op_sel_hi:[1,0] neg_lo:[0,1] neg_hi:[0,1]")
    p("""
    s_waitcnt vmcnt(8)
    s_barrier
    """)

    def loads(n):
        b = WS + 16 * (n % 7)
        if n < 8:
            return [f"ds_read_b64_tr_b16 v[{b+4*ks+2*u}:{b+4*ks+2*u+1}], v{A1+(n>>1)} offset:{8192*ks+1024*u+8*(n&1)}"
                    for ks in range(4) for u in range(2)]
        t = n - 8
        return [f"ds_read_b128 v[{b+4*kk}:{b+4*kk+3}], v{A2+kk} offset:{8192*(t>>1)+1024*(t&1)}" for kk in range(4)]
    q = Prog()
    for c in range(4):
        q(f"v_pk_mul_f32 {P2(T+2*c)}, {P2(F+2*c)}, {P2(F+2*c)}")
    for k in range(4, 16):
        c = k & 3
        q(f"v_pk_fma_f32 {P2(T+2*c)}, {P2(F+2*k)}, {P2(F+2*k)}, {P2(T+2*c)}")
    q(f"""
    v_pk_add_f32 {P2(T)}, {P2(T)}, {P2(T+2)}
    v_pk_add_f32 {P2(T+4)}, {P2(T+4)}, {P2(T+6)}
    v_pk_add_f32 {P2(T)}, {P2(T)}, {P2(T+4)}
    v_add_f32 v{T}, v{T}, v{T+1}
    """)
    allreduce_g(q, T, T + 1)
    bcast_g3(q, F + 31, T + 2, T + 3)
    q(f"v_mul_f32 v{T}, {hexf(1.0/128)}, v{T}")
    bf16_round(q, T, T + 1)
    q(f"v_add_f32 v{T}, {hexf(1e-5)}, v{T}")
    bf16_round(q, T, T + 1)
    q(f"v_sqrt_f32 v{T}, v{T}")
    bf16_round(q, T, T + 1)
    q(f"v_rcp_f32 v{T}, v{T}")
    q(f"v_mul_f32 v{T+2}, {hexf(CH)}, v{T+2}")
    q(f"v_mul_f32 v{T+2}, v{T+2}, v{T}")
    for k in range(16):
        x = X + 2 * (k & 3)
        q(f"v_pk_mul_f32 {P2(x)}, {P2(F+2*k)}, {P2(T)} op_sel_hi:[1,0]")
        q(f"v_cvt_pk_bf16_f32 v{HB+k}, v{x}, v{x+1}")
    dq = [l for n in range(7) for l in loads(n)]
    for i in q.ins:
        p.extend([i])
        if dq:
            p(dq.pop(0))
    for l in dq:
        p(l)
    stamp(p, 2)
    stamp(p, 10, True)
    fl = []
    for k in range(16):
        x = X + 2 * (k & 3)
        fl.append(f"v_pk_fma_f32 {P2(x)}, {P2(F+2*k)}, {P2(T)}, {P2(T+2)} op_sel_hi:[1,0,0]")
        if k == 15:
            fl.append(f"v_cndmask_b32 v{x+1}, v{x+1}, 1.0, s[42:43]")
        fl.append(f"v_cvt_pk_bf16_f32 v{HT+k}, v{x}, v{x+1}")
        if k % 4 == 3:
            ks = k // 4
            fl.append(f"buffer_store_dwordx4 v[{HT+4*ks}:{HT+4*ks+3}], v4, s[28:31], s45 offen offset:{64*ks}")
    for n in range(16):
        b = WS + 16 * (n % 7)
        if n == 1:
            p("s_waitcnt vmcnt(0)")
            p("s_barrier")
        if n == 8:
            stamp(p, 12, True)
            for l in fl:
                p(l)
            fl = []
            for k in range(12, 16):
                p(f"v_cvt_pk_bf16_f32 v{QF+k}, v{QA+2*k}, v{QA+2*k+1}")
        acc, B = (QA + 4 * n, HB) if n < 8 else (UA + 4 * (n - 8), QF)
        d = vr(acc, 4)
        for ks in range(4):
            p(mf(d, vr(b + 4 * ks, 4), vr(B + 4 * ks, 4), '0' if ks == 0 else d))
            if n >= 1:
                for _ in range(2):
                    if fl:
                        p(fl.pop(0))
        if n + 7 < 16:
            fl = loads(n + 7) + fl
        if 2 <= n < 8:
            t = n - 2
            fl = [f"v_cvt_pk_bf16_f32 v{QF+2*t+h}, v{QA+4*t+2*h}, v{QA+4*t+2*h+1}" for h in range(2)] + fl
        if n >= 11:
            t = n - 10
            for h in range(2):
                if t == 1:
                    fl.append(f"v_pk_add_f32 {P2(T+2*h)}, {P2(UA+2*h)}, {P2(UA+4+2*h)}")
                else:
                    fl.append(f"v_pk_add_f32 {P2(T+2*h)}, {P2(T+2*h)}, {P2(UA+4*t+2*h)}")
    for l in fl:
        p(l)
    stamp(p, 13, True)
    for t in (6, 7):
        for h in range(2):
            p(f"v_pk_add_f32 {P2(T+2*h)}, {P2(T+2*h)}, {P2(UA+4*t+2*h)}")
    p(f"""
    v_pk_add_f32 {P2(T)}, {P2(T)}, {P2(T+2)}
    v_add_f32 v{T}, v{T}, v{T+1}
    """)
    k1c = (1.0 + CH) / RT128 * QSCALE
    k2c = -CH / RT128 * QSCALE
    p(f"""
    v_mul_f32 v{T+2}, {hexf(k1c)}, v{UA+31}
    v_mul_f32 v{T}, {hexf(k2c)}, v{T}
    v_cndmask_b32 v{T+2}, 0, v{T+2}, s[42:43]
    v_add_f32 v{T}, v{T}, v{T+2}
    v_mov_b32 v{T+2}, {hexf(QSCALE)}
    """)
    allreduce_g(p, T, T + 1)
    for k in range(16):
        p(f"v_pk_fma_f32 {P2(UA+2*k)}, {P2(UA+2*k)}, {P2(T+2)}, {P2(T)} op_sel_hi:[1,0,0]")
        if k == 15:
            p(f"v_cndmask_b32 v{UA+31}, v{UA+31}, 0, s[42:43]")
        p(f"v_cvt_pk_bf16_f32 v{QF+k}, v{UA+2*k}, v{UA+2*k+1}")
        if k % 4 == 3:
            ks = k // 4
            p(f"buffer_store_dwordx4 v[{QF+4*ks}:{QF+4*ks+3}], v5, s[28:31], s46 offen offset:{1024*ks}")
            p(mf(vr(X, 4), vr(HT + 4 * ks, 4), vr(QF + 4 * ks, 4), '0' if ks == 0 else vr(X, 4)))
    p(f"""
    v_mov_b32 v{T+1}, 0xff800000
    v_max3_f32 v{T}, v{X}, v{X+1}, v{X+2}
    v_max_f32 v{T}, v{T}, v{X+3}
    v_cndmask_b32 v{T}, v{T}, v{T+1}, s[50:51]
    """)
    allreduce_g(p, T, T + 1, 'v_max_f32')
    p(f"""
    v_sub_f32 v{T}, {hexf(-MARGIN)}, v{T}
    buffer_store_dword v{T}, v6, s[28:31], s47 offen
    """)
    stamp(p, 3)
    stamp(p, 11, True)
    if STAMPS:
        p("s_waitcnt vmcnt(0)")
    stamp(p, 4)
    stamp_flush(p, 0, 14, nw=NWV)
    p("s_endpgm")


def mf(d, a, b, c):
    return f"v_mfma_f32_16x16x32_bf16 {d}, {a}, {b}, {c}"


def k1_bin(p):
    RS = K1T * 16
    NR = (EPW * 4 + RS - 1) // RS
    STG = 8192
    NO = ((EPW + 3 * 784 + 8) * 4 + RS - 1) // RS
    NF = NO
    TOT = STG + (EPW + 3 * 784 + 2 * RS // 4 + 512) * 4 // 16 * 16
    assert TOT + 64 <= K1_LDS and NO * RS <= ENT_STRIDE
    NE = 4 * NR
    stamp(p, 0)
    p(f"""
    s_load_dwordx4 s[4:7], s[0:1], {A_SRC}
    s_load_dwordx2 s[12:13], s[0:1], {A_WS}
    v_lshlrev_b32 v1, 4, v0
    v_lshrrev_b32 v7, 6, v0
    v_mov_b64 v[8:9], 0
    v_mov_b64 v[10:11], 0
    v_readfirstlane_b32 s33, v7
    ds_write_b128 v1, v[8:11]
    s_mul_i32 s34, s2, {EPW*4}
    v_mov_b32 v12, 0xffff
    v_mov_b32 v13, v12
    v_mov_b32 v14, v12
    v_mov_b32 v15, v12
    s_waitcnt lgkmcnt(0)
    """)
    srd(p, 20, 6, E * 4)
    DS = 16
    SR = 44
    RK = 72
    BA = 100
    for r in range(NR):
        p(f"s_add_u32 s35, s34, {RS*r}")
        p(f"buffer_load_dwordx4 v[{DS+4*r}:{DS+4*r+3}], v1, s[20:23], s35 offen")
    srd(p, 16, 4, E * 4)
    for r in range(NR):
        p(f"s_add_u32 s35, s34, {RS*r}")
        p(f"buffer_load_dwordx4 v[{SR+4*r}:{SR+4*r+3}], v1, s[16:19], s35 offen")
    srd(p, 28, 12, WS_SIZE)
    for r in range(NF):
        p(f"ds_write_b128 v1, v[12:15] offset:{STG+RS*r}")
    p(f"""
    v_and_b32 v2, 0xf0, v1
    s_lshl_b32 s35, s2, 8
    s_add_u32 s35, s35, {CNT_OFF}
    s_add_u32 s36, s35, {NULLG_OFF - CNT_OFF}
    v_and_b32 v4, 63, v0
    v_lshlrev_b32 v4, 2, v4
    v_add_u32 v4, {784*4}, v4
    v_lshlrev_b32 v3, 2, v0
    s_mov_b32 s43, 0x10000
    s_movk_i32 s44, {783*4}
    s_mov_b32 s45, -4
    s_mul_i32 s46, s2, {EPW}
    s_sub_u32 s46, {E}, s46
    s_min_u32 s46, s46, {EPW}
    s_cmp_lg_u32 s33, 0
    s_cbranch_scc1 Lk1_b0
    buffer_store_dwordx4 v[8:11], v2, s[28:31], s35 offen
    buffer_store_dwordx4 v[12:15], v2, s[28:31], s36 offen
    v_and_b32 v2, 0x1f0, v1
    s_lshl_b32 s35, s2, 9
    s_add_u32 s35, s35, {FLG_OFF}
    buffer_store_dwordx4 v[8:11], v2, s[28:31], s35 offen
    s_waitcnt vmcnt({2 + 2*NR - 1} - 1)
    Lk1_b0:
    v_mov_b32 v2, 1
    s_waitcnt lgkmcnt(0)
    s_barrier
    """.replace(f"s_waitcnt vmcnt({2 + 2*NR - 1} - 1)\n", ""))
    return_marker = len(p.ins)
    for r in range(NR):
        p(f"s_waitcnt vmcnt({2*NR - 1 - r})")
        for k in range(4):
            e = 4 * r + k
            p(f"v_lshrrev_b32 v{BA+e}, 2, v{DS+e}")
            p(f"v_and_b32 v{BA+e}, s45, v{BA+e}")
            p(f"v_min_u32 v{BA+e}, s44, v{BA+e}")
            if r == NR - 1:
                assert E - (G - 1) * EPW > (RS // 4) * (NR - 1)
                p(f"""
                s_sub_u32 s47, s46, {(RS//4)*(NR-1) + k}
                v_cmp_gt_u32 vcc, s47, v3
                v_cndmask_b32 v{BA+e}, v4, v{BA+e}, vcc
                """)
            p(f"ds_add_rtn_u32 v{RK+e}, v{BA+e}, v2")
    stamp(p, 1)
    p("s_waitcnt vmcnt(0)")
    for e in range(NE):
        p(f"v_and_b32 v{DS+e}, 15, v{DS+e}")
        p(f"v_lshl_or_b32 v{DS+e}, s43, v{DS+e}, v{SR+e}")
    p(f"""
    s_waitcnt lgkmcnt(0)
    s_barrier
    ds_read_b128 v[8:11], v1
    s_lshl_b32 s37, s33, 2
    s_add_u32 s37, s37, {TOT}
    v_mov_b32 v6, s37
    v_add_u32 v8, 3, v8
    v_add_u32 v9, 3, v9
    v_add_u32 v10, 3, v10
    v_add_u32 v11, 3, v11
    v_and_b32 v8, -4, v8
    v_and_b32 v9, -4, v9
    v_and_b32 v10, -4, v10
    v_and_b32 v11, -4, v11
    v_add_u32 v13, v8, v9
    v_add_u32 v14, v13, v10
    v_add_u32 v15, v14, v11
    v_mov_b32 v5, v15
    v_add_u32_dpp v5, v5, v5 row_shr:1 row_mask:0xf bank_mask:0xf
    v_add_u32_dpp v5, v5, v5 row_shr:2 row_mask:0xf bank_mask:0xf
    v_add_u32_dpp v5, v5, v5 row_shr:4 row_mask:0xf bank_mask:0xf
    v_add_u32_dpp v5, v5, v5 row_shr:8 row_mask:0xf bank_mask:0xf
    v_add_u32_dpp v5, v5, v5 row_bcast:15 row_mask:0xa bank_mask:0xf
    v_add_u32_dpp v5, v5, v5 row_bcast:31 row_mask:0xc bank_mask:0xf
    v_readlane_b32 s36, v5, 63
    v_mov_b32 v4, s36
    ds_write_b32 v6, v4
    v_mov_b32 v6, {TOT}
    s_cmp_gt_u32 s33, 0
    s_cselect_b32 s38, -1, 0
    s_cmp_gt_u32 s33, 1
    s_cselect_b32 s39, -1, 0
    s_cmp_gt_u32 s33, 2
    s_cselect_b32 s40, -1, 0
    v_sub_u32 v5, v5, v15
    s_waitcnt lgkmcnt(0)
    s_barrier
    ds_read_b128 v[128:131], v6
    s_lshl_b32 s41, s2, 13
    s_add_u32 s41, s41, {OFFT_OFF}
    v_and_b32 v128, s38, v128
    v_and_b32 v129, s39, v129
    v_and_b32 v130, s40, v130
    v_add3_u32 v5, v5, v128, v129
    v_add_u32 v132, v5, v130
    v_add_u32 v133, v132, v8
    v_add_u32 v134, v132, v13
    v_add_u32 v135, v132, v14
    ds_write_b128 v1, v[132:135]
    buffer_store_dwordx4 v[132:135], v1, s[28:31], s41 offen
    s_waitcnt lgkmcnt(0)
    s_barrier
    """)
    stamp(p, 2)
    for e in range(NE):
        p(f"ds_read_b32 v{BA+e}, v{BA+e}")
    for e in range(NE):
        p(f"v_add_lshl_u32 v{BA+e}, v{BA+e}, v{RK+e}, 2")
        p(f"ds_write_b32 v{BA+e}, v{DS+e} offset:{STG}")
    p(f"""
    s_mul_i32 s42, s2, {ENT_STRIDE}
    s_add_u32 s42, s42, {ENT_OFF}
    s_waitcnt lgkmcnt(0)
    s_barrier
    """)
    for r in range(NO):
        p(f"ds_read_b128 v[{SR+4*r}:{SR+4*r+3}], v1 offset:{STG+RS*r}")
    for r in range(NO):
        p(f"s_add_u32 s35, s42, {RS*r}")
        p(f"buffer_store_dwordx4 v[{SR+4*r}:{SR+4*r+3}], v1, s[28:31], s35 offen")
    stamp(p, 3)
    if STAMPS:
        p("s_waitcnt vmcnt(0)")
    stamp(p, 4)
    stamp_flush(p, 0, 5, nw=NWV)
    p("s_endpgm")


def gen_k1():
    h = Prog()
    h(f"""
    v_lshrrev_b32 v7, 6, v0
    s_cmp_lt_u32 s2, {G}
    v_readfirstlane_b32 s33, v7
    s_cbranch_scc1 Lk1_bin
    s_cmp_lt_u32 s2, {K1_NWG}
    s_cselect_b32 s3, 4, 0
    s_cmp_lt_u32 s33, s3
    s_cbranch_scc1 Lk1_ln
    s_endpgm
    """)
    a = Prog()
    k1_bin(a)
    b = Prog()
    k1_ln(b)
    body = emit(h.ins) + "Lk1_bin:\n" + emit(a.finish()) + "Lk1_ln:\n" + emit(b.finish())
    return body
```

```python
from k2loop import *

MF32 = "v_mfma_f32_32x32x16_bf16"
POLL_LIMIT = 1 << 22


MAP = os.environ.get('MAP', '3')
if MAP == '5':
    MAPCODE = """s_mul_i32 s35, s2, 13108
    s_lshr_b32 s35, s35, 16
    s_mul_i32 s3, s35, 5
    s_sub_u32 s34, s2, s3"""
elif MAP == '1':
    MAPCODE = """s_and_b32 s3, s2, 7
    s_lshr_b32 s4, s2, 3
    s_mul_i32 s5, s3, 31
    s_add_u32 s5, s5, s4
    s_max_u32 s3, s3, 5
    s_sub_u32 s3, s3, 5
    s_sub_u32 s5, s5, s3
    s_mul_i32 s35, s5, 13108
    s_lshr_b32 s35, s35, 16
    s_mul_i32 s3, s35, 5
    s_sub_u32 s34, s5, s3"""
else:
    sh = {'2': (0, 0, 0, 1, 1), '3': (0, 0, 3, 3, 6), '2b': (0, 0, 0, 4, 4)}[MAP]
    tab = sum(v << (4 * i) for i, v in enumerate(sh))
    MAPCODE = f"""s_mul_i32 s3, s2, 1639
    s_lshr_b32 s3, s3, 16
    s_mul_i32 s4, s3, 40
    s_sub_u32 s4, s2, s4
    s_lshr_b32 s34, s4, 3
    s_lshl_b32 s5, s34, 2
    s_lshr_b32 s5, {tab}, s5
    s_add_u32 s5, s5, s4
    s_and_b32 s5, s5, 7
    s_lshl_b32 s35, s3, 3
    s_add_u32 s35, s35, s5
    s_cmp_ge_u32 s2, 240
    s_cselect_b32 s34, s4, s34
    s_cselect_b32 s35, 48, s35"""


def k2_setup(p):
    stamp(p, 0)
    p(f"""
    s_load_dwordx2 s[12:13], s[0:1], {A_WS}
    s_load_dwordx2 s[14:15], s[0:1], {A_DEG}
    s_load_dwordx2 s[74:75], s[0:1], {A_X}
    s_load_dwordx2 s[76:77], s[0:1], {A_OUT}
    v_and_b32 v{V_LANE}, 63, v0
    v_lshrrev_b32 v{V_T0}, 6, v0
    """)
    if os.environ.get('PF2', '0') == '1':
        code_prefetch(p, "Lk2_pfstart", 1, V_LANE, CN, 6)
    p(f"""
    Lk2_pfstart:
    v_lshlrev_b32 v{V_L16}, 4, v{V_LANE}
    v_readfirstlane_b32 s33, v{V_T0}
    v_and_b32 v{V_I}, 15, v{V_LANE}
    v_lshrrev_b32 v{V_G}, 4, v{V_LANE}
    v_and_b32 v{V_T0}, 1, v{V_G}
    v_mul_u32_u24 v{V_T0}, 12, v{V_T0}
    v_xor_b32 v{V_T0}, v{V_T0}, v{V_I}
    v_lshlrev_b32 v{V_T1}, 4, v{V_G}
    v_lshl_add_u32 v{V_KS}, v{V_T0}, 8, v{V_T1}
    v_lshlrev_b32 v{V_T0}, 4, v{V_T0}
    v_lshl_add_u32 v{V_KL}, v{V_G}, 8, v{V_T0}
    {MAPCODE}
    s_lshl_b32 s37, s35, 4
    s_lshl_b32 s3, s33, 2
    s_mul_i32 s36, s33, 5
    s_add_u32 s36, s36, s34
    s_cmp_lt_u32 s36, 16
    s_cselect_b32 s4, 0, 0x10000
    s_add_u32 s36, s36, s37
    s_add_u32 s36, s36, s4
    s_add_u32 s37, s37, s3
    s_lshl_b32 s39, s33, 12
    s_add_u32 s39, s39, {HROW_OFF}
    s_mul_i32 s70, s34, {NSTAT}
    s_lshl_b32 s38, s37, 12
    s_add_u32 s38, s38, {QIMG_OFF}
    s_mov_b32 s45, 0
    s_min_u32 s47, s36, 1000
    s_lshl_b32 s47, s47, 2
    s_add_u32 s47, s47, {OFFT_OFF}
    v_lshlrev_b32 v{V_T2}, 13, v{V_LANE}
    s_waitcnt lgkmcnt(0)
    """)
    srd(p, 28, 12, WS_SIZE)
    p(f"buffer_load_dwordx2 v[{ST}:{ST+1}], v{V_T2}, s[28:31], s47 offen")
    dma_tiles(p, 0, 1)
    p(f"""
    v_lshlrev_b32 v{V_T0}, 2, v{V_I}
    s_lshl_b32 s46, s37, 6
    s_add_u32 s46, s46, {MZ_OFF}
    """)
    for j in range(4):
        for ks in range(4):
            p(f"buffer_load_dwordx4 {vr(Qf(j,ks),4,'a')}, v{V_L16}, s[28:31], s38 offen offset:{1024*ks}")
        if j < 3:
            p("s_add_u32 s38, s38, 4096")
        if j == 0:
            for jj in range(4):
                p(f"buffer_load_dword v{NM(jj)}, v{V_T0}, s[28:31], s46 offen offset:{64*jj}")
    srd(p, 24, 14, N * 2)
    p(f"""
    s_add_u32 s16, s12, {HROW_OFF - 3072}
    s_addc_u32 s17, s13, 0
    """)
    srd(p, 20, 16, 0x330000 + 3072)
    p(f"""
    v_lshrrev_b32 v{V_T0}, 2, v{V_LANE}
    v_bfe_u32 v{V_T1}, v{V_LANE}, 1, 1
    v_mul_u32_u24 v{V_T2}, 12, v{V_T1}
    v_xor_b32 v{V_T0}, v{V_T0}, v{V_T2}
    v_lshlrev_b32 v{V_T0}, 4, v{V_T0}
    v_lshl_add_u32 v{V_T0}, v{V_T1}, 8, v{V_T0}
    v_and_b32 v{V_T1}, 1, v{V_LANE}
    v_lshl_add_u32 v{V_VL}, v{V_T1}, 3, v{V_T0}
    s_mul_i32 s49, s33, {GW_STRIDE}
    s_add_u32 s49, s49, {GW_OFF}
    s_lshl_b32 s32, s33, 14
    s_add_u32 s32, s32, {STG_OFF}
    s_mov_b32 s55, 256
    s_mov_b32 s57, 0x40004000
    s_mov_b32 s58, 0x07060302
    s_mov_b32 s60, {ENT_OFF}
    s_lshr_b32 s56, s37, 2
    s_mul_i32 s56, s56, {BLKB}
    s_mul_i32 s46, s34, {PART_STRIDE}
    s_add_u32 s56, s56, s46
    s_add_u32 s56, s56, {PART_OFF}
    s_lshl_b32 s78, s35, 9
    s_add_u32 s78, s78, {FLG_OFF}
    s_lshl_b32 s73, s35, 8
    s_add_u32 s73, s73, {CNT_OFF}
    v_lshlrev_b32 v{V_LA}, 5, v{V_G}
    v_add_u32 v{V_LA}, s49, v{V_LA}
    """)


def kv_dma(p):
    p("s_mov_b32 m0, s41")
    for i in range(4):
        p(f"buffer_load_dwordx4 v{V_KS}, s[28:31], s40 offen offset:{64*i} lds")
        if i < 3:
            p("s_add_u32 m0, m0, 960")


def kv2_dma(p):
    p(f"""
    s_add_u32 s46, s70, 2
    s_lshl_b32 s46, s46, 14
    s_add_u32 s46, s46, s39
    s_lshl_b32 s47, s33, 12
    s_add_u32 m0, s47, 32768
    """)
    for i in range(4):
        p(f"buffer_load_dwordx4 v{V_KS}, s[28:31], s46 offen offset:{64*i} lds")
        if i < 3:
            p("s_add_u32 m0, m0, 960")


def dma_tiles(p, t0, t1):
    if t0 == 0:
        p(f"""
        s_lshl_b32 s40, s70, 14
        s_add_u32 s40, s40, s39
        s_lshl_b32 s41, s33, 12
        """)
    for t in range(t0, t1):
        kv_dma(p)
        p("s_add_u32 s40, s40, 16384")
        p("s_add_u32 s41, s41, 16384")


def gather_consts(p):
    t0, t1, t2 = V_T0, V_T1, V_T2
    p(f"""
    v_and_b32 v{t0}, 1, v{V_G}
    v_lshlrev_b32 v{t0}, 3, v{t0}
    v_xor_b32 v{t1}, v{t0}, v{V_I}
    v_lshlrev_b32 v{t1}, 4, v{t1}
    """)
    for k in range(4):
        p(f"v_xor_b32 v{LO+k}, {32*k}, v{t1}")
        p(f"v_add_u32 v{LO+k}, {3072-1024*k}, v{LO+k}")
    p(f"""
    v_bfe_u32 v{t1}, v{V_LANE}, 2, 2
    v_lshl_add_u32 v{t2}, v{t1}, 2, v{V_G}
    v_lshlrev_b32 v{t2}, 8, v{t2}
    v_lshlrev_b32 v{t1}, 1, v{t1}
    v_xor_b32 v{t0}, v{t0}, v{t1}
    v_bfe_u32 v{t1}, v{V_LANE}, 1, 1
    v_xor_b32 v{t0}, v{t0}, v{t1}
    v_lshl_add_u32 v{t2}, v{t0}, 4, v{t2}
    v_and_b32 v{t1}, 1, v{V_LANE}
    v_lshl_add_u32 v{t2}, v{t1}, 3, v{t2}
    v_add_u32 v{t2}, s54, v{t2}
    """)
    for dt in range(8):
        p(f"v_xor_b32 v{TA+dt}, {32*dt}, v{t2}")
    p(f"v_add_u32 v{V_ROT}, 18, v{V_I}")


def gather_plan(p):
    t0, t1, t2 = V_T0, V_T1, V_T2
    p(f"""
    s_cmp_lt_u32 s36, {NBIN}
    s_cselect_b32 s46, {(EPW + 3) // 4}, 0
    v_sub_u32 v{CN}, v{ST+1}, v{ST}
    v_lshrrev_b32 v{CN}, 2, v{CN}
    v_min_u32 v{CN}, s46, v{CN}
    v_cmp_gt_u32 vcc, {G}, v{V_LANE}
    v_cndmask_b32 v{CN}, 0, v{CN}, vcc
    v_mul_u32_u24 v{t0}, {ENT_STRIDE}, v{V_LANE}
    v_mov_b32 v{PS}, v{CN}
    v_lshl_add_u32 v{ST}, v{ST}, 2, v{t0}
    v_mov_b32 v{OT}, {NULLG_OFF - ENT_OFF}
    v_add_u32_dpp v{PS}, v{PS}, v{PS} row_shr:1 row_mask:0xf bank_mask:0xf
    v_mov_b32 v{OT+1}, v{OT}
    v_mov_b32 v{OT+2}, v{OT}
    v_add_u32_dpp v{PS}, v{PS}, v{PS} row_shr:2 row_mask:0xf bank_mask:0xf
    v_mov_b32 v{OT+3}, v{OT}
    v_add_u32 v{t2}, s49, v{V_L16}
    v_add_u32_dpp v{PS}, v{PS}, v{PS} row_shr:4 row_mask:0xf bank_mask:0xf
    ds_write_b128 v{t2}, v[{OT}:{OT+3}] offset:{IDX}
    v_cmp_lt_u32 vcc, {MAXQ}, v{CN}
    v_add_u32_dpp v{PS}, v{PS}, v{PS} row_shr:8 row_mask:0xf bank_mask:0xf
    v_add_u32 v{AD8+1}, 16, v{ST}
    v_add_u32 v{AD8+2}, 32, v{ST}
    v_add_u32_dpp v{PS}, v{PS}, v{PS} row_bcast:15 row_mask:0xa bank_mask:0xf
    v_add_u32 v{AD8+3}, 48, v{ST}
    v_add_u32 v{AD8+4}, 64, v{ST}
    v_add_u32_dpp v{PS}, v{PS}, v{PS} row_bcast:31 row_mask:0xc bank_mask:0xf
    v_add_u32 v{AD8+5}, 80, v{ST}
    v_mov_b32 v{t1}, {IDX_TRASH - IDX}
    v_readlane_b32 s59, v{PS}, 63
    v_sub_u32 v{PS}, v{PS}, v{CN}
    s_cmp_gt_u32 s59, {MAXTOT}
    s_cselect_b32 s46, 1, 0
    s_cmp_lg_u64 vcc, 0
    s_cselect_b32 s46, 1, s46
    s_cmp_eq_u32 s46, 0
    s_cselect_b32 s61, -1, 0
    s_cselect_b32 s59, s59, 0
    v_and_b32 v{t2}, s61, v{CN}
    v_lshlrev_b32 v{t0}, 2, v{PS}
    v_cmp_eq_u32 vcc, 0, v{t2}
    s_add_u32 s66, s59, 7
    s_lshr_b32 s66, s66, 3
    v_cndmask_b32 v{t0}, v{t0}, v{t1}, vcc
    v_add_u32 v{t0}, s49, v{t0}
    """)
    for q in range(MAXQ - 1, -1, -1):
        p(f"ds_write_b32 v{t0}, v{AD8+q if q else ST} offset:{IDX+4*q}")
    p(f"""
    s_lshl_b32 s46, s59, 2
    v_lshlrev_b32 v{t0}, 2, v{V_LANE}
    v_add_u32 v{t0}, s49, v{t0}
    v_add_u32 v{t2}, s46, v{t0}
    ds_write_b32 v{t2}, v{OT} offset:{IDX}
    s_mov_b32 m0, s49
    """)
    for k in range(4):
        p(f"ds_read_b32 v{AD8+k}, v{t0} offset:{IDX+256*k}")
    for k in range(4):
        p(f"buffer_load_dwordx4 v{AD8+k}, s[28:31], s60 offen lds")
        if k < 3:
            p("s_add_u32 m0, m0, 1024")
    for k in range(6):
        p(f"v_mov_b32 v{AD8+k}, v{AD8+7}")
    for k in range(4):
        p(f"v_mov_b32 v{OT+k}, 0")


def gather_arm(p, extra):
    p(f"""
    s_mov_b32 s63, 0
    s_lshl_b32 s64, s66, 7
    s_add_u32 s72, s66, 1
    s_add_u32 s62, s66, {1 + extra}
    s_cmp_eq_u32 s66, 0
    s_cselect_b32 s72, 0, s72
    s_cselect_b32 s62, 0, s62
    """)


def k2_maxpass(p):
    MX = P_B
    CI = NM1_B
    p(f"""
    s_lshl_b32 s41, s33, 12
    s_mov_b32 s46, 0
    s_mov_b32 s47, s68
    s_mov_b32 s48, 0xff800000
    v_mov_b32 v{V_KA}, v{V_KL}
    """)
    for j in range(4):
        p(f"v_mov_b32 v{MX+j}, s48")
    for k in range(16):
        p(f"v_mov_b32 v{CI+k}, 0")
    p(f"""
    Lk2_mx_loop:
    s_max_u32 s40, s46, 5
    s_lshl_b32 s40, s40, 2
    s_add_u32 s40, s40, {LOG_OFF - 20}
    v_mov_b32 v{V_T0}, s40
    ds_read_b32 v{V_T0}, v{V_T0}
    v_readfirstlane_b32 s69, v{V_T0}
    s_and_b32 s69, s69, 0xffff
    s_add_u32 s40, s70, s46
    s_cmp_lt_u32 s46, 5
    s_cselect_b32 s69, s40, s69
    s_lshl_b32 s40, s69, 14
    s_add_u32 s40, s40, s39
    """)
    kv_dma(p)
    p(f"""
    s_waitcnt vmcnt(0)
    s_barrier
    """)
    for s in range(4):
        for ks in range(4):
            p.extend([kread(s, ks)])
    p("s_waitcnt lgkmcnt(0)")
    p("s_barrier")
    for j in range(4):
        for s in range(4):
            d = vr(O_B + (j * 4 + s) * 4, 4)
            for ks in range(4):
                p(mf(d, vr(Kf(s, ks), 4, 'a'), vr(Qf(j, ks), 4, 'a'), vr(CI + 4 * s, 4) if ks == 0 else d))
    for j in range(4):
        for k in range(0, 16, 2):
            b = O_B + j * 16 + k
            p(f"v_max3_f32 v{MX+j}, v{MX+j}, v{b}, v{b+1}")
    p(f"""
    s_add_u32 s46, s46, 1
    s_cmp_lt_u32 s46, s47
    s_nop 7
    s_cbranch_scc1 Lk2_mx_loop
    """)
    for j in range(4):
        allreduce_g(p, MX + j, V_T0, 'v_max_f32')
        p(f"v_sub_f32 v{NM(j)}, 0, v{MX+j}")


def k2_prologue(p):
    p("s_branch Lk2_run1")
    p("Lk2_run:")
    dma_tiles(p, 0, 1)
    kv2_dma(p)
    p("Lk2_run1:")
    dma_tiles(p, 1, 2)
    p("s_add_u32 s40, s40, 16384")
    p("s_add_u32 s41, s41, 16384")
    p(f"""
    v_mov_b32 v{V_T3}, 0x7fff0000
    s_mov_b32 s54, s32
    s_add_u32 s65, s32, 4096
    s_mov_b32 s67, 0
    s_mov_b32 m0, s54
    v_mov_b32 v{OH}, 0
    """)
    for r in range(1, 8):
        p(f"v_mov_b32 v{OH+r}, 0")
    z = vr(OH, 4)
    for b in range(O_B, P_B + 32, 16):
        p(f"{MF32} {vr(b,16)}, {z}, {z}, 0")
    for b in range(V_A, GA_A, 16):
        p(f"{MF32} {vr(b,16,'a')}, {z}, {z}, 0")
    gather_consts(p)
    for r in range(8):
        p(f"v_mov_b32 v{AD8+r}, v{V_T3}")
    p(f"""
    v_mov_b32 v{V_KA}, v{V_KL}
    s_mov_b32 s42, 0
    s_mov_b32 s43, 0
    s_mov_b32 s68, 0
    s_add_u32 s46, s70, 0x40004
    v_mov_b32 v{V_TN}, s46
    v_mov_b32 v{V_TK}, 0
    v_mov_b32 v{V_ONE}, 0
    v_mov_b32 v{V_AOFF}, v{V_T3}
    v_cmp_eq_u32 vcc, 0, v{V_LANE}
    v_mov_b32 v{V_T0}, {LOG_OFF}
    s_mov_b32 s44, 4
    v_cndmask_b32 v{V_LG}, v{V_T3}, v{V_T0}, vcc
    s_cmp_lg_u32 s45, 0
    s_cbranch_scc1 Lk2_second
    {MF32} a[{GA_A}:{GA_A+15}], {z}, {z}, 0
    {MF32} a[{GA_A+16}:{GA_A+31}], {z}, {z}, 0
    s_lshl_b32 s46, s36, 5
    v_lshlrev_b32 v{V_T1}, 1, v{V_I}
    buffer_load_ushort v{DEG}, v{V_T1}, s[24:27], s46 offen
    v_cmp_eq_u32 vcc, 0, v0
    v_mov_b32 v{V_T0}, s73
    s_add_u32 s46, s70, 5
    v_cndmask_b32 v{V_AOFF}, v{V_T3}, v{V_T0}, vcc
    v_cndmask_b32 v{V_ONE}, 0, 1, vcc
    v_mov_b32 v{V_T0}, {5*NSTAT}
    v_mov_b32 v{V_T1}, s46
    v_cndmask_b32 v{V_T0}, v{V_T0}, v{V_T1}, vcc
    v_lshlrev_b32 v{V_T1}, 2, v0
    v_add_u32 v{V_T1}, {LOG_OFF}, v{V_T1}
    ds_write_b32 v{V_T1}, v{V_T0}
    s_mov_b32 s71, 1
    s_waitcnt vmcnt(29)
    """)
    q = Prog()
    gather_plan(q)
    qq, _ = pad_hazards(auto_wait(q.ins))
    for i in qq:
        i.cnt = None if i.kind == 'vmem' else i.cnt
    p.extend(qq)
    p(f"""
    s_waitcnt vmcnt(21)
    s_branch Lk2_go
    Lk2_second:
    v_lshlrev_b32 v{V_T1}, 2, v0
    v_add_u32 v{V_T1}, {LOG_OFF}, v{V_T1}
    ds_read_b32 v{V_T0}, v{V_T1}
    s_waitcnt lgkmcnt(0)
    v_and_b32 v{V_T0}, 0xffff, v{V_T0}
    ds_write_b32 v{V_T1}, v{V_T0}
    s_waitcnt vmcnt(0)
    Lk2_go:
    s_mov_b32 s47, 0x40000
    s_mov_b32 s48, 0x10000
    """)
    gather_arm(p, 1)
    p("""
    s_mov_b32 s63, -128
    s_waitcnt lgkmcnt(0)
    s_barrier
    """)
    stamp(p, 1)
    for s in range(4):
        for ks in range(4):
            p.extend([kread(s, ks)])
    for j in range(4):
        for r in range(1, 4):
            p(f"v_mov_b32 v{NM(j)+r}, v{NM(j)}")
    p(f"""
    s_waitcnt lgkmcnt(4)
    """)
    stamp(p, 2)
    stamp(p, 9, True)


def side_loads(p):
    p(f"""
    s_lshr_b32 s46, s33, 1
    s_lshl_b32 s46, s46, 12
    s_and_b32 s3, s33, 1
    s_lshl_b32 s4, s3, 11
    s_add_u32 s4, s4, s46
    s_add_u32 m0, s4, {TAIL_OFF}
    s_lshl_b32 s3, s3, 7
    s_add_u32 s46, s46, s3
    s_add_u32 s46, s46, {HROW_OFF + NTILE * 16384}
    buffer_load_dwordx4 v{V_KS}, s[28:31], s46 offen lds
    s_add_u32 m0, m0, 960
    s_min_u32 s3, s36, 783
    buffer_load_dwordx4 v{V_KS}, s[28:31], s46 offen offset:64 lds
    s_mov_b32 m0, s49
    s_lshl_b32 s3, s3, 12
    s_add_u32 s3, s3, {QIMG_OFF}
    """)
    for i in range(4):
        p(f"buffer_load_dwordx4 v{V_L16}, s[28:31], s3 offen offset:{1024*i} lds")


def k2_glue(p):
    p(f"""
    Lk2_glue:
    s_cmp_le_u32 s71, 2
    s_cbranch_scc1 Lk2_glue12
    s_add_u32 s71, s71, 1
    s_add_u32 s67, s67, 1
    s_cmp_eq_u32 s67, 1
    s_cbranch_scc1 Lk2_glue_w1
    s_cmp_eq_u32 s67, 4
    s_cbranch_scc1 Lk2_glue_w3
    s_cmp_eq_u32 s67, 5
    s_cbranch_scc1 Lk2_glue_w4
    v_readfirstlane_b32 s46, v{V_T1}
    s_cmp_lt_u32 s46, 16
    s_cbranch_scc1 Lk2_glue_w4
    s_sub_u32 s46, s67, 2
    s_lshl_b32 s46, s46, 13
    s_add_u32 s54, s32, s46
    s_add_u32 s65, s54, 4096
    s_add_u32 s46, s54, {WIMG_OFF - (HROW_OFF - 3072) - STG_OFF}
    v_add_u32 v{AD8}, s46, v{V_L16}
    v_add_u32 v{AD8+4}, 4096, v{AD8}
    v_mov_b32 v{AD8+1}, v{AD8}
    v_mov_b64 v[{AD8+2}:{AD8+3}], v[{AD8}:{AD8+1}]
    v_mov_b32 v{AD8+5}, v{AD8+4}
    v_mov_b64 v[{AD8+6}:{AD8+7}], v[{AD8+4}:{AD8+5}]
    s_branch Lk2_glue_back
    Lk2_glue_w1:
    v_mov_b32 v{V_T0}, 0
    s_mov_b32 s46, {WCNT_OFF}
    buffer_load_dword v{V_T1}, v{V_T0}, s[28:31], s46 offen sc1
    s_branch Lk2_glue_back
    Lk2_glue_w3:
    v_mov_b32 v{AD8}, 0x7fff0000
    v_mov_b32 v{AD8+1}, v{AD8}
    v_mov_b64 v[{AD8+2}:{AD8+3}], v[{AD8}:{AD8+1}]
    v_mov_b64 v[{AD8+4}:{AD8+5}], v[{AD8}:{AD8+1}]
    v_mov_b64 v[{AD8+6}:{AD8+7}], v[{AD8}:{AD8+1}]
    s_mov_b32 s54, 0x30000
    s_mov_b32 s65, 0x30000
    """)
    side_loads(p)
    p(f"""
    s_branch Lk2_glue_back
    Lk2_glue_w4:
    s_mov_b32 s71, 0
    """)
    code_prefetch(p, "Lk2_endcode", 1, V_LANE, CN)
    p(f"""
    s_branch Lk2_glue_back
    Lk2_glue12:
    s_cmp_eq_u32 s71, 1
    s_cbranch_scc1 Lk2_glue1
    s_add_u32 s71, s66, 2
    s_max_u32 s71, s71, 10
    s_and_b32 s71, s71, s61
    s_barrier
    s_branch Lk2_glue_back
    Lk2_glue1:
    """)
    stamp(p, 13, True)
    kv2_dma(p)
    p("""
    s_mov_b32 s71, 2
    s_mov_b32 s47, 0x40000
    s_barrier
    """)
    stamp(p, 14, True)
    stamp(p, 15, True)
    p(f"""
    s_branch Lk2_glue_back
    Lk2_sync:
    v_add_u32 v{V_T0}, -4, v{V_LG}
    s_mov_b32 s46, 0
    Lk2_sync1:
    ds_read_b32 v{V_TN}, v{V_T0}
    s_add_u32 s46, s46, 1
    s_waitcnt lgkmcnt(0)
    v_readfirstlane_b32 s69, v{V_TN}
    s_cmp_gt_u32 s46, {1 << 22}
    s_cbranch_scc1 Lk2_sync_back
    s_cmp_lt_u32 s69, s47
    s_cbranch_scc1 Lk2_sync1
    s_branch Lk2_sync_back
    """)


def k2_tail_setup(p):
    p(f"""
    v_cmp_eq_u32 vcc, 0, v{V_G}
    v_mov_b32 v{NINF_B}, 0xff800000
    """)
    for k in range(16):
        p(f"v_cndmask_b32 v{NM1_B+k}, v{NINF_B}, v{NM_B+k}, vcc")
    p("s_nop 1")


def k2_slow_gather(p):
    t0, t1, t2 = V_T0, V_T1, V_T2
    B = OT
    p(f"""
    Lk2_g_rare:
    s_mov_b32 s59, 0
    s_mov_b32 s54, s32
    s_add_u32 s65, s32, 4096
    s_mov_b32 s67, 0
    """)
    for r in range(32):
        p(f"v_accvgpr_write_b32 a{GA_A+r}, 0")
    gather_consts(p)
    p(f"""
    Lk2_g_slow:
    s_waitcnt vmcnt(0) lgkmcnt(0)
    v_cmp_lt_u32 vcc, s59, v{CN}
    s_cbranch_vccz Lk2_g_back
    v_mov_b32 v{B}, 0xffff
    v_mov_b32 v{B+1}, 0xffff
    v_mov_b32 v{B+2}, 0xffff
    v_mov_b32 v{B+3}, 0xffff
    s_lshl_b32 s46, s59, 4
    s_add_u32 s46, s46, s60
    s_mov_b64 exec, vcc
    buffer_load_dwordx4 v[{B}:{B+3}], v{ST}, s[28:31], s46 offen
    s_mov_b64 exec, -1
    v_add_u32 v{t0}, s54, v{V_L16}
    ds_write_b128 v{t0}, v[{B}:{B+3}] offset:8192
    s_add_u32 s59, s59, 1
    s_mov_b32 s47, 8
    v_lshlrev_b32 v{t2}, 5, v{V_G}
    v_add_u32 v{t2}, s54, v{t2}
    s_waitcnt lgkmcnt(0)
    Lk2_g_loop:
    ds_read_b128 v[{E0}:{E0+3}], v{t2} offset:8192
    ds_read_b128 v[{E0+4}:{E0+7}], v{t2} offset:8208
    v_add_u32 v{t2}, 128, v{t2}
    s_mov_b32 m0, s54
    """)
    for i in range(8):
        if i == 4:
            p("s_mov_b32 m0, s65")
        p.extend([gmad8(i), gdma8(i)])
    for k in range(4):
        o = OH + k
        p(f"v_perm_b32 v{o}, v{E0+2*k+1}, v{E0+2*k}, s58")
        p(f"v_alignbit_b32 v{o}, v{o}, v{o}, v{V_ROT}")
        p(f"v_and_b32 v{o}, s57, v{o}")
    p("s_waitcnt vmcnt(0)")
    for dt in range(8):
        for u in range(2):
            p(f"ds_read_b64_tr_b16 {vr(GF_A+4*dt+2*u,2,'a')}, v{TA+dt} offset:{4096*u}")
    for dt in range(8):
        d = vr(GA_A + 4 * dt, 4, 'a')
        p(mf(d, vr(GF_A + 4 * dt, 4, 'a'), vr(OH, 4), d))
    p(f"""
    s_sub_u32 s47, s47, 1
    s_cmp_lg_u32 s47, 0
    s_cbranch_scc1 Lk2_g_loop
    s_branch Lk2_g_slow
    Lk2_g_back:
    s_nop 7
    s_branch Lk2_g_done
    """)


XR = 208
YA = 224
AGF = P_B + 16


def flag(j):
    return f"buffer_store_dword v{V_ROT}, v{V_LA}, s[28:31], s79 offen offset:{32*j}"


def tile_stores(j):
    gs = []
    for kk in range(4):
        o = O(j, 2 * kk)
        g = [I(f"v_cvt_pk_bf16_f32 v{o+h}, v{o+2*h}, v{o+2*h+1}") for h in range(4)]
        g.append(I(f"buffer_store_dwordx4 {vr(o,4)}, v{V_L16}, s[28:31], s{40+j} offen offset:{1024*kk}"))
        gs.append(g)
    o = O(j, 7)
    gs.append([I(f"v_sub_f32 v{o+2}, 0, v{NM(j)}"),
               I(f"buffer_store_dwordx2 {vr(o+2,2)}, v{V_T2}, s[28:31], s44 offen offset:{128*j}")])
    return gs


def k2_end(p, drain):
    p(f"""
    s_cmp_gt_i32 s62, 0
    s_cselect_b32 s46, 0, s61
    s_cmp_lg_u32 s46, -1
    s_cbranch_scc1 Lk2_g_rare
    Lk2_g_done:
    s_cmp_lg_u32 s67, 5
    s_cbranch_scc1 Lk2_w_rare
    Lk2_w_done:
    v_lshlrev_b32 v{V_T3}, 8, v{V_I}
    v_lshl_add_u32 v{V_T3}, v{V_G}, 4, v{V_T3}
    s_min_u32 s38, s36, 1000
    s_lshl_b32 s38, s38, 12
    s_mov_b32 s16, s74
    s_and_b32 s17, s75, 0xffff
    s_mov_b32 s18, {N*256}
    s_mov_b32 s19, 0x20000
    buffer_load_dwordx4 v[{XR}:{XR+3}], v{V_T3}, s[16:19], s38 offen
    buffer_load_dwordx4 v[{XR+4}:{XR+7}], v{V_T3}, s[16:19], s38 offen offset:64
    buffer_load_dwordx4 v[{XR+8}:{XR+11}], v{V_T3}, s[16:19], s38 offen offset:128
    buffer_load_dwordx4 v[{XR+12}:{XR+15}], v{V_T3}, s[16:19], s38 offen offset:192
    v_cmp_eq_u32 s[50:51], 3, v{V_G}
    v_lshlrev_b32 v{V_T0}, 3, v{V_I}
    v_mov_b32 v{V_T2}, 0x7fff0000
    s_mov_b32 s40, s56
    s_add_u32 s41, s56, 4096
    s_add_u32 s42, s56, 8192
    s_add_u32 s43, s56, 12288
    s_add_u32 s44, s56, 16384
    v_cndmask_b32 v{V_T2}, v{V_T2}, v{V_T0}, s[50:51]
    """)
    gs = tile_stores(0) + tile_stores(1) + tile_stores(2)
    flat = [x for g in gs for x in g]
    nm = 0
    for i in drain:
        p.extend([i])
        if i.kind == 'mfma':
            nm += 1
            for _ in range(3):
                if flat:
                    p.extend([flat.pop(0)])
    p.extend(flat)
    for g in tile_stores(3):
        p.extend(g)
    stamp(p, 10, True)
    stamp(p, 3)
    p(f"""
    s_mov_b32 s48, {hexf(2.0**100)}
    v_add_f32 v{V_LC}, v{O(0,7)+3}, v{O(1,7)+3}
    v_add_f32 v{V_KA}, v{O(2,7)+3}, v{O(3,7)+3}
    v_add_f32 v{V_KA}, v{V_LC}, v{V_KA}
    v_cmp_nlt_f32 vcc, v{V_KA}, s48
    s_lshl_b32 s47, s33, 2
    s_add_u32 s47, s47, {FLAG_OFF}
    s_and_b64 s[52:53], vcc, s[50:51]
    s_cselect_b32 s46, 1, 0
    v_mov_b32 v{V_LC}, s47
    v_mov_b32 v{V_KA}, s46
    ds_write_b32 v{V_LC}, v{V_KA}
    v_mov_b32 v{V_LC}, {FLAG_OFF}
    s_lshl_b32 s47, s33, 7
    s_lshl_b32 s48, s34, 2
    s_add_u32 s47, s47, s48
    s_add_u32 s79, s47, s78
    s_waitcnt lgkmcnt(0)
    s_barrier
    ds_read_b128 v[{S_B}:{S_B+3}], v{V_LC}
    v_lshlrev_b32 v{V_T1}, 26, v{V_LANE}
    v_or_b32 v{S_B}, v{S_B}, v{S_B+1}
    v_or3_b32 v{S_B}, v{S_B}, v{S_B+2}, v{S_B+3}
    v_readfirstlane_b32 s47, v{S_B}
    s_andn2_b32 s47, s47, s45
    s_cmp_lg_u32 s47, 0
    s_cbranch_scc1 Lk2_redo
    v_mov_b32 v{V_LA}, v{V_T1}
    v_mov_b32 v{V_ROT}, 1
    s_waitcnt vmcnt(15)
    {flag(0)}
    """)
    stamp(p, 4)
    p(f"""
    s_cmp_ge_u32 s36, {NBIN}
    s_cbranch_scc1 Lk2_nofinal
    """)
    return 1


def k2_nofinal(p, y):
    p(f"""
    Lk2_nofinal:
    s_waitcnt vmcnt(11)
    {flag(1)}
    s_waitcnt vmcnt(7)
    {flag(2)}
    s_waitcnt vmcnt(3)
    {flag(3)}
    {'s_branch Lk2_fin' if STAMPS else 's_endpgm'}
    Lk2_w_rare:
    v_mov_b32 v{V_T0}, 0
    s_mov_b32 s46, {WCNT_OFF}
    s_mov_b32 s47, 0
    Lk2_w_poll:
    buffer_load_dword v{V_T1}, v{V_T0}, s[28:31], s46 offen sc1
    s_add_u32 s47, s47, 1
    s_waitcnt vmcnt(0)
    v_readfirstlane_b32 s48, v{V_T1}
    s_cmp_gt_u32 s47, {POLL_LIMIT}
    s_cbranch_scc1 Lk2_w_go
    s_cmp_lt_u32 s48, 16
    s_cbranch_scc1 Lk2_w_poll
    Lk2_w_go:
    s_sub_u32 s46, s32, {STG_OFF}
    s_add_u32 s46, s46, {WIMG_OFF}
    s_mov_b32 m0, s32
    s_mov_b32 s47, 0
    Lk2_w_loop:
    buffer_load_dwordx4 v{V_L16}, s[28:31], s46 offen sc1 lds
    s_add_u32 m0, m0, 1024
    s_add_u32 s46, s46, 1024
    s_add_u32 s47, s47, 1
    s_cmp_lt_u32 s47, 16
    s_cbranch_scc1 Lk2_w_loop
    """)
    side_loads(p)
    p("""
    s_waitcnt vmcnt(0)
    s_branch Lk2_w_done
    """)


def k2_final(p, y):
    STT = 192
    PT = O_B
    O6 = 96
    OF = 128
    WF = 144
    CO = 144
    L = 156
    QT = 128
    KT = 144
    VT = 224
    P2 = lambda r: f"v[{r}:{r+1}]"
    p(f"""
    v_add_u32 v{V_T1}, {STG_OFF}, v{V_L16}
    v_lshlrev_b32 v{V_KA}, 16, v{DEG}
    v_mul_f32 v{V_KA}, 0.5, v{V_KA}
    v_add_u32 v{V_KL}, {TAIL_OFF}, v{V_KL}
    v_add_u32 v{V_VL}, {TAIL_OFF}, v{V_VL}
    v_add_u32 v{V_LC}, s49, v{V_L16}
    s_mov_b32 s48, 0xffff0000
    s_lshr_b32 s46, s36, 2
    s_mul_i32 s46, s46, {BLKB}
    s_add_u32 s46, s46, {PART_OFF}
    s_and_b32 s47, s36, 3
    s_lshl_b32 s59, s47, 12
    s_add_u32 s59, s59, s46
    s_lshl_b32 s60, s47, 7
    s_add_u32 s60, s60, s46
    s_add_u32 s60, s60, 16384
    """)
    for ks in range(4):
        p(f"ds_read_b128 {vr(QT+4*ks,4,'a')}, v{V_LC} offset:{1024*ks}")
    for k in range(16):
        t = P_B + 8 + 2 * (k & 3)
        p(f"v_accvgpr_read_b32 v{t}, a{GA_A+2*k}")
        p(f"v_accvgpr_read_b32 v{t+1}, a{GA_A+2*k+1}")
        p(f"v_mul_f32 v{t}, v{t}, v{V_KA}")
        p(f"v_mul_f32 v{t+1}, v{t+1}, v{V_KA}")
        p(f"v_cvt_pk_bf16_f32 v{AGF+k}, v{t}, v{t+1}")
    p("s_waitcnt vmcnt(11)")
    p(flag(1))
    stamp(p, 5)
    for u in range(2):
        for ks in range(4):
            p(f"ds_read_b128 {vr(KT+(u*4+ks)*4,4,'a')}, v{V_KL} offset:{4096*u+1024*ks}")
    for dt in range(8):
        for u in range(2):
            p(f"ds_read_b64_tr_b16 {vr(VT+4*dt+2*u,2,'a')}, v{V_VL} offset:{4096*u+512*dt}")
    SS = STT
    for u in range(2):
        d = vr(SS + 4 * u, 4)
        for ks in range(4):
            p(mf(d, vr(KT + (u * 4 + ks) * 4, 4, 'a'), vr(QT + 4 * ks, 4, 'a'), '0' if ks == 0 else d))
    for k in range(16):
        p(f"v_lshlrev_b32 v{YA+2*k}, 16, v{XR+k}")
        p(f"v_and_b32 v{YA+2*k+1}, s48, v{XR+k}")
    p("s_waitcnt vmcnt(7)")
    p(flag(2))
    M6 = STT + 10
    p(f"""
    v_cmp_eq_u32 vcc, 0, v{V_G}
    v_mov_b32 v{V_KA}, 0xff800000
    """)
    for r in range(4):
        p(f"v_cndmask_b32 v{SS+4+r}, v{V_KA}, v{SS+4+r}, vcc")
    p(f"""
    v_max3_f32 v{M6}, v{SS}, v{SS+1}, v{SS+2}
    v_max3_f32 v{M6}, v{M6}, v{SS+3}, v{SS+4}
    v_max3_f32 v{M6}, v{M6}, v{SS+5}, v{SS+6}
    v_max_f32 v{M6}, v{M6}, v{SS+7}
    """)
    allreduce_g(p, M6, V_KA, 'v_max_f32')
    for r in range(8):
        p(f"v_sub_f32 v{SS+r}, v{SS+r}, v{M6}")
    for r in range(8):
        p(f"v_exp_f32 v{SS+r}, v{SS+r}")
    for r in range(4):
        p(f"v_cvt_pk_bf16_f32 v{OF+r}, v{SS+2*r}, v{SS+2*r+1}")
    for dt in range(8):
        p(mf(vr(O6 + 4 * dt, 4), vr(VT + 4 * dt, 4, 'a'), vr(OF, 4), '0'))
    p("s_waitcnt vmcnt(3)")
    p(flag(3))
    for ft in range(8):
        for kk in range(4):
            p(f"ds_read_b128 {vr((ft*4+kk)*4,4,'a')}, v{V_T1} offset:{32768+4096*ft+1024*kk}")

    def rd(ft, buf):
        b = WF + 16 * buf
        for kk in range(4):
            p(f"ds_read_b128 v[{b+4*kk}:{b+4*kk+3}], v{V_T1} offset:{4096*ft+1024*kk}")
    rd(0, 0)
    bcast_g3(p, O6 + 31, M6 + 1, V_KA)
    p(f"""
    v_min_u32 v{V_LC}, 4, v{V_LANE}
    v_lshlrev_b32 v{V_LC}, 2, v{V_LC}
    s_and_b32 s46, s36, 15
    s_lshl_b32 s46, s46, 5
    s_add_u32 s46, s46, s78
    s_mov_b32 s47, 0
    buffer_load_dword v{V_T2}, v{V_LC}, s[28:31], s46 offen sc1
    """)
    for ft in range(8):
        if ft < 7:
            rd(ft + 1, (ft + 1) & 1)
        b = WF + 16 * (ft & 1)
        d = vr(YA + 4 * ft, 4)
        for kk in range(4):
            p(mf(d, vr(b + 4 * kk, 4), vr(AGF + 4 * kk, 4), d))
    srd(p, 20, 76, N * 256)
    for s in range(1, 5):
        p(f"s_add_u32 s{40+s}, s59, {PART_STRIDE*s}")
    p(f"""
    s_branch Lk2_poll1
    Lk2_poll:
    buffer_load_dword v{V_T2}, v{V_LC}, s[28:31], s46 offen sc1
    s_add_u32 s47, s47, 1
    Lk2_poll1:
    s_waitcnt vmcnt(0)
    v_cmp_ne_u32 vcc, 1, v{V_T2}
    s_cmp_gt_u32 s47, {POLL_LIMIT}
    s_cbranch_scc1 Lk2_fetch
    s_cbranch_vccnz Lk2_poll
    Lk2_fetch:
    """)
    stamp(p, 6)
    p("s_mov_b32 s46, s60")
    for s in range(5):
        p(f"buffer_load_dwordx2 v[{STT+2*s}:{STT+2*s+1}], v{V_T0}, s[28:31], s46 offen sc1")
        if s < 4:
            p(f"s_add_u32 s46, s46, {PART_STRIDE}")
    for kk in range(4):
        for s in range(5):
            b = PT + 16 * s + 4 * kk
            p(f"buffer_load_dwordx4 v[{b}:{b+3}], v{V_L16}, s[28:31], s{59 if s == 0 else 40+s} offen offset:{1024*kk} sc1")
    tiny = hexf(2.0 ** -120)
    R6 = range(6)
    for s in range(5):
        p(f"v_max_f32 v{STT+2*s+1}, {tiny}, v{STT+2*s+1}")
    for s in R6:
        p(f"v_log_f32 v{L+s}, v{STT+2*s+1}")
    for s in R6:
        p(f"v_add_f32 v{L+s}, v{L+s}, v{STT+2*s}")
    T = V_T2
    p(f"""
    v_max3_f32 v{T}, v{L}, v{L+1}, v{L+2}
    v_max3_f32 v{T}, v{T}, v{L+3}, v{L+4}
    v_max_f32 v{T}, v{T}, v{L+5}
    """)
    for s in R6:
        p(f"v_sub_f32 v{L+s}, v{L+s}, v{T}")
    for s in R6:
        p(f"v_exp_f32 v{L+s}, v{L+s}")
    for s in R6:
        p(f"v_rcp_f32 v{STT+2*s}, v{STT+2*s+1}")
    p(f"""
    v_add_f32 v{T}, v{L}, v{L+1}
    v_add_f32 v{V_KA}, v{L+2}, v{L+3}
    v_add_f32 v{T}, v{T}, v{L+4}
    v_add_f32 v{V_KA}, v{V_KA}, v{L+5}
    v_add_f32 v{T}, v{T}, v{V_KA}
    v_rcp_f32 v{T}, v{T}
    """)
    for s in R6:
        p(f"v_mul_f32 v{L+s}, v{L+s}, v{T}")
    for s in R6:
        p(f"v_mul_f32 v{CO+2*s}, v{L+s}, v{STT+2*s}")
    for k in range(16):
        p(f"v_pk_mul_f32 {P2(O6+2*k)}, {P2(O6+2*k)}, {P2(CO+10)} op_sel_hi:[1,0]")
    pend = []
    for kk in range(4):
        oa = O6 + 8 * kk
        n = 0
        for s in range(5):
            for q in range(4):
                r = PT + 16 * s + 4 * kk + q
                t = STT + 2 * (n & 3)
                p(f"v_lshlrev_b32 v{t}, 16, v{r}")
                p(f"v_and_b32 v{t+1}, s48, v{r}")
                p(f"v_pk_fma_f32 {P2(oa+2*q)}, {P2(t)}, {P2(CO+2*s)}, {P2(oa+2*q)} op_sel_hi:[1,0,1]")
                n += 1
                if pend and n % 2 == 0:
                    p(pend.pop(0))
        for x in pend:
            p(x)
        for q in range(4):
            p(f"v_cvt_pk_bf16_f32 v{OF+4*kk+q}, v{oa+2*q}, v{oa+2*q+1}")
        pend = [mf(vr(YA + 4 * ft, 4), vr((ft * 4 + kk) * 4, 4, 'a'), vr(OF + 4 * kk, 4), vr(YA + 4 * ft, 4)) for ft in range(8)]
    for x in pend:
        p(x)
    for k in range(16):
        p(f"v_cvt_pk_bf16_f32 v{PT+k}, v{YA+2*k}, v{YA+2*k+1}")
        if k % 4 == 3:
            kk = k // 4
            p(f"buffer_store_dwordx4 v[{PT+4*kk}:{PT+4*kk+3}], v{V_T3}, s[20:23], s38 offen offset:{64*kk}")
    if STAMPS:
        p("s_branch Lk2_fin2")
        p("Lk2_fin:")
        p("s_mov_b32 s85, s84")
        p("s_mov_b32 s86, s84")
        p("Lk2_fin2:")
    stamp(p, 7)
    if STAMPS:
        p("s_waitcnt vmcnt(0)")
    stamp(p, 8)
    if STAMPS:
        p("s_mov_b32 s92, s68")
    stamp_flush(p, 1, 16)
    p("s_endpgm")


def k2_wprep(p):
    p(f"""
    s_load_dwordx2 s[4:5], s[0:1], {A_WMSG}
    s_load_dwordx2 s[6:7], s[0:1], {A_WV}
    s_load_dwordx2 s[8:9], s[0:1], {A_WOUT}
    s_load_dwordx2 s[12:13], s[0:1], {A_WS}
    v_and_b32 v1, 63, v0
    v_lshrrev_b32 v2, 4, v1
    v_and_b32 v3, 15, v1
    v_lshrrev_b32 v7, 6, v0
    s_sub_u32 s34, s2, {K2_ATT}
    s_lshl_b32 s34, s34, 2
    v_readfirstlane_b32 s33, v7
    s_add_u32 s34, s34, s33
    s_and_b32 s35, s34, 7
    s_waitcnt lgkmcnt(0)
    s_cmp_ge_u32 s34, 8
    s_cselect_b32 s4, s6, s4
    s_cselect_b32 s5, s7, s5
    """)
    srd(p, 16, 4, 32768)
    srd(p, 20, 8, 32768)
    srd(p, 28, 12, WS_SIZE)
    AFR = 16
    BFR = 144
    AC = 160
    p(f"""
    v_lshlrev_b32 v4, 8, v3
    v_lshl_add_u32 v4, v2, 4, v4
    s_mov_b32 s36, 0
    """)
    for t in range(8):
        for kk in range(4):
            b = AFR + (t * 4 + kk) * 4
            p(f"buffer_load_dwordx4 v[{b}:{b+3}], v4, s[16:19], s36 offen offset:{64*kk}")
        p("s_add_u32 s36, s36, 4096")
    p(f"""
    v_lshrrev_b32 v5, 2, v3
    v_lshlrev_b32 v5, 3, v5
    v_and_b32 v6, 3, v3
    v_add_u32 v5, v5, v6
    v_lshlrev_b32 v5, 1, v5
    v_lshl_add_u32 v5, v2, 11, v5
    s_lshr_b32 s36, s35, 1
    s_lshl_b32 s36, s36, 6
    s_and_b32 s37, s35, 1
    s_lshl_b32 s37, s37, 3
    s_add_u32 s36, s36, s37
    """)
    for kk in range(4):
        p(f"s_add_u32 s37, s36, {8192*kk}")
        for x in range(8):
            p(f"buffer_load_ushort v{AC+8*kk+x}, v5, s[20:23], s37 offen offset:{256*x}")
    for k in range(16):
        p(f"v_lshl_or_b32 v{BFR+k}, v{AC+2*k+1}, 16, v{AC+2*k}")
    for t in range(8):
        d = vr(AC + 4 * t, 4)
        for kk in range(4):
            b = AFR + (t * 4 + kk) * 4
            p(mf(d, vr(b, 4), vr(BFR + 4 * kk, 4), '0' if kk == 0 else d))
    for c in range(4):
        p(f"v_add_f32 v{200+c}, v{AC+c}, v{AC+4+c}")
    for k in range(2, 8):
        for c in range(4):
            p(f"v_add_f32 v{200+c}, v{200+c}, v{AC+4*k+c}")
    p("""
    v_add_f32 v200, v200, v201
    v_add_f32 v202, v202, v203
    v_add_f32 v200, v200, v202
    """)
    allreduce_g(p, 200, 201)
    bcast_g3(p, AC + 31, 202, 201)
    p(f"""
    v_mul_f32 v202, {hexf((1.0+CH)/RT128)}, v202
    v_mul_f32 v200, {hexf(-CH/RT128)}, v200
    v_add_f32 v200, v200, v202
    v_cmp_eq_u32 s[42:43], 3, v2
    """)
    for k in range(32):
        p(f"v_add_f32 v{AC+k}, v{AC+k}, v200")
    p(f"v_cndmask_b32 v{AC+31}, v{AC+31}, 0, s[42:43]")
    for k in range(16):
        p(f"v_cvt_pk_bf16_f32 v{16+k}, v{AC+2*k}, v{AC+2*k+1}")
    p(f"""
    v_lshlrev_b32 v4, 4, v1
    s_lshl_b32 s36, s34, 12
    s_add_u32 s36, s36, {WIMG_OFF}
    """)
    for kk in range(4):
        p(f"buffer_store_dwordx4 v[{16+4*kk}:{19+4*kk}], v4, s[28:31], s36 offen offset:{1024*kk}")
    p(f"""
    v_lshlrev_b32 v4, 26, v1
    v_mov_b32 v5, 1
    s_mov_b32 s36, {WCNT_OFF}
    s_waitcnt vmcnt(0)
    buffer_atomic_add v5, v4, s[28:31], s36 offen
    s_endpgm
    """)


def gen_k2():
    mid, tail, drain = gen_loop_variants()
    s = f"""  s_cmp_ge_u32 s2, {K2_NWG}
  s_cbranch_scc1 Lk2_exit
  s_cmp_ge_u32 s2, {K2_ATT}
  s_cbranch_scc1 Lk2_wprep
"""
    a = Prog()
    k2_setup(a)
    k2_prologue(a)
    s += emit(a.finish())
    g = Prog()
    k2_glue(g)
    s += "  s_branch Lk2_loop\n" + emit(g.finish())
    s += ".p2align 6\nLk2_loop:\n" + emit(mid) + "  s_cbranch_scc1 Lk2_loop\nLk2_endcode:\n"
    c = Prog()
    stamp(c, 11, True)
    c("s_waitcnt lgkmcnt(0)")
    y = k2_end(c, [x for x in drain if x.kind != 'nop'])
    k2_final(c, y)
    cc = auto_wait(c.ins)
    cc, _ = pad_hazards(cc, pre=mid[-30:])
    s += emit(cc)
    e = Prog()
    k2_nofinal(e, y)
    s += emit(e.finish())
    d = Prog()
    d("Lk2_redo:")
    d("s_mov_b32 s45, 1")
    d("s_mov_b32 s66, 0")
    d("s_mov_b32 s61, -1")
    d("s_mov_b32 s71, 0")
    d("s_waitcnt vmcnt(0) lgkmcnt(0)")
    d("s_barrier")
    k2_maxpass(d)
    d("s_branch Lk2_run")
    s += emit(d.finish())
    e = Prog()
    k2_slow_gather(e)
    s += emit(e.finish())
    e = Prog()
    k2_wprep(e)
    s += "Lk2_wprep:\n" + emit(e.finish())
    s += "Lk2_exit:\n  s_endpgm\n"
    return s
```

```python
from common import *

K2_ATT = 245
K2_NWG = 249
NFULL = 39
LAG = 5
MAPB = bool(int(os.environ.get('MAPB', '0')))
RING = 65536
STG_OFF = 65536
GW_OFF = 131072
GW_STRIDE = 5632
IDX = 4096
IDX_TRASH = IDX + 4 * 330
MAXQ = 6
MAXTOT = 240
FLAG_OFF = GW_OFF + 4 * GW_STRIDE
LOG_OFF = FLAG_OFF + 64
TAIL_OFF = LOG_OFF + 1024
K2_LDS = TAIL_OFF + 8192
NSTAT = 6
NTILE = 195

V_LANE, V_G, V_I, V_L16 = 1, 2, 3, 4
V_KL, V_VL, V_KA, V_VA = 5, 6, 7, 8
V_T0, V_T1, V_T2, V_T3 = 9, 10, 11, 12
V_LA, V_LC, V_ROT = 13, 14, 15
O_B = 16
S_B = 144
P_B = 160
NM_B = 192
NM1_B = 208
NINF_B = 224
E0 = 208
LO = 216
TA = 220
OH = 228
OT = 232
AD = 236
ST, CN, PS, DEG = 238, 239, 240, 241
V_KS = 242
OH2 = 244
V_TK, V_ONE, V_AOFF, V_LG, V_TN = 244, 245, 246, 247, 236
AD8 = 248
Q_A = 0
K_A = 64
V_A = 128
GA_A = 192
GF_A = 224


def O(j, dt): return O_B + (j * 8 + dt) * 4
def Sr(s): return S_B + 4 * s
def Pr(j, k2): return P_B + j * 8 + k2 * 4
def NM(j): return NM_B + 4 * j
def Qf(j, ks): return Q_A + (j * 4 + ks) * 4
def Kf(s, ks): return K_A + (s * 4 + ks) * 4
def Vf(dt, k2): return V_A + (dt * 2 + k2) * 4


def mf(d, a, b, c):
    return f"v_mfma_f32_16x16x32_bf16 {d}, {a}, {b}, {c}"


def kread(s, ks, areg=V_KA):
    return I(f"ds_read_b128 {vr(Kf(s,ks),4,'a')}, v{areg} offset:{4096*s+1024*ks}", 'kread')


def vread(dt, k2, u):
    return I(f"ds_read_b64_tr_b16 {vr(Vf(dt,k2)+2*u,2,'a')}, v{V_VA} offset:{4096*(2*k2+u)+512*dt}", 'vread' if k2 == 0 else 'vread_hi')


def build_iter(variant):
    NG = 128
    mf_l = [None] * NG
    fixed = [[] for _ in range(NG)]
    units = [2] * NG
    for p in range(16):
        j, s = divmod(p, 4)
        for ks in range(4):
            if ks == 0:
                c = vr(NM(j), 4)
                if variant == 'tail':
                    c = [vr(NM(j), 4), vr(NM1_B + 4 * j, 4), vr(NM(j), 4), vr(NM(j), 4)][s]
            else:
                c = vr(Sr(s), 4)
            mf_l[8 * p + ks] = I(mf(vr(Sr(s), 4), vr(Kf(s, ks), 4, 'a'), vr(Qf(j, ks), 4, 'a'), c), 'qk' if s < 2 else 'qk_hi')
        pp = (p - LAG) % 16
        jp, a = divmod(pp, 4)
        prev = p < LAG
        n = 0
        for dt in (2 * a, 2 * a + 1):
            for k2 in (0, 1):
                mf_l[8 * p + 4 + n] = I(mf(vr(O(jp, dt), 4), vr(Vf(dt, k2), 4, 'a'), vr(Pr(jp, k2), 4), vr(O(jp, dt), 4)),
                                        'pv_prev' if prev else ('pv' if k2 == 0 else 'pv_hi'))
                n += 1
        q = (p - 1) % 16
        jq, sq = divmod(q, 4)
        tg = 'sm_prev' if p == 0 else ('sm' if sq < 2 else 'sm_hi')
        for r in range(4):
            fixed[8 * p + 2 * r].append(I(f"v_exp_f32 v{Sr(sq)+r}, v{Sr(sq)+r}", tg))
            units[8 * p + 2 * r] -= 2
        pd = Pr(jq, sq >> 1) + 2 * (sq & 1)
        fixed[8 * p + 3].append(I(f"v_cvt_pk_bf16_f32 v{pd}, v{Sr(sq)}, v{Sr(sq)+1}", tg))
        units[8 * p + 3] -= 1
        fixed[8 * p + 7].append(I(f"v_cvt_pk_bf16_f32 v{pd+1}, v{Sr(sq)+2}, v{Sr(sq)+3}", tg))
        units[8 * p + 7] -= 1
    LATM = 9
    BAR = 95
    placed = [[] for _ in range(NG)]

    def sched(mov, start):
        pend = sorted(mov, key=lambda m: (m[1], m[0]))
        for ga in range(start, start + NG):
            g = ga % NG
            while units[g] > 0:
                cand = [m for m in pend if m[0] <= ga and m[2] <= units[g]]
                if not cand:
                    break
                m = cand[0]
                assert ga <= m[1], ('deadline miss', ga, m)
                pend.remove(m)
                placed[g].append(m[3])
                units[g] -= m[2]
        assert not pend, pend
    units[BLK] = 0
    mov = []
    for i, g in enumerate(KVPOS):
        mov.append((g, g, 1, I(f"buffer_load_dwordx4 v{V_KS}, s[28:31], s40 offen offset:{64*i} lds", 'dma')))
    mov.append((95, 95, 1, I(f"buffer_atomic_add v{V_TK}, v{V_AOFF}, s[28:31], 0 offen {ATOMFLAGS}", 'tk')))
    for i, g in enumerate(GPOS):
        mov.append((g, g, 1, gdma8(i)))
    sched(mov, 0)
    mov = [(1, 11, 1, I(f"v_add_u32 v{V_VA}, s43, v{V_VL}", 'va'))]
    for a in range(4):
        n = 0
        for dt in (2 * a, 2 * a + 1):
            for k2 in (0, 1):
                last = 8 * ((12 + LAG + a) - 16) + 4 + n
                nxt = 8 * (LAG + a) + 4 + n
                for u in range(2):
                    mov.append((last, nxt - LATM, 1, vread(dt, k2, u)))
                n += 1
    for s in range(4):
        for ks in range(4):
            mov.append((8 * (12 + s) + ks, 127, 1, kread(s, ks)))
    sched(mov, 0)
    mov = []
    mov.append((128 + 4, 128 + 8, 1, I(f"v_add_u32 v{V_LC}, s63, v{V_LA}", 'g')))
    mov.append((57, 60, 1, I(f"ds_read_b128 v[{E0}:{E0+3}], v{V_LC}", 'g')))
    mov.append((57, 60, 1, I(f"ds_read_b128 v[{E0+4}:{E0+7}], v{V_LC} offset:16", 'g')))
    k = 0
    for u in range(2):
        for dt in range(8):
            mov.append((58 if u == 0 else 69, 64 + k, 1, I(f"ds_read_b64_tr_b16 {vr(GF_A+4*dt+2*u,2,'a')}, v{TA+dt} offset:{4096*u}", 'g')))
            k += 1
    tk = I(f"ds_add_u32 v{V_LG}, v{V_TK}", 'tk')
    mov.append((80, 81, 1, I(f"v_or_b32 v{V_TK}, s48, v{V_TK}", 'tk')))
    mov.append((82, 83, 1, tk))
    mov.append((106, 112, 1, I(f"ds_read_b32 v{V_TN}, v{V_LG}", 'tk')))
    mov.append((113, 127, 1, I(f"v_add_u32 v{V_LG}, 4, v{V_LG}", 'tk')))
    mov.append((128 + 1, 128 + 1, 1, I(f"v_readfirstlane_b32 s69, v{V_TN}", 'tk')))
    mov.append((80, 95, 1, I(f"v_add_u32 v{V_KA}, s42, v{V_KL}", 'ka')))
    for k in range(4):
        mov.append((87, 150 + k, 1, I(f"v_and_b32 v{OH+k}, s57, v{OT+k}", 'g')))
    sched(mov, 54)
    needs = {84: set(('v', E0 + k) for k in range(8)) | set(('a', GF_A + k) for k in range(32)),
             127: {('v', V_TN)}}
    scal = [[] for _ in range(NG)]
    sops = [
        (0, 0, I("s_mov_b32 m0, s41", 'dma')),
        (3, 3, I("s_cmp_lt_u32 s69, s47", 'tk')),
        (4, 4, I("s_cbranch_scc1 Lk2_sync", 'tk')),
        (4, 4, I("Lk2_sync_back:", 'tk')),
        (6, 6, I("s_add_u32 m0, m0, 960", 'dma')),
        (8, 8, I("s_add_u32 m0, m0, 960", 'dma')),
        (10, 10, I("s_add_u32 m0, m0, 960", 'dma')),
        (9, 9, I("s_sub_u32 s69, s69, s47", 'tk')),
        (11, 12, I("s_cmp_lt_u32 s68, 200", 'tk')),
        (13, 13, I("s_cselect_b32 s69, s69, 0xff", 'tk')),
        (14, 14, I(f"s_min_u32 s69, s69, {NTILE}", 'tk')),
        (16, 16, I("s_lshl_b32 s40, s69, 14", 'dma')),
        (20, 20, I("s_add_u32 s40, s40, s39", 'dma')),
        (31, 31, I("s_waitcnt vmcnt(21)", 'bar')),
        (28, 30, I(f"s_cmp_lt_u32 s69, {NTILE}", 'tk')),
        (32, 33, I("s_addc_u32 s44, s44, 0", 'tk')),
        (40, 42, I("s_add_u32 s68, s68, 1", 'tk')),
        (18, 21, I("s_add_u32 s41, s41, 16384", 'dma')),
        (24, 27, I("s_and_b32 s41, s41, 0xffff", 'dma')),
        (50, 53, I("s_add_u32 s42, s42, 16384", 'ka')),
        (54, 56, I("s_and_b32 s42, s42, 0xffff", 'ka')),
        (57, 57, I("s_waitcnt vmcnt(8)", 'bar')),
        (68, 68, I("s_waitcnt vmcnt(4)", 'bar')),
        (58, 61, I("s_add_u32 s63, s63, 128", 'g')),
        (62, 64, I("s_min_u32 s63, s63, s64", 'g')),
        (65, 67, I("s_cmp_eq_u32 s71, s68", 'g')),
        (69, 69, I("s_cbranch_scc1 Lk2_glue", 'g')),
        (69, 69, I("Lk2_glue_back:", 'g')),
        (71, 76, I("s_mov_b32 m0, s54", 'g')),
        (77, 79, I("s_sub_u32 s62, s62, 1", 'g')),
        (80, 83, I("s_cmp_lt_u32 s62, s72", 'g')),
        (98, 101, I("s_mov_b32 s43, s42", 'va')),
        (GPOS[3] + 1, GPOS[4] - 1, I("s_mov_b32 m0, s65", 'g')),
        (119, 121, I("s_sub_u32 s44, s44, 1", 'loop')),
        (122, 126, I("s_cmp_lg_u32 s44, 0", 'loop')),
    ]
    for lo, hi, ins in sops:
        g = next((g for g in range(lo, hi + 1) if g not in WAITGAPS and not scal[g]), lo)
        scal[g].append(ins)
    gaps = []
    for g in range(NG):
        vec = [x for x in placed[g] if x.kind != 'valu'] + [x for x in placed[g] if x.kind == 'valu'] + fixed[g]
        gaps.append([mf_l[g], scal[g], vec])
    if variant == 'drain':
        keep = lambda i: i.tag in ('pv_prev', 'sm_prev')
        needs = {}
    elif variant == 'tail':
        keep = lambda i: i.tag in ('qk', 'pv', 'pv_prev', 'sm', 'sm_prev', 'vread', 'va')
        needs = {}
    else:
        DROP = os.environ.get('DROP', '').split(',')

        def keep(i):
            if 'gdma' in DROP and i.tag == 'g' and i.kind == 'vmem':
                return False
            if 'kvdma' in DROP and i.tag == 'dma' and i.kind == 'vmem':
                return False
            if 'gds' in DROP and i.tag == 'g' and i.kind == 'ds':
                return False
            if 'vmwait' in DROP and i.tag == 'bar' and i.kind == 'waitcnt':
                return False
            if 'barrier' in DROP and i.kind == 'barrier':
                return False
            return True
    out = []
    for m, sc, ve in gaps:
        out.append([m if keep(m) else None, [x for x in sc if keep(x)], [x for x in ve if keep(x)]])
    if variant in ('mid', 'midskip'):
        out[BLK][2] = gblock(variant == 'mid')
    if variant == 'tail':
        ex = [I(f"v_mov_b32 v{Pr(j,1)+r}, 0") for j in (2, 3) for r in range(4)] + \
             [I(f"v_mov_b32 v{Sr(3)+r}, v{NINF_B}") for r in range(4)]
        for n, x in enumerate(ex):
            out[48 + 4 * n][2].append(x)
    return out, needs


BLK = 85
ATOMFLAGS = os.environ.get('ATOMFLAGS', 'sc0')


def gmad(i):
    return I(f"v_mad_u32_u16 v{AD+(i&1)}, v{E0+i}, s55, v{LO+(i&3)}", 'g')


def gdma(i):
    return I(f"buffer_load_dwordx4 v{AD+(i&1)}, s[20:23], 0 offen offset:{1024*(i&3)} lds", 'g')


KVPOS = (5, 7, 9, 11)
GPOS = (87, 93, 99, 103, 109, 115, 119, 125)


def gmad8(i):
    return I(f"v_mad_u32_u16 v{AD8+i}, v{E0+i}, s55, v{LO+(i&3)}", 'g')


def gdma8(i):
    return I(f"buffer_load_dwordx4 v{AD8+i}, s[20:23], 0 offen offset:{1024*(i&3)} sc1 lds", 'g')


def gblock(on):
    r = [I(f"v_mov_b32 v{V_TK}, v{V_ONE}", 'tk'), I("s_cbranch_scc0 Lk2_gskip", 'g')]
    if on:
        gm = lambda dt: I(mf(vr(GA_A + 4 * dt, 4, 'a'), vr(GF_A + 4 * dt, 4, 'a'), vr(OH, 4), vr(GA_A + 4 * dt, 4, 'a')), 'gm')
        pm = lambda k: I(f"v_perm_b32 v{OT+k}, v{E0+2*k+1}, v{E0+2*k}, s58", 'g')
        al = lambda k: I(f"v_alignbit_b32 v{OT+k}, v{OT+k}, v{OT+k}, v{V_ROT}", 'g')
        r += [gm(0), gmad8(0), gmad8(1), gm(1), gmad8(2), gmad8(3), gm(2), gmad8(4), gmad8(5), gm(3), gmad8(6), gmad8(7),
              gm(4), pm(0), pm(1), gm(5), pm(2), pm(3), gm(6), al(0), al(1), gm(7), al(2), al(3)]
    r += [I("Lk2_gskip:")]
    return r


WAITGAPS = set()


def place_waits(gaps, needs, entry, nextm, AGE=7):
    issued = list(entry)
    done = 0
    flat = []
    n = len(gaps)
    wg = set()

    def need_for(t):
        q = -1
        for k in range(done, len(issued)):
            if issued[k][0] & t:
                q = k
        return q
    touch = lambda i: set(i.rd) | set(i.wr)
    for g in range(n):
        m, sc, ve = gaps[g]
        if m is not None:
            assert need_for(touch(m)) < 0, ('late ds', g, m)
            flat.append(m)
        nx = gaps[g + 1][0] if g + 1 < n else nextm
        t = set(needs.get(g, set()))
        if nx is not None:
            t |= touch(nx)
        q = need_for(t)
        if q >= 0:
            for k in range(q, len(issued)):
                if issued[k][1] <= g - AGE:
                    q = k
            N = min(15, len(issued) - 1 - q)
            flat.append(I(f"s_waitcnt lgkmcnt({N})", 'w'))
            wg.add(g)
            done = len(issued) - N
        flat.extend(sc)
        for x in ve:
            if x.kind not in ('label', 'dir'):
                assert need_for(touch(x)) < 0, ('late ds', g, x)
            if x.kind == 'ds':
                issued.append((set(x.wr), g))
            flat.append(x)
    return flat, [(r, g - n) for r, g in issued[done:]], wg


def iter_code(variant, entry, pre):
    gaps, needs = build_iter(variant)
    nextm = None if variant in ('drain', 'tail') else gaps[0][0]
    flat, ex, wg = place_waits(gaps, needs, entry, nextm)
    fixed, problems = pad_hazards(flat, fix=True, pre=pre)
    return fixed, problems, ex, wg


def gen_loop_variants():
    WAITGAPS.clear()
    _, _, ex, _ = iter_code('mid', [], [])
    _, _, ex2, wg = iter_code('mid', ex, [])
    assert ex == ex2
    WAITGAPS.update(wg)
    mid0, _, _, _ = iter_code('mid', ex, [])
    mid, prob, _, _ = iter_code('mid', ex, mid0[-30:])
    assert not prob, prob
    _, prob, _, _ = iter_code('midskip', ex, mid0[-30:])
    assert not prob, prob
    tail, _, ex3, _ = iter_code('tail', ex, mid[-30:])
    drain, _, _, _ = iter_code('drain', ex, mid[-30:])
    drain2, _, _, _ = iter_code('drain', ex3, tail[-30:])
    assert [x.text for x in drain] == [x.text for x in drain2]
    return mid, tail, drain
```

```python
import sys
from asmlib import *
src = open(sys.argv[1]).read().split('\n')
ins = []
intext = False
for l in src:
    t = l.strip()
    if t == '.text': intext = True; continue
    if t.startswith('.section'): intext = False
    if not intext or not t or t.startswith(';') or t.startswith('.'): continue
    ins.append(I(t))
lab = {i.text[:-1]: k for k, i in enumerate(ins) if i.kind == 'label'}
pred = [[] for _ in ins]
for k, i in enumerate(ins):
    fall = not (i.op in ('s_branch', 's_endpgm'))
    if fall and k + 1 < len(ins): pred[k + 1].append(k)
    if i.kind == 'branch':
        pred[lab[i.text.split()[1]]].append(k)
bad = 0
for k, c in enumerate(ins):
    if c.kind in ('label', 'dir'): continue
    seen = {}
    stack = [(p, 0) for p in pred[k]]
    while stack:
        j, d = stack.pop()
        if j in seen and seen[j] <= d: continue
        seen[j] = d
        p = ins[j]
        if p.kind not in ('label', 'dir'):
            n = need_states(p, c)
            if n > d:
                print("HAZARD need", n, "have", d, "|", p.text, "->", c.text); bad += 1
            d2 = d + p.states()
        else:
            d2 = d
        if d2 < 20:
            for q in pred[j]: stack.append((q, d2))
print("instructions", len(ins), "hazards", bad)
```
